```python
import torch

def _softmax(x, axis=-1):
    return torch.softmax(x, dim=axis)
def _gelu(x):
    return torch.nn.functional.gelu(x, approximate="tanh")
def _silu(x):
    return torch.nn.functional.silu(x)
def _sigmoid(x):
    return torch.sigmoid(x)
def _layernorm(x, axis=-1, eps=1e-5):
    m = x.mean(dim=axis, keepdim=True)
    v = x.var(dim=axis, keepdim=True, unbiased=False)
    return (x - m) / torch.sqrt(v + eps)
def _scatter_add(tgt, idx, src, axis=0):
    return tgt.clone().index_add_(axis, idx, src)
def _segment_sum(src, seg, n):
    out = torch.zeros((n,) + src.shape[1:], dtype=src.dtype)
    return out.index_add_(0, seg, src)
def _pad(x, pw):
    flat = tuple(v for pair in reversed(pw) for v in pair)
    return torch.nn.functional.pad(x, flat)

kernel_name = 'concat_heads__sliding_local_dilated__grouped_kv_mqa__prompt'

def setup_inputs():

    _w = (lambda a: (lambda t: t.to(torch.bfloat16) if t.is_floating_point() else t)(torch.as_tensor(a)))
    def _A_setup():
        B, S, D = 1, 2048, 576
        return {
            "x": _w((lambda *s: torch.randn(*s, dtype=torch.bfloat16) * 0.1)(B, S, D)),
            "wqkv": _w((lambda *s: torch.randn(*s, dtype=torch.bfloat16) * 0.8)(D, 3 * D)),
            "wo": _w((lambda *s: torch.randn(*s, dtype=torch.bfloat16) * 0.8)(D, D)),
        }
    _A_in = _A_setup()

    def _B_setup():
        B, S, D, H = 1, 2048, 576, 32
        Dh = D // H
        return {
            "x": _w((lambda *s: torch.randn(*s, dtype=torch.bfloat16) * 0.05)(B, S, D)),
            "wq": _w((lambda *s: torch.randn(*s, dtype=torch.bfloat16) * 3.2)(D, H * Dh)),
            "wk": _w((lambda *s: torch.randn(*s, dtype=torch.bfloat16) * 3.2)(D, Dh)),
            "wv": _w((lambda *s: torch.randn(*s, dtype=torch.bfloat16) * 1.6)(D, Dh)),
            "wo": _w((lambda *s: torch.randn(*s, dtype=torch.bfloat16) * 1.6)(H * Dh, D)),
        }
    _B_in = _B_setup()

    return {
        "A_x": _A_in["x"],
        "A_wqkv": _A_in["wqkv"],
        "A_wo": _A_in["wo"],
        "B_x": _B_in["x"],
        "B_wq": _B_in["wq"],
        "B_wk": _B_in["wk"],
        "B_wv": _B_in["wv"],
        "B_wo": _B_in["wo"],
    }

def reference(A_x, A_wqkv, A_wo, B_x, B_wq, B_wk, B_wv, B_wo):
    def _A_ref(x, wqkv, wo):
        B, S, D = x.shape
        H = 32; Dh = D // H
        W, dil = 8, 2
        qkv = (lambda x, *d: x.permute(*d))((x @ wqkv).reshape(B, S, 3, H, Dh), 2, 0, 3, 1, 4)
        q, k, v = qkv[0], qkv[1], qkv[2]
        scale = Dh ** -0.5
        pos = torch.arange(S)
        off = torch.arange(W) * dil
        idx = pos[:, None] - off[None, :]
        mask = idx >= 0
        idx_c = torch.where(mask, idx, 0).reshape(-1)
        kg = k[:, :, idx_c, :].reshape(B, H, S, W, Dh)
        vg = v[:, :, idx_c, :].reshape(B, H, S, W, Dh)
        logits = torch.einsum("bhsd,bhswd->bhsw", q, kg) * scale
        logits = torch.where(mask[None, None, :, :], logits, -1e9)
        attn = _softmax(logits, axis=-1)
        o = torch.einsum("bhsw,bhswd->bhsd", attn, vg)
        return (lambda x, *d: x.permute(*d))(o, 0, 2, 1, 3).reshape(B, S, D) @ wo

    def _B_ref(x, wq, wk, wv, wo):
        B, S, D = x.shape
        H = 32
        Dh = D // H
        q = (lambda x, *d: x.permute(*d))((x @ wq).reshape(B, S, H, Dh), 0, 2, 1, 3)
        k = x @ wk
        v = x @ wv
        scores = torch.einsum("bhqd,bkd->bhqk", q, k) * (Dh ** -0.5)
        p = _softmax(scores, axis=-1)
        o = torch.einsum("bhqk,bkd->bhqd", p, v)
        return (lambda x, *d: x.permute(*d))(o, 0, 2, 1, 3).reshape(B, S, H * Dh) @ wo

    a = _A_ref(A_x, A_wqkv, A_wo)
    b = _B_ref(B_x, B_wq, B_wk, B_wv, B_wo)
    return torch.concatenate([a, b], axis=-1)
```

```python
import struct, sys, math

NAME = "concat_heads__sliding_local_dilated__grouped_kv_mqa__prompt"

WS_QKVA = 0x000000
WS_QB   = 0x700000
WS_KV   = 0xA00000
WS_OA   = 0xB00000
WS_OB   = 0xE00000
TILE_B  = 2368
KVIMG_B = 64 * TILE_B

def f32bits(x):
    return struct.unpack("<I", struct.pack("<f", x))[0]

CSCALE = (18 ** -0.5) * math.log2(math.e)

class E:
    def __init__(self):
        self.l = []
    def __call__(self, s):
        self.l.append("    " + s)
    def label(self, s):
        self.l.append(s + ":")
    def c(self, s):
        self.l.append("    ; " + s)
    def text(self):
        return "\n".join(self.l) + "\n"

def srd(e, d, lo, hi, nbytes):
    e(f"s_mov_b32 s{d}, s{lo}")
    e(f"s_mov_b32 s{d+1}, s{hi}")
    e(f"s_mov_b32 s{d+2}, {nbytes}")
    e(f"s_mov_b32 s{d+3}, 0x00020000")

def srd_off(e, d, lo, hi, off, nbytes):
    e(f"s_add_u32 s{d}, s{lo}, {off}")
    e(f"s_addc_u32 s{d+1}, s{hi}, 0")
    e(f"s_mov_b32 s{d+2}, {nbytes}")
    e(f"s_mov_b32 s{d+3}, 0x00020000")

def gen_gemm(e, pfx, NT, NSLOT, special=False):
    XB = 16384
    SLOT = XB + NT * 4096
    NCH = 9
    NQ = 3 if special else NT
    D = 4 + NQ + (8 if special else 0)
    vX = [2, 3, 4, 5]; vW = 6; vKV = 7
    vXr = [8, 9, 10, 11]; vWr = 12
    F = [16, 16 + 4 + 4 * NT]
    ACC = 64
    e.c(f"---- gemm body {pfx} NT={NT} NSLOT={NSLOT} special={special}")
    e("v_and_b32 v1, 63, v0")
    e("v_lshrrev_b32 v13, 6, v0")
    e("s_nop 0")
    e("v_readfirstlane_b32 s32, v13")
    e("v_lshrrev_b32 v13, 3, v1")
    e("v_lshrrev_b32 v14, 4, v1")
    e("v_and_b32 v15, 7, v1")
    e("s_lshl_b32 s40, s32, 5")
    e("s_add_u32 s40, s40, s36")
    e("s_movk_i32 s41, 1152")
    for j in range(4):
        e(f"v_add_u32 v16, {4*j}, v14")
        e("v_and_b32 v16, 7, v16")
        e("v_xor_b32 v16, v16, v15")
        e("v_lshlrev_b32 v16, 4, v16")
        e(f"v_add_u32 v17, {8*j}, v13")
        e("v_add_u32 v17, s40, v17")
        e("v_mul_lo_u32 v17, v17, s41")
        e(f"v_add_u32 v{vX[j]}, v16, v17")
    e("v_lshrrev_b32 v16, 2, v1")
    e("s_lshl_b32 s40, s32, 4")
    e("v_add_u32 v16, s40, v16")
    e("v_mul_lo_u32 v16, v16, s33")
    e("v_and_b32 v17, 3, v1")
    e("v_lshlrev_b32 v17, 4, v17")
    e("v_add_u32 v16, v16, v17")
    e(f"v_add_u32 v{vW}, s37, v16")
    if special:
        e("v_add_u32 v16, s40, v14")
        e("v_mul_u32_u24 v16, 36, v16")
        e("v_and_b32 v17, 15, v1")
        e("v_min_u32 v17, 8, v17")
        e("v_lshlrev_b32 v17, 2, v17")
        e(f"v_add_u32 v{vKV}, v16, v17")
    e("s_mov_b32 s41, 0")
    e("s_mov_b32 s42, 0")
    e("s_mov_b32 s43, 0")
    e("s_lshl_b32 s48, s33, 6")
    e("s_lshl_b32 s44, s32, 12")
    e("s_lshl_b32 s45, s32, 10")
    e(f"s_add_u32 s45, s45, {XB}")
    e("s_mov_b32 s46, 0")
    e(f"s_mov_b32 s7, {SLOT}")

    def dma_chunk():
        for j in range(4):
            e(f"s_add_u32 m0, s44, {j*1024}")
            e("s_nop 0")
            e(f"buffer_load_dwordx4 v{vX[j]}, s[8:11], s41 offen lds")
        for t in range(NQ):
            e(f"s_add_u32 m0, s45, {t*4096 - 64*t}")
            e("s_nop 0")
            e(f"buffer_load_dwordx4 v{vW}, s[12:15], s42 offen offset:{64*t} lds")
        if special:
            for (t, sr) in ((3, 20), (4, 24)):
                for q in range(4):
                    e(f"s_add_u32 m0, s45, {t*4096 + q*256 - 144*q}")
                    e("s_nop 0")
                    e(f"buffer_load_dword v{vKV}, s[{sr}:{sr+3}], s43 offen offset:{144*q} lds")
        e("s_add_u32 s41, s41, 128")
        e("s_add_u32 s42, s42, s48")
        if special:
            e("s_add_u32 s43, s43, 2304")
        e("s_add_u32 s46, s46, 1")
        e(f"s_cmp_eq_u32 s46, {NSLOT}")
        e(f"s_cselect_b32 s47, {-(NSLOT-1)*SLOT}, s7")
        e("s_cselect_b32 s46, 0, s46")
        e("s_add_u32 s44, s44, s47")
        e("s_add_u32 s45, s45, s47")

    for c in range(NSLOT):
        dma_chunk()
    e("v_and_b32 v13, 31, v1")
    e("v_lshrrev_b32 v14, 5, v1")
    e("v_lshrrev_b32 v15, 1, v13")
    e("v_and_b32 v15, 7, v15")
    e("v_lshlrev_b32 v16, 7, v13")
    e("s_lshl_b32 s40, s32, 12")
    e("v_add_u32 v16, s40, v16")
    e("v_lshlrev_b32 v17, 2, v14")
    for j in range(4):
        e(f"v_add_u32 v18, {j}, v17")
        e("v_xor_b32 v18, v18, v15")
        e("v_lshlrev_b32 v18, 4, v18")
        e(f"v_add_u32 v{vXr[j]}, v16, v18")
    e("v_lshlrev_b32 v16, 11, v14")
    e("v_bfe_u32 v17, v1, 2, 2")
    e("v_lshlrev_b32 v17, 6, v17")
    e("v_add_u32 v16, v16, v17")
    e("v_bfe_u32 v17, v1, 4, 1")
    e("v_lshlrev_b32 v17, 5, v17")
    e("v_add_u32 v16, v16, v17")
    e("v_and_b32 v17, 3, v1")
    e("v_lshlrev_b32 v17, 3, v17")
    e("v_add_u32 v16, v16, v17")
    e(f"v_add_u32 v{vWr}, {XB}, v16")
    for i in range(NT * 16):
        e(f"v_mov_b32 v{ACC+i}, 0")

    def reads(j, fb):
        b = F[fb]
        e(f"ds_read_b128 v[{b}:{b+3}], v{vXr[j]}")
        for t in range(NT):
            r = b + 4 + 4 * t
            e(f"ds_read_b64_tr_b16 v[{r}:{r+1}], v{vWr} offset:{t*4096 + j*512}")
            e(f"ds_read_b64_tr_b16 v[{r+2}:{r+3}], v{vWr} offset:{t*4096 + j*512 + 256}")
    def mfmas(fb):
        b = F[fb]
        for t in range(NT):
            r = b + 4 + 4 * t
            a = ACC + 16 * t
            if special and t == 4:
                e(f"v_mfma_f32_32x32x16_bf16 v[{a}:{a+15}], v[{b}:{b+3}], v[{r}:{r+3}], v[{a}:{a+15}]")
            else:
                e(f"v_mfma_f32_32x32x16_bf16 v[{a}:{a+15}], v[{r}:{r+3}], v[{b}:{b+3}], v[{a}:{a+15}]")
    NR = 1 + 2 * NT
    e("s_mov_b32 s40, 0")
    e("s_mov_b32 s49, 0")
    e(f"s_waitcnt vmcnt({(NSLOT-1)*D})")
    e("s_barrier")
    reads(0, 0)
    e.label(f"{pfx}_loop")
    reads(1, 1)
    e(f"s_waitcnt lgkmcnt({min(NR,15)})")
    mfmas(0)
    reads(2, 0)
    e(f"s_waitcnt lgkmcnt({min(NR,15)})")
    mfmas(1)
    reads(3, 1)
    e(f"s_waitcnt lgkmcnt({min(NR,15)})")
    mfmas(0)
    full = NSLOT - 2
    e(f"s_cmp_gt_u32 s40, {NCH-1-(NSLOT-1)}")
    e(f"s_cbranch_scc1 {pfx}_tail")
    e(f"s_waitcnt vmcnt({full*D})")
    e(f"s_branch {pfx}_join")
    e.label(f"{pfx}_tail")
    for c in range(NCH - (NSLOT - 1), NCH - 2):
        allowed = 7 - c
        e(f"s_cmp_lg_u32 s40, {c}")
        e(f"s_cbranch_scc1 {pfx}_t{c}")
        e(f"s_waitcnt vmcnt({allowed*D})")
        e(f"s_branch {pfx}_join")
        e.label(f"{pfx}_t{c}")
    e("s_waitcnt vmcnt(0)")
    e.label(f"{pfx}_join")
    e("s_add_u32 s49, s49, 1")
    e(f"s_cmp_eq_u32 s49, {NSLOT}")
    e(f"s_cselect_b32 s47, {-(NSLOT-1)*SLOT}, s7")
    e("s_cselect_b32 s49, 0, s49")
    for j in range(4):
        e(f"v_add_u32 v{vXr[j]}, s47, v{vXr[j]}")
    e(f"v_add_u32 v{vWr}, s47, v{vWr}")
    e("s_waitcnt lgkmcnt(0)")
    e("s_barrier")
    reads(0, 0)
    e(f"s_cmp_gt_u32 s40, {NCH-1-NSLOT}")
    e(f"s_cbranch_scc1 {pfx}_nodma")
    dma_chunk()
    e.label(f"{pfx}_nodma")
    mfmas(1)
    e("s_add_u32 s40, s40, 1")
    e(f"s_cmp_lt_u32 s40, {NCH}")
    e(f"s_cbranch_scc1 {pfx}_loop")
    e("s_waitcnt lgkmcnt(0)")
    e("s_nop 15")
    e("s_nop 3")
    NTQ = 3 if special else NT
    RS = 80
    TR = 32 * RS
    e("v_and_b32 v13, 31, v1")
    e("v_lshrrev_b32 v14, 5, v1")
    e(f"v_mul_u32_u24 v15, {RS}, v13")
    e("v_lshlrev_b32 v16, 3, v14")
    e("v_add_u32 v15, v15, v16")
    e(f"s_mul_i32 s40, s32, {NT*TR}")
    e("v_add_u32 v15, s40, v15")
    e("v_lshrrev_b32 v16, 2, v1")
    e(f"v_mul_u32_u24 v17, {RS}, v16")
    e("v_and_b32 v18, 3, v1")
    e("v_lshlrev_b32 v18, 4, v18")
    e("v_add_u32 v17, v17, v18")
    e("v_add_u32 v17, s40, v17")
    e("s_lshl_b32 s41, s32, 5")
    e("s_add_u32 s41, s41, s36")
    e("v_add_u32 v16, s41, v16")
    e("v_mul_lo_u32 v16, v16, s34")
    e("v_add_u32 v16, v16, v18")
    e("v_add_u32 v16, s38, v16")
    e("s_lshl_b32 s42, s34, 4")
    for t in range(NTQ):
        a = ACC + 16 * t
        for i in range(16):
            e(f"v_mul_f32 v{a+i}, s35, v{a+i}")
        for i in range(8):
            e(f"v_cvt_pk_bf16_f32 v{20+i}, v{a+2*i}, v{a+2*i+1}")
        for g in range(4):
            e(f"ds_write_b64 v15, v[{20+2*g}:{21+2*g}] offset:{t*TR + g*16}")
    e("s_waitcnt lgkmcnt(0)")
    for t in range(NTQ):
        e(f"ds_read_b128 v[{20+8*t}:{23+8*t}], v17 offset:{t*TR}")
        e(f"ds_read_b128 v[{24+8*t}:{27+8*t}], v17 offset:{t*TR + 16*RS}")
    for t in range(NTQ):
        if t == NTQ - 1 and not special:
            e(f"s_cmp_lt_u32 s39, {NTQ}")
            e(f"s_cbranch_scc1 {pfx}_skiplast")
        e(f"s_waitcnt lgkmcnt({2*(NTQ-1-t)})")
        e(f"buffer_store_dwordx4 v[{20+8*t}:{23+8*t}], v16, s[16:19], 0 offen offset:{64*t}")
        e(f"buffer_store_dwordx4 v[{24+8*t}:{27+8*t}], v16, s[16:19], s42 offen offset:{64*t}")
    if not special:
        e.label(f"{pfx}_skiplast")
    if special:
        e("s_lshr_b32 s43, s41, 5")
        e(f"s_mul_i32 s43, s43, {TILE_B}")
        a = ACC + 48
        for i in range(5):
            e(f"v_cvt_pk_bf16_f32 v{48+i}, v{a+2*i}, v{a+2*i+1}")
        e("v_lshlrev_b32 v56, 4, v13")
        e("v_lshlrev_b32 v57, 3, v14")
        e("v_add_u32 v56, v56, v57")
        e("buffer_store_dwordx2 v[48:49], v56, s[28:31], s43 offen")
        e("buffer_store_dwordx2 v[50:51], v56, s[28:31], s43 offen offset:512")
        e("v_lshlrev_b32 v57, 2, v13")
        e("v_cmp_gt_u32 vcc, 32, v1")
        e("s_and_saveexec_b64 s[50:51], vcc")
        e("buffer_store_dword v52, v57, s[28:31], s43 offen offset:1024")
        e("s_mov_b64 exec, s[50:51]")
        a = ACC + 64
        for i in range(8):
            e(f"v_cvt_pk_bf16_f32 v{40+i}, v{a+2*i}, v{a+2*i+1}")
        e("v_mov_b32 v58, 0x3f803f80")
        e("v_cmp_eq_u32 vcc, 18, v13")
        e("s_nop 1")
        for i in range(8):
            e(f"v_cndmask_b32 v{40+i}, v{40+i}, v58, vcc")
        e("v_lshlrev_b32 v56, 4, v13")
        e("v_mul_u32_u24 v57, 304, v14")
        e("v_add_u32 v56, v56, v57")
        e("v_cmp_gt_u32 vcc, 19, v13")
        e("s_and_saveexec_b64 s[50:51], vcc")
        e("buffer_store_dwordx4 v[40:43], v56, s[28:31], s43 offen offset:1152")
        e("buffer_store_dwordx4 v[44:47], v56, s[28:31], s43 offen offset:1760")
        e("s_mov_b64 exec, s[50:51]")
    e("s_endpgm")
    return NSLOT * SLOT

def kd(name, vgpr, sgpr=64):
    acc = (vgpr + 3) // 4 * 4
    return f""".amdhsa_kernel {name}
  .amdhsa_next_free_vgpr {vgpr}
  .amdhsa_next_free_sgpr {sgpr}
  .amdhsa_accum_offset {acc}
  .amdhsa_group_segment_fixed_size 0
  .amdhsa_kernarg_size 88
  .amdhsa_user_sgpr_count 2
  .amdhsa_user_sgpr_kernarg_segment_ptr 1
  .amdhsa_system_sgpr_workgroup_id_x 1
.end_amdhsa_kernel
"""

def header(e, name):
    e.l.append(f".globl {name}")
    e.l.append(".p2align 8")
    e.l.append(f".type {name},@function")
    e.label(name)

def gen_proj(e):
    header(e, "proj_kernel")
    e("s_cmp_ge_u32 s2, 256")
    e("s_cbranch_scc1 proj_exit")
    e("s_load_dwordx2 s[52:53], s[0:1], 0")
    e("s_load_dwordx2 s[54:55], s[0:1], 8")
    e("s_load_dwordx2 s[56:57], s[0:1], 24")
    e("s_load_dwordx2 s[58:59], s[0:1], 32")
    e("s_load_dwordx2 s[60:61], s[0:1], 40")
    e("s_load_dwordx2 s[62:63], s[0:1], 48")
    e("s_load_dwordx2 s[4:5], s[0:1], 80")
    e("s_and_b32 s6, s2, 7")
    e("s_lshr_b32 s7, s2, 3")
    e("s_and_b32 s3, s7, 7")
    e("s_lshr_b32 s7, s7, 3")
    e("s_waitcnt lgkmcnt(0)")
    e("s_cmp_lt_u32 s6, 2")
    e("s_cbranch_scc1 proj_B")
    e("s_sub_u32 s6, s6, 2")
    e("s_and_b32 s40, s6, 1")
    e("s_lshl_b32 s40, s40, 3")
    e("s_add_u32 s40, s40, s3")
    e("s_lshr_b32 s41, s6, 1")
    e("s_lshl_b32 s41, s41, 2")
    e("s_add_u32 s41, s41, s7")
    e("s_cmp_ge_u32 s41, 11")
    e("s_cbranch_scc1 proj_exit")
    srd(e, 8, 52, 53, 2048 * 1152)
    srd(e, 12, 54, 55, 576 * 3456)
    srd_off(e, 16, 4, 5, WS_QKVA, 2048 * 3456)
    e("s_movk_i32 s33, 3456")
    e("s_movk_i32 s34, 3456")
    e("s_mov_b32 s35, 1.0")
    e("s_lshl_b32 s36, s40, 7")
    e("s_mul_i32 s37, s41, 320")
    e("s_mov_b32 s38, s37")
    e("s_cmp_eq_u32 s41, 10")
    e("s_cselect_b32 s39, 4, 5")
    e("s_branch proj_generic")
    e.label("proj_B")
    e("s_lshl_b32 s40, s6, 3")
    e("s_add_u32 s40, s40, s3")
    srd(e, 8, 56, 57, 2048 * 1152)
    srd(e, 12, 58, 59, 576 * 1152)
    srd_off(e, 16, 4, 5, WS_QB, 2048 * 1152)
    e("s_movk_i32 s33, 1152")
    e("s_movk_i32 s34, 1152")
    e(f"s_mov_b32 s35, {f32bits(CSCALE):#x}")
    e("s_lshl_b32 s36, s40, 7")
    e("s_mul_i32 s37, s7, 320")
    e("s_mov_b32 s38, s37")
    e("s_mov_b32 s39, 5")
    e("s_cmp_eq_u32 s7, 3")
    e("s_cbranch_scc1 proj_special")
    e.label("proj_generic")
    lds = gen_gemm(e, "pg", 5, 4)
    e.label("proj_special")
    srd(e, 20, 60, 61, 576 * 36)
    srd(e, 24, 62, 63, 576 * 36)
    srd_off(e, 28, 4, 5, WS_KV, KVIMG_B)
    gen_gemm(e, "ps", 5, 4, special=True)
    e.label("proj_exit")
    e("s_endpgm")
    return lds

def gen_out(e):
    header(e, "outp_kernel")
    e("s_cmp_ge_u32 s2, 192")
    e("s_cbranch_scc1 outp_exit")
    e("s_load_dwordx2 s[52:53], s[0:1], 16")
    e("s_load_dwordx2 s[54:55], s[0:1], 56")
    e("s_load_dwordx2 s[56:57], s[0:1], 64")
    e("s_load_dwordx2 s[4:5], s[0:1], 80")
    e("s_and_b32 s6, s2, 7")
    e("s_lshr_b32 s7, s2, 3")
    e("s_lshr_b32 s3, s6, 2")
    e("s_and_b32 s40, s6, 3")
    e("s_lshl_b32 s40, s40, 2")
    e("s_and_b32 s41, s7, 3")
    e("s_add_u32 s40, s40, s41")
    e("s_lshr_b32 s41, s7, 2")
    e("s_waitcnt lgkmcnt(0)")
    e(f"s_mov_b32 s42, {WS_OB}")
    e("s_cmp_eq_u32 s3, 0")
    e(f"s_cselect_b32 s42, {WS_OA}, s42")
    e("s_cselect_b32 s58, s52, s54")
    e("s_cselect_b32 s59, s53, s55")
    e("s_add_u32 s8, s4, s42")
    e("s_addc_u32 s9, s5, 0")
    e(f"s_mov_b32 s10, {2048*1152}")
    e("s_mov_b32 s11, 0x00020000")
    srd(e, 12, 58, 59, 576 * 1152)
    srd(e, 16, 56, 57, 2048 * 2304)
    e("s_movk_i32 s33, 1152")
    e("s_movk_i32 s34, 2304")
    e("s_mov_b32 s35, 1.0")
    e("s_lshl_b32 s36, s40, 7")
    e("s_mul_i32 s37, s41, 192")
    e("s_mul_i32 s38, s3, 1152")
    e("s_add_u32 s38, s38, s37")
    e("s_mov_b32 s39, 3")
    lds = gen_gemm(e, "og", 3, 5)
    e.label("outp_exit")
    e("s_endpgm")
    return lds

def gen_attn(e):
    header(e, "attn_kernel")
    Q1 = 12; Q2 = 16; C = 20; S = [36, 52]; P = [68, 76]; O = 84
    KF = [100, 104]; K2F = [108, 112]; VF = [116, 124]
    OA = 132
    vK1 = 4; vK2 = 5; vV = 6
    e("s_cmp_ge_u32 s2, 256")
    e("s_cbranch_scc1 attn_exit")
    e("s_load_dwordx2 s[4:5], s[0:1], 80")
    e("v_and_b32 v1, 63, v0")
    e("v_lshrrev_b32 v7, 6, v0")
    e("v_and_b32 v2, 31, v1")
    e("v_readfirstlane_b32 s32, v7")
    e("v_lshrrev_b32 v3, 5, v1")
    e("s_lshl_b32 s33, s2, 3")
    e("s_add_u32 s33, s33, s32")
    e("s_waitcnt lgkmcnt(0)")
    srd_off(e, 8, 4, 5, WS_QKVA, 2048 * 3456)
    srd_off(e, 12, 4, 5, WS_QB, 2048 * 1152)
    srd_off(e, 16, 4, 5, WS_KV, KVIMG_B)
    srd_off(e, 20, 4, 5, WS_OA, 2048 * 1152)
    srd_off(e, 24, 4, 5, WS_OB, 2048 * 1152)
    e("v_lshlrev_b32 v7, 4, v1")
    e("s_lshl_b32 s34, s32, 10")
    def dma(r):
        e(f"s_add_u32 s35, s34, {r*8192}")
        e("s_mov_b32 m0, s35")
        e("s_nop 0")
        e("buffer_load_dwordx4 v7, s[16:19], s35 offen lds")
    for r in range(3):
        dma(r)
    e("v_mul_u32_u24 v8, 36, v2")
    e("v_lshlrev_b32 v9, 4, v3")
    e("v_add_u32 v9, v8, v9")
    e("s_mul_i32 s36, s33, 1152")
    e(f"buffer_load_dwordx4 v[{Q1}:{Q1+3}], v9, s[12:15], s36 offen")
    e(f"buffer_load_dword v{Q2}, v8, s[12:15], s36 offen offset:32")
    AQ = 20; AK = 30; AV = 70; AO = 110; T = 140
    e("s_mul_i32 s37, s33, 3456")
    e(f"buffer_load_dwordx4 v[{AQ}:{AQ+3}], v8, s[8:11], s37 offen")
    e(f"buffer_load_dwordx4 v[{AQ+4}:{AQ+7}], v8, s[8:11], s37 offen offset:16")
    e(f"buffer_load_dword v{AQ+8}, v8, s[8:11], s37 offen offset:32")
    e("v_lshlrev_b32 v10, 3, v3")
    e("v_sub_u32 v10, s33, v10")
    e("s_movk_i32 s38, 3456")
    for i in range(4):
        e(f"v_subrev_u32 v{T+i}, {2*i}, v10")
        e(f"v_max_i32 v11, 0, v{T+i}")
        e("v_mul_lo_u32 v11, v11, s38")
        e("v_add_u32 v11, v11, v8")
        k = AK + 10 * i; v = AV + 10 * i
        e(f"buffer_load_dwordx4 v[{k}:{k+3}], v11, s[8:11], 0 offen offset:1152")
        e(f"buffer_load_dwordx4 v[{k+4}:{k+7}], v11, s[8:11], 0 offen offset:1168")
        e(f"buffer_load_dword v{k+8}, v11, s[8:11], 0 offen offset:1184")
        e(f"buffer_load_dwordx4 v[{v}:{v+3}], v11, s[8:11], 0 offen offset:2304")
        e(f"buffer_load_dwordx4 v[{v+4}:{v+7}], v11, s[8:11], 0 offen offset:2320")
        e(f"buffer_load_dword v{v+8}, v11, s[8:11], 0 offen offset:2336")
    for r in range(3, 19):
        dma(r)
    e(f"v_lshlrev_b32 v{vK1}, 4, v1")
    e(f"v_lshlrev_b32 v{vK2}, 2, v2")
    e(f"v_add_u32 v{vK2}, 1024, v{vK2}")
    e(f"v_min_u32 v{vV}, 18, v2")
    e(f"v_lshlrev_b32 v{vV}, 4, v{vV}")
    e("v_mul_u32_u24 v11, 304, v3")
    e(f"v_add_u32 v{vV}, v{vV}, v11")
    e(f"v_add_u32 v{vV}, 1152, v{vV}")
    e("s_waitcnt vmcnt(16)")
    L = T + 4
    e(f"s_mov_b32 s39, {f32bits(CSCALE):#x}")
    for i in range(4):
        k = AK + 10 * i
        e(f"v_dot2_f32_bf16 v{L+i}, v{AQ}, v{k}, 0")
    for j in range(1, 9):
        for i in range(4):
            k = AK + 10 * i
            e(f"v_dot2_f32_bf16 v{L+i}, v{AQ+j}, v{k+j}, v{L+i}")
    e(f"v_mov_b32 v{T+8}, 0xff800000")
    e("s_nop 2")
    for i in range(4):
        e(f"v_mul_f32 v{L+i}, s39, v{L+i}")
        e(f"v_cmp_gt_i32 vcc, 0, v{T+i}")
        e("s_nop 1")
        e(f"v_cndmask_b32 v{L+i}, v{L+i}, v{T+8}, vcc")
    M = T + 9
    e(f"v_max_f32 v{M}, v{L}, v{L+1}")
    e(f"v_max3_f32 v{M}, v{L+2}, v{L+3}, v{M}")
    e(f"v_mov_b32 v{M+1}, v{M}")
    e("s_nop 1")
    e(f"v_permlane32_swap_b32 v{M}, v{M+1}")
    e(f"v_max_f32 v{M}, v{M}, v{M+1}")
    for i in range(4):
        e(f"v_sub_f32 v{L+i}, v{L+i}, v{M}")
    for i in range(4):
        e(f"v_exp_f32 v{L+i}, v{L+i}")
    e("s_nop 0")
    e(f"v_add_f32 v{M+2}, v{L}, v{L+1}")
    e(f"v_add_f32 v{M+3}, v{L+2}, v{L+3}")
    e(f"v_add_f32 v{M+2}, v{M+2}, v{M+3}")
    e(f"v_mov_b32 v{M+3}, v{M+2}")
    e("s_nop 1")
    e(f"v_permlane32_swap_b32 v{M+2}, v{M+3}")
    e(f"v_add_f32 v{M+2}, v{M+2}, v{M+3}")
    e(f"v_rcp_f32 v{M+2}, v{M+2}")
    e("s_nop 0")
    PL = T + 14; PH = T + 18
    for i in range(4):
        e(f"v_mul_f32 v{L+i}, v{L+i}, v{M+2}")
    for i in range(4):
        e(f"v_cvt_pk_bf16_f32 v{PL+i}, v{L+i}, 0")
        e(f"v_cvt_pk_bf16_f32 v{PH+i}, 0, v{L+i}")
    for i in range(4):
        v = AV + 10 * i
        for j in range(9):
            if i == 0:
                e(f"v_dot2_f32_bf16 v{AO+2*j}, v{v+j}, v{PL+i}, 0")
                e(f"v_dot2_f32_bf16 v{AO+2*j+1}, v{v+j}, v{PH+i}, 0")
            else:
                e(f"v_dot2_f32_bf16 v{AO+2*j}, v{v+j}, v{PL+i}, v{AO+2*j}")
                e(f"v_dot2_f32_bf16 v{AO+2*j+1}, v{v+j}, v{PH+i}, v{AO+2*j+1}")
    e("s_nop 2")
    e(f"v_mov_b32 v{T}, v{AO+16}")
    e(f"v_mov_b32 v{T+1}, v{AO+17}")
    e("s_nop 2")
    for d in range(8):
        e(f"v_permlane32_swap_b32 v{AO+d}, v{AO+d+8}")
    e(f"v_permlane32_swap_b32 v{AO+16}, v{T}")
    e(f"v_permlane32_swap_b32 v{AO+17}, v{T+1}")
    for d in range(8):
        e(f"v_add_f32 v{AO+d}, v{AO+d}, v{AO+d+8}")
    e(f"v_add_f32 v{AO+16}, v{AO+16}, v{T}")
    e(f"v_add_f32 v{AO+17}, v{AO+17}, v{T+1}")
    for i in range(4):
        e(f"v_cvt_pk_bf16_f32 v{OA+i}, v{AO+2*i}, v{AO+2*i+1}")
    e(f"v_cvt_pk_bf16_f32 v{OA+4}, v{AO+16}, v{AO+17}")
    e("v_cmp_gt_u32 vcc, 32, v1")
    e(f"v_mov_b32 v{Q2+1}, 0")
    e(f"v_mov_b32 v{Q2+2}, 0")
    e(f"v_mov_b32 v{Q2+3}, 0")
    e(f"v_cndmask_b32 v{Q2}, 0, v{Q2}, vcc")
    e("s_mov_b32 s40, 0")
    e("s_mov_b32 s41, 1")
    e("s_barrier")
    e.label("attn_restart")
    MB = [36, 52, 68, 84]
    KB = [100, 108, 116, 124]
    for i in range(4):
        for j in range(1, 4):
            e(f"v_mov_b32 v{KB[i]+4+j}, 0")
    e("v_mov_b32 v10, 0xff800000")
    e(f"v_mov_b32 v{T}, v{vK1}")
    e(f"v_mov_b32 v{T+1}, v{vK2}")
    e("s_mov_b32 s42, 0")
    e.label("attn_maxloop")
    for i in range(4):
        e(f"ds_read_b128 v[{KB[i]}:{KB[i]+3}], v{T} offset:{i*TILE_B}")
        e(f"ds_read_b32 v{KB[i]+4}, v{T+1} offset:{i*TILE_B}")
    for i in range(4):
        e(f"s_waitcnt lgkmcnt({6-2*i})")
        e(f"v_mfma_f32_32x32x16_bf16 v[{MB[i]}:{MB[i]+15}], v[{KB[i]}:{KB[i]+3}], v[{Q1}:{Q1+3}], 0")
        e(f"v_mfma_f32_32x32x16_bf16 v[{MB[i]}:{MB[i]+15}], v[{KB[i]+4}:{KB[i]+7}], v[{Q2}:{Q2+3}], v[{MB[i]}:{MB[i]+15}]")
    e(f"v_add_u32 v{T}, {4*TILE_B}, v{T}")
    e(f"v_add_u32 v{T+1}, {4*TILE_B}, v{T+1}")
    e("s_nop 7")
    for i in range(4):
        if i == 3:
            e("s_nop 3")
        for j in range(8):
            e(f"v_max3_f32 v10, v{MB[i]+2*j}, v{MB[i]+2*j+1}, v10")
    e("s_add_u32 s42, s42, 1")
    e("s_cmp_lt_u32 s42, s41")
    e("s_cbranch_scc1 attn_maxloop")
    e("v_mov_b32 v11, v10")
    e("s_nop 1")
    e("v_permlane32_swap_b32 v10, v11")
    e("v_max_f32 v10, v10, v11")
    for i in range(16):
        e(f"v_sub_f32 v{C+i}, 0, v10")
    e(f"v_mov_b32 v{T}, v{vK1}")
    e(f"v_mov_b32 v{T+1}, v{vK2}")
    e(f"v_mov_b32 v{T+2}, v{vV}")
    for i in range(16):
        e(f"v_mov_b32 v{O+i}, 0")
    for i in range(8):
        e(f"v_mov_b32 v{P[1]+i}, 0")
        e(f"v_mov_b32 v{VF[1]+i}, 0")
    for b in range(2):
        for j in range(1, 4):
            e(f"v_mov_b32 v{K2F[b]+j}, 0")
    e(f"ds_read_b128 v[{KF[0]}:{KF[0]+3}], v{T}")
    e(f"ds_read_b32 v{K2F[0]}, v{T+1}")
    e(f"ds_read_b128 v[{KF[1]}:{KF[1]+3}], v{T} offset:{TILE_B}")
    e(f"ds_read_b32 v{K2F[1]}, v{T+1} offset:{TILE_B}")
    e("s_waitcnt lgkmcnt(2)")
    e(f"v_mfma_f32_32x32x16_bf16 v[{S[0]}:{S[0]+15}], v[{KF[0]}:{KF[0]+3}], v[{Q1}:{Q1+3}], v[{C}:{C+15}]")
    e(f"v_mfma_f32_32x32x16_bf16 v[{S[0]}:{S[0]+15}], v[{K2F[0]}:{K2F[0]+3}], v[{Q2}:{Q2+3}], v[{S[0]}:{S[0]+15}]")
    e("s_mov_b32 s42, 0")
    e("s_nop 7")
    e.label("attn_loop")
    for tt in range(8):
        cur = tt & 1; nxt = cur ^ 1
        e("s_waitcnt lgkmcnt(0)")
        e(f"ds_read_b128 v[{KF[cur]}:{KF[cur]+3}], v{T} offset:{(tt+2)*TILE_B}")
        e(f"ds_read_b32 v{K2F[cur]}, v{T+1} offset:{(tt+2)*TILE_B}")
        e(f"ds_read_b128 v[{VF[cur]}:{VF[cur]+3}], v{T+2} offset:{tt*TILE_B}")
        e(f"ds_read_b128 v[{VF[cur]+4}:{VF[cur]+7}], v{T+2} offset:{tt*TILE_B+608}")
        m = [f"v_mfma_f32_32x32x16_bf16 v[{S[nxt]}:{S[nxt]+15}], v[{KF[nxt]}:{KF[nxt]+3}], v[{Q1}:{Q1+3}], v[{C}:{C+15}]",
             f"v_mfma_f32_32x32x16_bf16 v[{O}:{O+15}], v[{VF[nxt]}:{VF[nxt]+3}], v[{P[nxt]}:{P[nxt]+3}], v[{O}:{O+15}]",
             f"v_mfma_f32_32x32x16_bf16 v[{S[nxt]}:{S[nxt]+15}], v[{K2F[nxt]}:{K2F[nxt]+3}], v[{Q2}:{Q2+3}], v[{S[nxt]}:{S[nxt]+15}]",
             f"v_mfma_f32_32x32x16_bf16 v[{O}:{O+15}], v[{VF[nxt]+4}:{VF[nxt]+7}], v[{P[nxt]+4}:{P[nxt]+7}], v[{O}:{O+15}]"]
        for g in range(4):
            e(m[g])
            for i in range(4):
                e(f"v_exp_f32 v{S[cur]+4*g+i}, v{S[cur]+4*g+i}")
            for i in range(2):
                j = 2 * g + i
                e(f"v_cvt_pk_bf16_f32 v{P[cur]+j}, v{S[cur]+2*j}, v{S[cur]+2*j+1}")
    for i in range(3):
        e(f"v_add_u32 v{T+i}, {8*TILE_B}, v{T+i}")
    e("s_add_u32 s42, s42, 1")
    e("s_cmp_ge_u32 s42, 8")
    e("s_cbranch_scc1 attn_done")
    e("s_cmp_gt_u32 s42, 2")
    e("s_cbranch_scc1 attn_loop")
    e("s_cmp_lg_u32 s40, 0")
    e("s_cbranch_scc1 attn_loop")
    e("s_cmp_eq_u32 s42, 1")
    e("s_cbranch_scc0 attn_sync2")
    e("s_waitcnt vmcnt(13)")
    e("s_barrier")
    e("s_branch attn_loop")
    e.label("attn_sync2")
    e("s_waitcnt vmcnt(0)")
    e("s_barrier")
    e("s_branch attn_loop")
    e.label("attn_done")
    e("s_waitcnt lgkmcnt(0)")
    e(f"v_mfma_f32_32x32x16_bf16 v[{O}:{O+15}], v[{VF[1]}:{VF[1]+3}], v[{P[1]}:{P[1]+3}], v[{O}:{O+15}]")
    e(f"v_mfma_f32_32x32x16_bf16 v[{O}:{O+15}], v[{VF[1]+4}:{VF[1]+7}], v[{P[1]+4}:{P[1]+7}], v[{O}:{O+15}]")
    e("s_nop 15")
    e("s_nop 3")
    e("s_cmp_lg_u32 s40, 0")
    e("s_cbranch_scc1 attn_fin")
    e("v_mov_b32 v10, 0x71800000")
    e(f"v_cmp_nlt_f32 vcc, v{O+10}, v10")
    e("s_mov_b64 s[44:45], vcc")
    e("v_mov_b32 v10, 0x207")
    for i in range(10):
        e(f"v_cmp_class_f32 vcc, v{O+i}, v10")
        e("s_or_b64 s[44:45], s[44:45], vcc")
    e("s_cmp_eq_u64 s[44:45], 0")
    e("s_cbranch_scc1 attn_fin")
    e("s_mov_b32 s40, 1")
    e("s_mov_b32 s41, 16")
    e("s_branch attn_restart")
    e.label("attn_fin")
    e(f"v_rcp_f32 v10, v{O+10}")
    e("s_nop 0")
    for i in range(10):
        e(f"v_mul_f32 v{O+i}, v{O+i}, v10")
    for i in range(5):
        e(f"v_cvt_pk_bf16_f32 v{S[0]+i}, v{O+2*i}, v{O+2*i+1}")
    e("v_lshlrev_b32 v10, 3, v3")
    e("v_add_u32 v10, v8, v10")
    e(f"buffer_store_dwordx2 v[{S[0]}:{S[0]+1}], v10, s[24:27], s36 offen")
    e(f"buffer_store_dwordx2 v[{S[0]+2}:{S[0]+3}], v10, s[24:27], s36 offen offset:16")
    e(f"buffer_store_dwordx4 v[{OA}:{OA+3}], v9, s[20:23], s36 offen")
    e("v_cmp_gt_u32 vcc, 32, v1")
    e("s_and_saveexec_b64 s[44:45], vcc")
    e(f"buffer_store_dword v{S[0]+4}, v8, s[24:27], s36 offen offset:32")
    e(f"buffer_store_dword v{OA+4}, v8, s[20:23], s36 offen offset:32")
    e.label("attn_exit")
    e("s_endpgm")
    return 157696

def main():
    e = E()
    l1 = gen_proj(e)
    l2 = gen_attn(e)
    l3 = gen_out(e)
    ref = open(f"cdna_kernels/{NAME}.s.ref").read().splitlines()
    head = [l for l in ref if l.startswith(";") and "@launch" not in l and "Override" not in l and "grid=ceil" not in l]
    out = "\n".join(head) + "\n"
    out += f"; @launch kernel=proj_kernel grid=(256,1,1) block=(256,1,1) lds={l1}\n"
    out += f"; @launch kernel=attn_kernel grid=(256,1,1) block=(512,1,1) lds={l2}\n"
    out += f"; @launch kernel=outp_kernel grid=(192,1,1) block=(256,1,1) lds={l3}\n"
    out += '.amdgcn_target "amdgcn-amd-amdhsa--gfx950"\n.text\n'
    out += e.text()
    out += '.section .rodata,"a"\n.p2align 6\n'
    out += kd("proj_kernel", 144)
    out += ".p2align 6\n" + kd("attn_kernel", 168)
    out += ".p2align 6\n" + kd("outp_kernel", 112)
    path = sys.argv[1] if len(sys.argv) > 1 else f"cdna_kernels/{NAME}.s"
    open(path, "w").write(out)

main()
```

```python
import struct, sys, math

NAME = "concat_heads__sliding_local_dilated__grouped_kv_mqa__prompt"

WS_QKVA = 0x000000
WS_QB   = 0x700000
WS_KV   = 0xA00000
WS_OA   = 0xB00000
WS_OB   = 0xE00000
TILE_B  = 2368
KVIMG_B = 64 * TILE_B

def f32bits(x):
    return struct.unpack("<I", struct.pack("<f", x))[0]

CSCALE = (18 ** -0.5) * math.log2(math.e)

INSTR = False
EXP = set()
PFD = 5
PLOOK = 2
WS_DBG = 0x1200000
class E:
    def __init__(self):
        self.l = []
        self.nts = 0
    def ts_reset(self):
        self.nts = 0
        if INSTR: self("s_memrealtime s[100:101]")
    def ts(self):
        if not INSTR: return
        k = self.nts; self.nts += 1
        self(f"s_memtime s[{64+2*k}:{65+2*k}]")
    def ts_dump(self, wsreg, waves_per_wg, kid):
        if not INSTR: return
        n = self.nts
        self(f"s_memrealtime s[96:97]")
        self("s_waitcnt lgkmcnt(0)")
        self("s_mov_b64 exec, -1")
        self(f"s_add_u32 s92, s{wsreg}, {WS_DBG + kid*0x100000}")
        self(f"s_addc_u32 s93, s{wsreg+1}, 0")
        self("s_mov_b32 s94, 0x100000")
        self("s_mov_b32 s95, 0x00020000")
        self(f"s_mul_i32 s98, s2, {waves_per_wg}")
        self("s_add_u32 s98, s98, s32")
        self("s_lshl_b32 s98, s98, 6")
        self("v_mov_b32 v1, 0")
        for k in range(n):
            self(f"v_mov_b32 v2, s{64+2*k}")
            self(f"buffer_store_dword v2, v1, s[92:95], s98 offen offset:{4*k}")
        self("v_mov_b32 v2, s96")
        self(f"buffer_store_dword v2, v1, s[92:95], s98 offen offset:60")
        self("v_mov_b32 v2, s100")
        self(f"buffer_store_dword v2, v1, s[92:95], s98 offen offset:56")
    def __call__(self, s):
        self.l.append("    " + s)
    def label(self, s):
        self.l.append(s + ":")
    def c(self, s):
        self.l.append("    ; " + s)
    def text(self):
        return "\n".join(self.l) + "\n"

def srd(e, d, lo, hi, nbytes):
    e(f"s_mov_b32 s{d}, s{lo}")
    e(f"s_mov_b32 s{d+1}, s{hi}")
    e(f"s_mov_b32 s{d+2}, {nbytes}")
    e(f"s_mov_b32 s{d+3}, 0x00020000")

def srd_off(e, d, lo, hi, off, nbytes):
    e(f"s_add_u32 s{d}, s{lo}, {off}")
    e(f"s_addc_u32 s{d+1}, s{hi}, 0")
    e(f"s_mov_b32 s{d+2}, {nbytes}")
    e(f"s_mov_b32 s{d+3}, 0x00020000")

def gen_gemm(e, pfx, NT, NSLOT, special=False):
    P = PLOOK
    XB = 16384
    SLOT = XB + NT * 4096
    NCH = 9
    if NT == 5:
        XS_ = 4; XRS = 32; WRS = 8; WL = 3 if not special else 2
    else:
        XS_ = 6; XRS = 24; WRS = 16; WL = 2
    NQ = 3 if special else NT
    D = 4 + NQ + (8 if special else 0)
    vX = [2, 3, 4, 5]; vW = 6; vKV = 7
    vXr = [8, 9, 10, 11]; vWr = 12
    F = [16, 16 + 4 + 4 * NT]
    ACC = 64
    e.c(f"---- gemm body {pfx} NT={NT} NSLOT={NSLOT} special={special}")
    e.ts_reset()
    e.ts()
    e("v_and_b32 v1, 63, v0")
    e("v_lshrrev_b32 v13, 6, v0")
    e("s_nop 0")
    e("v_readfirstlane_b32 s32, v13")
    e("s_nop 3")
    e("s_cmp_lt_u32 s32, 4")
    e(f"s_cbranch_scc1 {pfx}_compute")
    e("s_sub_u32 s51, s32, 4")
    e("v_lshrrev_b32 v13, 3, v1")
    e("v_lshrrev_b32 v14, 4, v1")
    e("v_and_b32 v15, 7, v1")
    e("s_lshl_b32 s40, s51, 5")
    e("s_add_u32 s40, s40, s36")
    e("s_movk_i32 s41, 1152")
    for j in range(4):
        e(f"v_add_u32 v16, {4*j}, v14")
        e("v_and_b32 v16, 7, v16")
        e("v_xor_b32 v16, v16, v15")
        e("v_lshlrev_b32 v16, 4, v16")
        e(f"v_add_u32 v17, {8*j}, v13")
        e("v_add_u32 v17, s40, v17")
        e("v_mul_lo_u32 v17, v17, s41")
        e(f"v_add_u32 v{vX[j]}, v16, v17")
    e("v_lshrrev_b32 v16, 2, v1")
    e("s_lshl_b32 s40, s51, 4")
    e("v_add_u32 v16, s40, v16")
    e("v_mul_lo_u32 v16, v16, s33")
    e("v_and_b32 v17, 3, v1")
    e("v_lshlrev_b32 v17, 4, v17")
    e("v_add_u32 v16, v16, v17")
    e(f"v_add_u32 v{vW}, s37, v16")
    if special:
        e("v_add_u32 v16, s40, v14")
        e("v_mul_u32_u24 v16, 36, v16")
        e("v_and_b32 v17, 15, v1")
        e("v_min_u32 v17, 8, v17")
        e("v_lshlrev_b32 v17, 2, v17")
        e(f"v_add_u32 v{vKV}, v16, v17")
    e("s_lshl_b32 s48, s33, 6")
    e("s_mov_b32 s46, s50")
    e("s_lshl_b32 s44, s51, 12")
    e("s_lshl_b32 s45, s51, 10")
    e(f"s_add_u32 s45, s45, {XB}")

    def dma_chunk(n):
        sb = (n % NSLOT) * SLOT
        e("s_lshl_b32 s41, s46, 7")
        e("s_mul_i32 s42, s46, s48")
        if special:
            e("s_mul_i32 s43, s46, 2304")
        e("s_add_u32 s46, s46, 1")
        e(f"s_cmp_eq_u32 s46, {NCH}")
        e("s_cselect_b32 s46, 0, s46")
        if "nodma" in EXP: return
        for j in range(4):
            e(f"s_add_u32 m0, s44, {sb + j*1024}")
            e("s_nop 0")
            e(f"buffer_load_dwordx4 v{vX[j]}, s[8:11], s41 offen lds")
        for t in range(NQ):
            e(f"s_add_u32 m0, s45, {sb + t*4096 - 64*t}")
            e("s_nop 0")
            e(f"buffer_load_dwordx4 v{vW}, s[12:15], s42 offen offset:{64*t} lds")
        if special:
            for (t, sr) in ((3, 20), (4, 24)):
                for q in range(4):
                    e(f"s_add_u32 m0, s45, {sb + t*4096 + q*256 - 144*q}")
                    e("s_nop 0")
                    e(f"buffer_load_dword v{vKV}, s[{sr}:{sr+3}], s43 offen offset:{144*q} lds")
    for n in range(P):
        dma_chunk(n)
    for c in range(NCH + 1):
        issued = min(c - 1 + P, NCH - 1)
        allowed = max(issued - c, 0)
        e(f"s_waitcnt vmcnt({allowed*D})")
        e("s_barrier")
        if c + P <= NCH - 1:
            dma_chunk(c + P)
    e("s_endpgm")
    e.label(f"{pfx}_compute")
    PF = PFD
    e("v_bfe_u32 v13, v1, 2, 3")
    e(f"s_mul_i32 s40, s6, {XRS}")
    e("s_add_u32 s40, s40, s36")
    e(f"s_mul_i32 s41, s32, {XRS//4}")
    e("s_add_u32 s40, s40, s41")
    e("v_add_u32 v14, s40, v13")
    e("v_mul_u32_u24 v3, 1152, v14")
    e("v_bfe_u32 v13, v1, 4, 2")
    e(f"v_min_u32 v13, {WRS//4-1}, v13")
    e(f"s_mul_i32 s40, s3, {WRS}")
    e(f"s_mul_i32 s41, s32, {WRS//4}")
    e("s_add_u32 s40, s40, s41")
    e("v_add_u32 v13, s40, v13")
    e("v_mul_lo_u32 v13, v13, s33")
    e("v_bfe_u32 v14, v1, 2, 2")
    e(f"v_min_u32 v14, {WL-1}, v14")
    e("v_lshlrev_b32 v14, 7, v14")
    e("v_add_u32 v13, v13, v14")
    e("v_add_u32 v4, s37, v13")
    e("s_lshl_b32 s48, s33, 6")
    e(f"s_movk_i32 s54, {128*P}")
    e(f"s_mul_i32 s55, s48, {P}")
    def pf():
        if "pf" not in EXP: return
        e("buffer_load_dword v2, v3, s[8:11], s54 offen")
        e("buffer_load_dword v2, v4, s[12:15], s55 offen")
        e("s_add_u32 s54, s54, 128")
        e("s_add_u32 s55, s55, s48")
    for _ in range(P, PF):
        pf()
    e("v_and_b32 v13, 31, v1")
    e("v_lshrrev_b32 v14, 5, v1")
    e("v_lshrrev_b32 v15, 1, v13")
    e("v_and_b32 v15, 7, v15")
    e("v_lshlrev_b32 v16, 7, v13")
    e("s_lshl_b32 s40, s32, 12")
    e("v_add_u32 v16, s40, v16")
    e("v_lshlrev_b32 v17, 2, v14")
    for j in range(4):
        e(f"v_add_u32 v18, {j}, v17")
        e("v_xor_b32 v18, v18, v15")
        e("v_lshlrev_b32 v18, 4, v18")
        e(f"v_add_u32 v{vXr[j]}, v16, v18")
    e("v_lshlrev_b32 v16, 11, v14")
    e("v_bfe_u32 v17, v1, 2, 2")
    e("v_lshlrev_b32 v17, 6, v17")
    e("v_add_u32 v16, v16, v17")
    e("v_bfe_u32 v17, v1, 4, 1")
    e("v_lshlrev_b32 v17, 5, v17")
    e("v_add_u32 v16, v16, v17")
    e("v_and_b32 v17, 3, v1")
    e("v_lshlrev_b32 v17, 3, v17")
    e("v_add_u32 v16, v16, v17")
    e(f"v_add_u32 v{vWr}, {XB}, v16")
    for i in range(NT * 16):
        e(f"v_mov_b32 v{ACC+i}, 0")
    e(f"s_mov_b32 s7, {SLOT}")

    def read_list(j, fb):
        b = F[fb]
        l = [f"ds_read_b128 v[{b}:{b+3}], v{vXr[j]}"]
        for t in range(NT):
            r = b + 4 + 4 * t
            l.append(f"ds_read_b64_tr_b16 v[{r}:{r+1}], v{vWr} offset:{t*4096 + j*512}")
            l.append(f"ds_read_b64_tr_b16 v[{r+2}:{r+3}], v{vWr} offset:{t*4096 + j*512 + 256}")
        if "noread" in EXP: l = []
        return l
    def mfma(fb, t):
        if "nomfma" in EXP: return
        b = F[fb]
        r = b + 4 + 4 * t
        a = ACC + 16 * t
        if special and t == 4:
            e(f"v_mfma_f32_32x32x16_bf16 v[{a}:{a+15}], v[{b}:{b+3}], v[{r}:{r+3}], v[{a}:{a+15}]")
        else:
            e(f"v_mfma_f32_32x32x16_bf16 v[{a}:{a+15}], v[{r}:{r+3}], v[{b}:{b+3}], v[{a}:{a+15}]")
    NR = 1 + 2 * NT
    def step(fb, nxt_reads, first_after=0):
        per = {}
        k = 0
        slots = list(range(first_after, NT - 1)) or [first_after]
        q = list(nxt_reads)
        chunk = -(-len(q) // min(len(slots), 3))
        issued_new = 0
        for t in range(NT):
            if first_after == 0:
                allowed = NR - (2 * t + 3) + issued_new
                e(f"s_waitcnt lgkmcnt({min(allowed, 15)})")
            mfma(fb, t)
            if t == 0 and first_after == 1:
                e("s_barrier")
            if t >= first_after - (1 if first_after == 1 else 0) and q:
                for _ in range(min(chunk, len(q))):
                    e(q.pop(0)); issued_new += 1
        assert not q
    e("s_mov_b32 s40, 0")
    e("s_mov_b32 s49, 0")
    e.ts()
    e("s_barrier")
    e.ts()
    for r in read_list(0, 0): e(r)
    e.label(f"{pfx}_loop")
    pf()
    step(0, read_list(1, 1))
    step(1, read_list(2, 0))
    step(0, read_list(3, 1))
    e("s_add_u32 s49, s49, 1")
    e(f"s_cmp_eq_u32 s49, {NSLOT}")
    e(f"s_cselect_b32 s47, {-(NSLOT-1)*SLOT}, s7")
    e("s_cselect_b32 s49, 0, s49")
    for j in range(4):
        e(f"v_add_u32 v{vXr[j]}, s47, v{vXr[j]}")
    e(f"v_add_u32 v{vWr}, s47, v{vWr}")
    e("s_add_u32 s40, s40, 1")
    e(f"s_cmp_lt_u32 s40, {NCH}")
    e("s_waitcnt lgkmcnt(0)")
    step(1, read_list(0, 0), first_after=1)
    e(f"s_cbranch_scc1 {pfx}_loop")
    e.ts()
    e("s_waitcnt lgkmcnt(0)")
    e("s_nop 15")
    e("s_nop 3")
    NTQ = 3 if special else NT
    RS = 80
    TR = 32 * RS
    e("v_and_b32 v13, 31, v1")
    e("v_lshrrev_b32 v14, 5, v1")
    e(f"v_mul_u32_u24 v15, {RS}, v13")
    e("v_lshlrev_b32 v16, 3, v14")
    e("v_add_u32 v15, v15, v16")
    e(f"s_mul_i32 s40, s32, {NT*TR}")
    e("v_add_u32 v15, s40, v15")
    e("v_lshrrev_b32 v16, 2, v1")
    e(f"v_mul_u32_u24 v17, {RS}, v16")
    e("v_and_b32 v18, 3, v1")
    e("v_lshlrev_b32 v18, 4, v18")
    e("v_add_u32 v17, v17, v18")
    e("v_add_u32 v17, s40, v17")
    e("s_lshl_b32 s41, s32, 5")
    e("s_add_u32 s41, s41, s36")
    e("v_add_u32 v16, s41, v16")
    e("v_mul_lo_u32 v16, v16, s34")
    e("v_add_u32 v16, v16, v18")
    e("v_add_u32 v16, s38, v16")
    e("s_lshl_b32 s42, s34, 4")
    for t in range(NTQ):
        a = ACC + 16 * t
        for i in range(8):
            e(f"v_cvt_pk_bf16_f32 v{20+i}, v{a+2*i}, v{a+2*i+1}")
        for g in range(4):
            e(f"ds_write_b64 v15, v[{20+2*g}:{21+2*g}] offset:{t*TR + g*16}")
    e("s_waitcnt lgkmcnt(0)")
    for t in range(NTQ):
        e(f"ds_read_b128 v[{20+8*t}:{23+8*t}], v17 offset:{t*TR}")
        e(f"ds_read_b128 v[{24+8*t}:{27+8*t}], v17 offset:{t*TR + 16*RS}")
    for t in range(NTQ):
        if t == NTQ - 1 and not special:
            e(f"s_cmp_lt_u32 s39, {NTQ}")
            e(f"s_cbranch_scc1 {pfx}_skiplast")
        e(f"s_waitcnt lgkmcnt({2*(NTQ-1-t)})")
        e(f"buffer_store_dwordx4 v[{20+8*t}:{23+8*t}], v16, s[16:19], 0 offen offset:{64*t}")
        e(f"buffer_store_dwordx4 v[{24+8*t}:{27+8*t}], v16, s[16:19], s42 offen offset:{64*t}")
    if not special:
        e.label(f"{pfx}_skiplast")
    if special:
        e("s_lshr_b32 s43, s41, 5")
        e(f"s_mul_i32 s43, s43, {TILE_B}")
        a = ACC + 48
        for i in range(10):
            e(f"v_mul_f32 v{a+i}, s35, v{a+i}")
        for i in range(5):
            e(f"v_cvt_pk_bf16_f32 v{48+i}, v{a+2*i}, v{a+2*i+1}")
        e("v_lshlrev_b32 v56, 4, v13")
        e("v_lshlrev_b32 v57, 3, v14")
        e("v_add_u32 v56, v56, v57")
        e("buffer_store_dwordx2 v[48:49], v56, s[28:31], s43 offen")
        e("buffer_store_dwordx2 v[50:51], v56, s[28:31], s43 offen offset:512")
        e("v_lshlrev_b32 v57, 2, v13")
        e("v_cmp_gt_u32 vcc, 32, v1")
        e("s_and_saveexec_b64 s[52:53], vcc")
        e("buffer_store_dword v52, v57, s[28:31], s43 offen offset:1024")
        e("s_mov_b64 exec, s[52:53]")
        a = ACC + 64
        for i in range(8):
            e(f"v_cvt_pk_bf16_f32 v{40+i}, v{a+2*i}, v{a+2*i+1}")
        e("v_mov_b32 v58, 0x3f803f80")
        e("v_cmp_eq_u32 vcc, 18, v13")
        e("s_nop 1")
        for i in range(8):
            e(f"v_cndmask_b32 v{40+i}, v{40+i}, v58, vcc")
        e("v_lshlrev_b32 v56, 4, v13")
        e("v_mul_u32_u24 v57, 304, v14")
        e("v_add_u32 v56, v56, v57")
        e("v_cmp_gt_u32 vcc, 19, v13")
        e("s_and_saveexec_b64 s[52:53], vcc")
        e("buffer_store_dwordx4 v[40:43], v56, s[28:31], s43 offen offset:1152")
        e("buffer_store_dwordx4 v[44:47], v56, s[28:31], s43 offen offset:1760")
        e("s_mov_b64 exec, s[52:53]")
    e.ts()
    e("s_waitcnt vmcnt(0)") if INSTR else None
    e.ts()
    e.ts_dump(4, 8, 0 if NT == 5 else 2)
    e("s_endpgm")
    return NSLOT * SLOT

def kd(name, vgpr, sgpr=64):
    if INSTR: sgpr = 102
    acc = (vgpr + 3) // 4 * 4
    return f""".amdhsa_kernel {name}
  .amdhsa_next_free_vgpr {vgpr}
  .amdhsa_next_free_sgpr {sgpr}
  .amdhsa_accum_offset {acc}
  .amdhsa_group_segment_fixed_size 0
  .amdhsa_kernarg_size 88
  .amdhsa_user_sgpr_count 2
  .amdhsa_user_sgpr_kernarg_segment_ptr 1
  .amdhsa_system_sgpr_workgroup_id_x 1
.end_amdhsa_kernel
"""

def header(e, name):
    e.l.append(f".globl {name}")
    e.l.append(".p2align 8")
    e.l.append(f".type {name},@function")
    e.label(name)

def stagger(e, a, b):
    if "nostag" in EXP:
        e("s_mov_b32 s50, 0"); return
    e(f"s_lshl_b32 s50, {b}, 1")
    e(f"s_add_u32 s50, s50, {a}")
    e("s_cmp_ge_u32 s50, 9")
    e("s_cselect_b32 s51, 9, 0")
    e("s_sub_u32 s50, s50, s51")

def gen_proj(e):
    header(e, "proj_kernel")
    e("s_cmp_ge_u32 s2, 256")
    e("s_cbranch_scc1 proj_exit")
    e("s_load_dwordx2 s[52:53], s[0:1], 0")
    e("s_load_dwordx2 s[54:55], s[0:1], 8")
    e("s_load_dwordx2 s[56:57], s[0:1], 24")
    e("s_load_dwordx2 s[58:59], s[0:1], 32")
    e("s_load_dwordx2 s[60:61], s[0:1], 40")
    e("s_load_dwordx2 s[62:63], s[0:1], 48")
    e("s_load_dwordx2 s[4:5], s[0:1], 80")
    e("s_and_b32 s6, s2, 7")
    e("s_lshr_b32 s7, s2, 3")
    e("s_and_b32 s3, s7, 7")
    e("s_lshr_b32 s7, s7, 3")
    e("s_waitcnt lgkmcnt(0)")
    e("s_cmp_lt_u32 s6, 2")
    e("s_cbranch_scc1 proj_B")
    e("s_sub_u32 s6, s6, 2")
    e("s_and_b32 s40, s6, 1")
    e("s_lshl_b32 s40, s40, 3")
    e("s_add_u32 s40, s40, s3")
    e("s_lshr_b32 s41, s6, 1")
    e("s_lshl_b32 s41, s41, 2")
    e("s_add_u32 s41, s41, s7")
    e("s_cmp_ge_u32 s41, 11")
    e("s_cbranch_scc1 proj_exit")
    srd(e, 8, 52, 53, 2048 * 1152)
    srd(e, 12, 54, 55, 576 * 3456)
    srd_off(e, 16, 4, 5, WS_QKVA, 2048 * 3456)
    e("s_movk_i32 s33, 3456")
    e("s_movk_i32 s34, 3456")
    e("s_mov_b32 s35, 1.0")
    e("s_lshl_b32 s36, s40, 7")
    e("s_mul_i32 s37, s41, 320")
    e("s_mov_b32 s38, s37")
    e("s_cmp_eq_u32 s41, 10")
    e("s_cselect_b32 s39, 4, 5")
    stagger(e, "s3", "s7")
    e("s_mov_b32 s6, s7")
    e("s_branch proj_generic")
    e.label("proj_B")
    e("s_lshl_b32 s40, s6, 3")
    e("s_add_u32 s40, s40, s3")
    srd(e, 8, 56, 57, 2048 * 1152)
    srd(e, 12, 58, 59, 576 * 1152)
    srd_off(e, 16, 4, 5, WS_QB, 2048 * 1152)
    e("s_movk_i32 s33, 1152")
    e("s_movk_i32 s34, 1152")
    e(f"s_mov_b32 s35, {f32bits(CSCALE):#x}")
    e("s_lshl_b32 s36, s40, 7")
    e("s_mul_i32 s37, s7, 320")
    e("s_mov_b32 s38, s37")
    e("s_mov_b32 s39, 5")
    stagger(e, "s3", "s7")
    e("s_mov_b32 s6, s7")
    e("s_cmp_eq_u32 s7, 3")
    e("s_cbranch_scc1 proj_special")
    e.label("proj_generic")
    lds = gen_gemm(e, "pg", 5, 4)
    e.label("proj_special")
    srd(e, 20, 60, 61, 576 * 36)
    srd(e, 24, 62, 63, 576 * 36)
    srd_off(e, 28, 4, 5, WS_KV, KVIMG_B)
    gen_gemm(e, "ps", 5, 4, special=True)
    e.label("proj_exit")
    e("s_endpgm")
    return lds

def gen_out(e):
    header(e, "outp_kernel")
    e("s_cmp_ge_u32 s2, 192")
    e("s_cbranch_scc1 outp_exit")
    e("s_load_dwordx2 s[52:53], s[0:1], 16")
    e("s_load_dwordx2 s[54:55], s[0:1], 56")
    e("s_load_dwordx2 s[56:57], s[0:1], 64")
    e("s_load_dwordx2 s[4:5], s[0:1], 80")
    e("s_and_b32 s6, s2, 7")
    e("s_lshr_b32 s7, s2, 3")
    e("s_and_b32 s3, s7, 1")
    e("s_bfe_u32 s41, s7, 0x10001")
    e("s_lshl_b32 s40, s6, 1")
    e("s_add_u32 s40, s40, s41")
    e("s_lshr_b32 s41, s7, 2")
    e("s_waitcnt lgkmcnt(0)")
    e(f"s_mov_b32 s42, {WS_OB}")
    e("s_cmp_eq_u32 s3, 0")
    e(f"s_cselect_b32 s42, {WS_OA}, s42")
    e("s_cselect_b32 s58, s52, s54")
    e("s_cselect_b32 s59, s53, s55")
    e("s_add_u32 s8, s4, s42")
    e("s_addc_u32 s9, s5, 0")
    e(f"s_mov_b32 s10, {2048*1152}")
    e("s_mov_b32 s11, 0x00020000")
    srd(e, 12, 58, 59, 576 * 1152)
    srd(e, 16, 56, 57, 2048 * 2304)
    e("s_movk_i32 s33, 1152")
    e("s_movk_i32 s34, 2304")
    e("s_mov_b32 s35, 1.0")
    e("s_lshl_b32 s36, s40, 7")
    e("s_mul_i32 s37, s41, 192")
    e("s_mul_i32 s38, s3, 1152")
    e("s_add_u32 s38, s38, s37")
    e("s_mov_b32 s39, 3")
    e("s_and_b32 s40, s40, 1")
    stagger(e, "s41", "s40")
    e("s_mov_b32 s6, s41")
    e("s_mov_b32 s3, s40")
    lds = gen_gemm(e, "og", 3, 5)
    e.label("outp_exit")
    e("s_endpgm")
    return lds

def gen_attn(e):
    header(e, "attn_kernel")
    Q1 = 12; Q2 = 16; C = 20; S = [36, 52]; P = [68, 76]; O = 84
    KF = [100, 104]; K2F = [108, 112]; VF = [116, 124]
    T = 132
    AQ = 140; AK = 150; AV = 190
    vK1 = 4; vK2 = 5; vV = 6
    e("s_cmp_ge_u32 s2, 256")
    e("s_cbranch_scc1 attn_exit")
    e.ts_reset()
    e.ts()
    e("s_load_dwordx2 s[4:5], s[0:1], 80")
    e("s_load_dwordx2 s[46:47], s[0:1], 16")
    e("s_load_dwordx2 s[48:49], s[0:1], 56")
    e("v_and_b32 v1, 63, v0")
    e("v_lshrrev_b32 v7, 6, v0")
    e("v_and_b32 v2, 31, v1")
    e("v_readfirstlane_b32 s32, v7")
    e("v_lshrrev_b32 v3, 5, v1")
    e("s_and_b32 s33, s2, 7")
    e("s_lshl_b32 s33, s33, 8")
    e("s_lshr_b32 s34, s2, 3")
    e("s_lshl_b32 s35, s34, 3")
    e("s_add_u32 s33, s33, s35")
    e("s_add_u32 s33, s33, s32")
    e("v_lshlrev_b32 v7, 4, v1")
    e("s_lshl_b32 s34, s32, 10")
    e("s_waitcnt lgkmcnt(0)")
    srd_off(e, 16, 4, 5, WS_KV, KVIMG_B)
    def dma(r):
        return [f"s_add_u32 m0, s34, {r*8192}", f"s_add_u32 s35, s34, {r*8192}",
                "buffer_load_dwordx4 v7, s[16:19], s35 offen lds"]
    for r in range(3):
        for x in dma(r): e(x)
    srd_off(e, 12, 4, 5, WS_QB, 2048 * 1152)
    e("v_mul_u32_u24 v8, 36, v2")
    e("v_lshlrev_b32 v9, 4, v3")
    e("v_add_u32 v9, v8, v9")
    e("s_mul_i32 s36, s33, 1152")
    e(f"buffer_load_dwordx4 v[{Q1}:{Q1+3}], v9, s[12:15], s36 offen")
    e(f"buffer_load_dword v{Q2}, v8, s[12:15], s36 offen offset:32")
    srd_off(e, 8, 4, 5, WS_QKVA, 2048 * 3456)
    srd_off(e, 20, 4, 5, WS_OA, 2048 * 1152)
    srd_off(e, 24, 4, 5, WS_OB, 2048 * 1152)
    srd(e, 52, 46, 47, 576 * 1152)
    srd(e, 56, 48, 49, 576 * 1152)
    e(f"v_lshlrev_b32 v{vK1}, 4, v1")
    e(f"v_lshlrev_b32 v{vK2}, 2, v2")
    e(f"v_add_u32 v{vK2}, 1024, v{vK2}")
    e(f"v_min_u32 v{vV}, 18, v2")
    e(f"v_lshlrev_b32 v{vV}, 4, v{vV}")
    e("v_mul_u32_u24 v11, 304, v3")
    e(f"v_add_u32 v{vV}, v{vV}, v11")
    e(f"v_add_u32 v{vV}, 1152, v{vV}")
    e("s_mul_i32 s37, s33, 3456")
    e("v_lshlrev_b32 v10, 3, v3")
    e("v_sub_u32 v10, s33, v10")
    e("s_movk_i32 s38, 3456")
    for i in range(4):
        e(f"v_subrev_u32 v{T+4+i}, {2*i}, v10")
        e(f"v_max_i32 v11, 0, v{T+4+i}")
        e("v_mul_lo_u32 v11, v11, s38")
        e(f"v_add_u32 v{230+i}, v11, v8")
    e("s_lshr_b32 s39, s2, 3")
    e("s_lshl_b32 s39, s39, 3")
    e("s_add_u32 s39, s39, s32")
    e("s_mul_i32 s39, s39, 2688")
    e("v_min_u32 v234, 20, v2")
    e("v_lshlrev_b32 v234, 7, v234")
    extra = []
    for r in range(3, 19):
        extra.append(dma(r))
    extra.append([f"buffer_load_dwordx4 v[{AQ}:{AQ+3}], v8, s[8:11], s37 offen"])
    extra.append([f"buffer_load_dwordx4 v[{AQ+4}:{AQ+7}], v8, s[8:11], s37 offen offset:16"])
    extra.append([f"buffer_load_dword v{AQ+8}, v8, s[8:11], s37 offen offset:32"])
    for i in range(4):
        k = AK + 10 * i; v = AV + 10 * i
        extra.append([f"buffer_load_dwordx4 v[{k}:{k+3}], v{230+i}, s[8:11], 0 offen offset:1152"])
        extra.append([f"buffer_load_dwordx4 v[{k+4}:{k+7}], v{230+i}, s[8:11], 0 offen offset:1168"])
        extra.append([f"buffer_load_dword v{k+8}, v{230+i}, s[8:11], 0 offen offset:1184"])
        extra.append([f"buffer_load_dwordx4 v[{v}:{v+3}], v{230+i}, s[8:11], 0 offen offset:2304"])
        extra.append([f"buffer_load_dwordx4 v[{v+4}:{v+7}], v{230+i}, s[8:11], 0 offen offset:2320"])
        extra.append([f"buffer_load_dword v{v+8}, v{230+i}, s[8:11], 0 offen offset:2336"])
    extra.append(["buffer_load_dword v235, v234, s[52:55], s39 offen"])
    extra.append(["buffer_load_dword v235, v234, s[56:59], s39 offen"])
    NEXTRA_AFTER_DMA = len(extra) - 16
    e("v_cmp_gt_u32 vcc, 32, v1")
    e(f"v_mov_b32 v{Q2+1}, 0")
    e(f"v_mov_b32 v{Q2+2}, 0")
    e(f"v_mov_b32 v{Q2+3}, 0")
    e("s_mov_b32 s40, 0")
    e("s_mov_b32 s41, 1")
    e.ts()
    e("s_waitcnt vmcnt(0)")
    e(f"v_cndmask_b32 v{Q2}, 0, v{Q2}, vcc")
    e.ts()
    e("s_barrier")
    e.ts()
    e.label("attn_restart")
    MB = [36, 52, 68, 84]
    KB = [100, 108, 116, 124]
    e(f"v_mov_b32 v{T}, v{vK1}")
    e(f"v_mov_b32 v{T+1}, v{vK2}")
    e("s_mov_b32 s42, 0")
    e("v_mov_b32 v10, 0xff800000")
    e.label("attn_maxloop")
    for i in range(4):
        e(f"ds_read_b128 v[{KB[i]}:{KB[i]+3}], v{T} offset:{i*TILE_B}")
        e(f"ds_read_b32 v{KB[i]+4}, v{T+1} offset:{i*TILE_B}")
    for i in range(4):
        for j in range(1, 4):
            e(f"v_mov_b32 v{KB[i]+4+j}, 0")
    for i in range(4):
        e(f"s_waitcnt lgkmcnt({6-2*i})")
        e(f"v_mfma_f32_32x32x16_bf16 v[{MB[i]}:{MB[i]+15}], v[{KB[i]}:{KB[i]+3}], v[{Q1}:{Q1+3}], 0")
        e(f"v_mfma_f32_32x32x16_bf16 v[{MB[i]}:{MB[i]+15}], v[{KB[i]+4}:{KB[i]+7}], v[{Q2}:{Q2+3}], v[{MB[i]}:{MB[i]+15}]")
    e(f"v_add_u32 v{T}, {4*TILE_B}, v{T}")
    e(f"v_add_u32 v{T+1}, {4*TILE_B}, v{T+1}")
    e("s_nop 7")
    for i in range(4):
        if i == 3:
            e("s_nop 3")
        for j in range(8):
            e(f"v_max3_f32 v10, v{MB[i]+2*j}, v{MB[i]+2*j+1}, v10")
    e("s_add_u32 s42, s42, 1")
    e("s_cmp_lt_u32 s42, s41")
    e("s_cbranch_scc1 attn_maxloop")
    e(f"v_mov_b32 v{T}, v{vK1}")
    e(f"v_mov_b32 v{T+1}, v{vK2}")
    e(f"v_mov_b32 v{T+2}, v{vV}")
    e(f"ds_read_b128 v[{KF[0]}:{KF[0]+3}], v{T}")
    e(f"ds_read_b32 v{K2F[0]}, v{T+1}")
    e(f"ds_read_b128 v[{KF[1]}:{KF[1]+3}], v{T} offset:{TILE_B}")
    e(f"ds_read_b32 v{K2F[1]}, v{T+1} offset:{TILE_B}")
    e("v_mov_b32 v11, v10")
    e("s_nop 1")
    e("v_permlane32_swap_b32 v10, v11")
    e("v_max_f32 v10, v10, v11")
    for i in range(16):
        e(f"v_sub_f32 v{C+i}, 0, v10")
    for b in range(2):
        for j in range(1, 4):
            e(f"v_mov_b32 v{K2F[b]+j}, 0")
    e("s_waitcnt lgkmcnt(2)")
    e(f"v_mfma_f32_32x32x16_bf16 v[{S[0]}:{S[0]+15}], v[{KF[0]}:{KF[0]+3}], v[{Q1}:{Q1+3}], v[{C}:{C+15}]")
    e(f"v_mfma_f32_32x32x16_bf16 v[{S[0]}:{S[0]+15}], v[{K2F[0]}:{K2F[0]+3}], v[{Q2}:{Q2+3}], v[{S[0]}:{S[0]+15}]")
    for i in range(16):
        e(f"v_mov_b32 v{O+i}, 0")
    for i in range(8):
        e(f"v_mov_b32 v{P[1]+i}, 0")
        e(f"v_mov_b32 v{VF[1]+i}, 0")
    e("s_mov_b32 s42, 0")
    e.ts()
    def body(ex):
        ex = list(ex)
        slots = [4 * i + 1 for i in range(8)] + [4 * i + 3 for i in range(8)]
        slots = sorted(slots[:len(ex)]) if len(ex) <= 16 else None
        for tt in range(8):
            cur = tt & 1; nxt = cur ^ 1
            e("s_waitcnt lgkmcnt(0)")
            e(f"ds_read_b128 v[{KF[cur]}:{KF[cur]+3}], v{T} offset:{(tt+2)*TILE_B}")
            e(f"ds_read_b32 v{K2F[cur]}, v{T+1} offset:{(tt+2)*TILE_B}")
            e(f"ds_read_b128 v[{VF[cur]}:{VF[cur]+3}], v{T+2} offset:{tt*TILE_B}")
            e(f"ds_read_b128 v[{VF[cur]+4}:{VF[cur]+7}], v{T+2} offset:{tt*TILE_B+608}")
            m = [f"v_mfma_f32_32x32x16_bf16 v[{S[nxt]}:{S[nxt]+15}], v[{KF[nxt]}:{KF[nxt]+3}], v[{Q1}:{Q1+3}], v[{C}:{C+15}]",
                 f"v_mfma_f32_32x32x16_bf16 v[{O}:{O+15}], v[{VF[nxt]}:{VF[nxt]+3}], v[{P[nxt]}:{P[nxt]+3}], v[{O}:{O+15}]",
                 f"v_mfma_f32_32x32x16_bf16 v[{S[nxt]}:{S[nxt]+15}], v[{K2F[nxt]}:{K2F[nxt]+3}], v[{Q2}:{Q2+3}], v[{S[nxt]}:{S[nxt]+15}]",
                 f"v_mfma_f32_32x32x16_bf16 v[{O}:{O+15}], v[{VF[nxt]+4}:{VF[nxt]+7}], v[{P[nxt]+4}:{P[nxt]+7}], v[{O}:{O+15}]"]
            for g in range(4):
                e(m[g])
                if ex and (4 * tt + g) in slots:
                    for x in ex.pop(0): e(x)
                for i in range(4):
                    e(f"v_exp_f32 v{S[cur]+4*g+i}, v{S[cur]+4*g+i}")
                for i in range(2):
                    j = 2 * g + i
                    e(f"v_cvt_pk_bf16_f32 v{P[cur]+j}, v{S[cur]+2*j}, v{S[cur]+2*j+1}")
        assert not ex
        for i in range(3):
            e(f"v_add_u32 v{T+i}, {8*TILE_B}, v{T+i}")
        e("s_add_u32 s42, s42, 1")
    e("s_cmp_lg_u32 s40, 0")
    e("s_cbranch_scc1 attn_loop")
    body(extra[0:8])
    e("s_waitcnt vmcnt(5)")
    e("s_barrier")
    body(extra[8:16])
    e("s_waitcnt vmcnt(7)")
    e("s_barrier")
    body(extra[16:31])
    e("s_waitcnt vmcnt(15)")
    e("s_barrier")
    body(extra[31:])
    e.label("attn_loop")
    body([])
    e("s_cmp_lt_u32 s42, 8")
    e("s_cbranch_scc1 attn_loop")
    e.label("attn_done")
    e.ts()
    e("s_waitcnt lgkmcnt(0)")
    e(f"v_mfma_f32_32x32x16_bf16 v[{O}:{O+15}], v[{VF[1]}:{VF[1]+3}], v[{P[1]}:{P[1]+3}], v[{O}:{O+15}]")
    e(f"v_mfma_f32_32x32x16_bf16 v[{O}:{O+15}], v[{VF[1]+4}:{VF[1]+7}], v[{P[1]+4}:{P[1]+7}], v[{O}:{O+15}]")
    e("s_nop 15")
    e("s_nop 3")
    e("s_cmp_lg_u32 s40, 0")
    e("s_cbranch_scc1 attn_fin")
    e("v_mov_b32 v10, 0x71800000")
    e(f"v_cmp_nlt_f32 vcc, v{O+10}, v10")
    e("s_mov_b64 s[44:45], vcc")
    e("v_mov_b32 v10, 0x207")
    for i in range(10):
        e(f"v_cmp_class_f32 vcc, v{O+i}, v10")
        e("s_or_b64 s[44:45], s[44:45], vcc")
    e("s_cmp_eq_u64 s[44:45], 0")
    e("s_cbranch_scc1 attn_fin")
    e("s_mov_b32 s40, 1")
    e("s_mov_b32 s41, 16")
    e("s_branch attn_restart")
    e.label("attn_fin")
    e(f"v_rcp_f32 v10, v{O+10}")
    e("s_nop 0")
    for i in range(10):
        e(f"v_mul_f32 v{O+i}, v{O+i}, v10")
    for i in range(5):
        e(f"v_cvt_pk_bf16_f32 v{S[0]+i}, v{O+2*i}, v{O+2*i+1}")
    e("v_lshlrev_b32 v10, 3, v3")
    e("v_add_u32 v10, v8, v10")
    e("s_waitcnt vmcnt(0)")
    e(f"buffer_store_dwordx2 v[{S[0]}:{S[0]+1}], v10, s[24:27], s36 offen")
    e(f"buffer_store_dwordx2 v[{S[0]+2}:{S[0]+3}], v10, s[24:27], s36 offen offset:16")
    e("v_cmp_gt_u32 vcc, 32, v1")
    e("s_and_saveexec_b64 s[44:45], vcc")
    e(f"buffer_store_dword v{S[0]+4}, v8, s[24:27], s36 offen offset:32")
    e("s_mov_b64 exec, s[44:45]")
    e.ts()
    AO = 100; OA = 120; W = 60
    L = W
    e(f"s_mov_b32 s39, {f32bits(CSCALE):#x}")
    for i in range(4):
        k = AK + 10 * i
        e(f"v_dot2_f32_bf16 v{L+i}, v{AQ}, v{k}, 0")
    for j in range(1, 9):
        for i in range(4):
            k = AK + 10 * i
            e(f"v_dot2_f32_bf16 v{L+i}, v{AQ+j}, v{k+j}, v{L+i}")
    e(f"v_mov_b32 v{W+4}, 0xff800000")
    e("s_nop 2")
    for i in range(4):
        e(f"v_mul_f32 v{L+i}, s39, v{L+i}")
        e(f"v_cmp_gt_i32 vcc, 0, v{T+4+i}")
        e("s_nop 1")
        e(f"v_cndmask_b32 v{L+i}, v{L+i}, v{W+4}, vcc")
    M = W + 5
    e(f"v_max_f32 v{M}, v{L}, v{L+1}")
    e(f"v_max3_f32 v{M}, v{L+2}, v{L+3}, v{M}")
    e(f"v_mov_b32 v{M+1}, v{M}")
    e("s_nop 1")
    e(f"v_permlane32_swap_b32 v{M}, v{M+1}")
    e(f"v_max_f32 v{M}, v{M}, v{M+1}")
    for i in range(4):
        e(f"v_sub_f32 v{L+i}, v{L+i}, v{M}")
    for i in range(4):
        e(f"v_exp_f32 v{L+i}, v{L+i}")
    e("s_nop 0")
    e(f"v_add_f32 v{M+2}, v{L}, v{L+1}")
    e(f"v_add_f32 v{M+3}, v{L+2}, v{L+3}")
    e(f"v_add_f32 v{M+2}, v{M+2}, v{M+3}")
    e(f"v_mov_b32 v{M+3}, v{M+2}")
    e("s_nop 1")
    e(f"v_permlane32_swap_b32 v{M+2}, v{M+3}")
    e(f"v_add_f32 v{M+2}, v{M+2}, v{M+3}")
    e(f"v_rcp_f32 v{M+2}, v{M+2}")
    e("s_nop 0")
    PL = W + 10; PH = W + 14
    for i in range(4):
        e(f"v_mul_f32 v{L+i}, v{L+i}, v{M+2}")
    for i in range(4):
        e(f"v_cvt_pk_bf16_f32 v{PL+i}, v{L+i}, 0")
        e(f"v_cvt_pk_bf16_f32 v{PH+i}, 0, v{L+i}")
    for i in range(4):
        v = AV + 10 * i
        for j in range(9):
            if i == 0:
                e(f"v_dot2_f32_bf16 v{AO+2*j}, v{v+j}, v{PL+i}, 0")
                e(f"v_dot2_f32_bf16 v{AO+2*j+1}, v{v+j}, v{PH+i}, 0")
            else:
                e(f"v_dot2_f32_bf16 v{AO+2*j}, v{v+j}, v{PL+i}, v{AO+2*j}")
                e(f"v_dot2_f32_bf16 v{AO+2*j+1}, v{v+j}, v{PH+i}, v{AO+2*j+1}")
    e("s_nop 2")
    e(f"v_mov_b32 v{W}, v{AO+16}")
    e(f"v_mov_b32 v{W+1}, v{AO+17}")
    e("s_nop 2")
    for d in range(8):
        e(f"v_permlane32_swap_b32 v{AO+d}, v{AO+d+8}")
    e(f"v_permlane32_swap_b32 v{AO+16}, v{W}")
    e(f"v_permlane32_swap_b32 v{AO+17}, v{W+1}")
    for d in range(8):
        e(f"v_add_f32 v{AO+d}, v{AO+d}, v{AO+d+8}")
    e(f"v_add_f32 v{AO+16}, v{AO+16}, v{W}")
    e(f"v_add_f32 v{AO+17}, v{AO+17}, v{W+1}")
    for i in range(4):
        e(f"v_cvt_pk_bf16_f32 v{OA+i}, v{AO+2*i}, v{AO+2*i+1}")
    e(f"v_cvt_pk_bf16_f32 v{OA+4}, v{AO+16}, v{AO+17}")
    e(f"buffer_store_dwordx4 v[{OA}:{OA+3}], v9, s[20:23], s36 offen")
    e("v_cmp_gt_u32 vcc, 32, v1")
    e("s_and_saveexec_b64 s[44:45], vcc")
    e(f"buffer_store_dword v{OA+4}, v8, s[20:23], s36 offen offset:32")
    e.ts()
    e.ts_dump(4, 8, 1)
    e.label("attn_exit")
    e("s_endpgm")
    return 157696

def main():
    global INSTR
    INSTR = len(sys.argv) > 2 and sys.argv[2] == "instr"
    EXP.update(sys.argv[3:])
    global PFD, PLOOK
    for x in sys.argv[3:]:
        if x.startswith("pf="): PFD = int(x[3:])
        if x.startswith("pl="): PLOOK = int(x[3:])
    e = E()
    l1 = gen_proj(e)
    l2 = gen_attn(e)
    l3 = gen_out(e)
    ref = open(f"cdna_kernels/{NAME}.s.ref").read().splitlines()
    head = [l for l in ref if l.startswith(";") and "@launch" not in l and "Override" not in l and "grid=ceil" not in l]
    out = "\n".join(head) + "\n"
    out += f"; @launch kernel=proj_kernel grid=(256,1,1) block=(512,1,1) lds={l1}\n"
    out += f"; @launch kernel=attn_kernel grid=(256,1,1) block=(512,1,1) lds={l2}\n"
    out += f"; @launch kernel=outp_kernel grid=(192,1,1) block=(512,1,1) lds={l3}\n"
    out += '.amdgcn_target "amdgcn-amd-amdhsa--gfx950"\n.text\n'
    out += e.text()
    out += '.section .rodata,"a"\n.p2align 6\n'
    out += kd("proj_kernel", 144)
    out += ".p2align 6\n" + kd("attn_kernel", 236)
    out += ".p2align 6\n" + kd("outp_kernel", 112)
    path = sys.argv[1] if len(sys.argv) > 1 else f"cdna_kernels/{NAME}.s"
    open(path, "w").write(out)

main()
```

```python
import sys
def make(name, body, waves_per_simd, iters=200, grid=256, vgpr=128, lds=0, pre=""):
    block = 64 * 4 * waves_per_simd
    s = f"""; @launch grid=({grid},1,1) block=({block},1,1) lds={lds}
.amdgcn_target "amdgcn-amd-amdhsa--gfx950"
.text
.globl mb_kernel
.p2align 8
.type mb_kernel,@function
mb_kernel:
    s_load_dwordx2 s[4:5], s[0:1], 0
    s_load_dwordx2 s[6:7], s[0:1], 8
    s_waitcnt lgkmcnt(0)
    s_mov_b32 s8, s4
    s_mov_b32 s9, s5
    s_mov_b32 s10, 0x100000
    s_mov_b32 s11, 0x00020000
    s_mov_b32 s12, s6
    s_mov_b32 s13, s7
    s_mov_b32 s14, 0x100000
    s_mov_b32 s15, 0x00020000
    v_lshlrev_b32 v1, 2, v0
"""
    for i in range(2, vgpr):
        s += f"    buffer_load_dword v{i}, v1, s[12:15], 0 offen offset:{(i*4)%4096}\n"
    s += "    s_waitcnt vmcnt(0)\n"
    s += pre
    s += f"""    s_barrier
    s_memtime s[16:17]
    s_waitcnt lgkmcnt(0)
    s_mov_b32 s20, {iters}
L_loop:
{body}
    s_sub_u32 s20, s20, 1
    s_cmp_lg_u32 s20, 0
    s_cbranch_scc1 L_loop
    s_nop 15
    s_nop 15
    s_memtime s[18:19]
    s_waitcnt lgkmcnt(0)
    s_sub_u32 s18, s18, s16
    v_lshrrev_b32 v1, 6, v0
    s_mul_i32 s21, s2, {block//64}
    v_add_u32 v1, s21, v1
    v_lshlrev_b32 v1, 2, v1
    v_mov_b32 v2, s18
    v_and_b32 v3, 63, v0
    v_cmp_eq_u32 vcc, 0, v3
    s_and_saveexec_b64 s[22:23], vcc
    buffer_store_dword v2, v1, s[8:11], 0 offen
    s_waitcnt vmcnt(0)
    s_endpgm
.section .rodata,"a"
.p2align 6
.amdhsa_kernel mb_kernel
  .amdhsa_next_free_vgpr {vgpr}
  .amdhsa_next_free_sgpr 32
  .amdhsa_accum_offset {vgpr}
  .amdhsa_group_segment_fixed_size 0
  .amdhsa_kernarg_size 16
  .amdhsa_user_sgpr_count 2
  .amdhsa_user_sgpr_kernarg_segment_ptr 1
  .amdhsa_system_sgpr_workgroup_id_x 1
.end_amdhsa_kernel
"""
    open(name, "w").write(s)

if __name__ == "__main__":
    files = []
    def rep(fmt, n=32):
        return "".join("    " + fmt.format(d=32 + i, a=64 + i, b=96 + (i % 16), d2=32+2*(i%16), a2=64+2*(i%16), b2=96+2*(i%8)) + "\n" for i in range(n))
    tests = {
        "exp": rep("v_exp_f32 v{d}, v{a}"),
        "fma": rep("v_fma_f32 v{d}, v{a}, v{b}, v{a}"),
        "add": rep("v_add_f32 v{d}, v{a}, v{b}"),
        "max3": rep("v_max3_f32 v{d}, v{a}, v{b}, v{d}"),
        "cvtpk": rep("v_cvt_pk_bf16_f32 v{d}, v{a}, v{b}"),
        "perm": rep("v_perm_b32 v{d}, v{a}, v{b}, v2"),
        "pkmul": rep("v_pk_mul_f32 v[{d2}:{d2}+1], v[{a2}:{a2}+1], v[{b2}:{b2}+1]"),
        "pkfma": rep("v_pk_fma_f32 v[{d2}:{d2}+1], v[{a2}:{a2}+1], v[{b2}:{b2}+1], v[{a2}:{a2}+1]"),
        "exp16": rep("v_exp_f16 v{d}, v{a}"),
    }
    for k, b in tests.items():
        for w in (1, 2, 4):
            n = f"mb_{k}_w{w}.s"
            make(n, b, w)
            files.append(n)
    print(" ".join(files))
```

```python
from gen_mb import make
files = []
def inter2(Scur, Snext, Pcur, Pprev, qk2=True, small=False):
    m = [f"    v_mfma_f32_32x32x16_bf16 v[{Snext}:{Snext+15}], v[12:15], v[4:7], v[32:47]\n",
         f"    v_mfma_f32_32x32x16_bf16 v[96:111], v[20:23], v[{Pprev}:{Pprev+3}], v[96:111]\n",
         f"    v_mfma_f32_32x32x16_bf16 v[{Snext}:{Snext+15}], v[16:19], v[8:11], v[{Snext}:{Snext+15}]\n",
         f"    v_mfma_f32_32x32x16_bf16 v[96:111], v[24:27], v[{Pprev+4}:{Pprev+7}], v[96:111]\n"]
    if small: m[2] = f"    v_mfma_f32_32x32x8_bf16 v[{Snext}:{Snext+15}], v[16:17], v[8:9], v[{Snext}:{Snext+15}]\n"
    if not qk2: m[2] = ""
    s = ""
    for g in range(4):
        s += m[g]
        for i in range(4):
            s += f"    v_exp_f32 v{Scur+4*g+i}, v{Scur+4*g+i}\n"
        for i in range(2):
            j = 2*g+i
            s += f"    v_cvt_pk_bf16_f32 v{Pcur+j}, v{Scur+2*j}, v{Scur+2*j+1}\n"
    return s
def pre(vzero, rnd=True):
    s = ""
    for i in range(4, 28):
        if rnd: s += f"    v_cvt_pk_bf16_f32 v{i}, v{64+2*(i-4)}, v{65+2*(i-4)}\n"
        else: s += f"    v_mov_b32 v{i}, 0\n"
    s += "    v_and_b32 v2, 63, v0\n    v_cmp_gt_u32 vcc, 32, v2\n    s_nop 1\n"
    for r in (8, 16):
        s += f"    v_cndmask_b32 v{r}, 0, v{r}, vcc\n"
        for j in range(1, 4): s += f"    v_mov_b32 v{r+j}, 0\n"
    if vzero:
        s += "    v_and_b32 v2, 31, v0\n    v_cmp_gt_u32 vcc, 19, v2\n    s_nop 1\n"
        for r in range(20, 28): s += f"    v_cndmask_b32 v{r}, 0, v{r}, vcc\n"
    for i in range(32, 48): s += f"    v_mov_b32 v{i}, -4.0\n"
    for i in range(48, 112): s += f"    v_mov_b32 v{i}, 0\n"
    return s
U = 8
tests = {
  "p_rnd_vz": (pre(True), dict()),
  "p_rnd_vz_small": (pre(True), dict(small=True)),
  "p_rnd_vz_noqk2": (pre(True), dict(qk2=False)),
}
for k, (p, kw) in tests.items():
    for it in (100,):
        b = (inter2(48, 64, 80, 88, **kw) + inter2(64, 48, 88, 80, **kw)) * U
        n = f"mb_{k}_it{it}.s"
        make(n, b, 2, pre=p, iters=it)
        files.append(n)
print(" ".join(files))
```

```python
import struct, sys, math

NAME = "concat_heads__sliding_local_dilated__grouped_kv_mqa__prompt"

WS_QKVA = 0x000000
WS_QB   = 0x700000
WS_KV   = 0xA00000
WS_FLAG = 0xA80000
WS_OA   = 0xB00000
WS_OB   = 0xE00000
TILE_B  = 2368
KVIMG_B = 64 * TILE_B

def f32bits(x):
    return struct.unpack("<I", struct.pack("<f", x))[0]

CSCALE = (18 ** -0.5) * math.log2(math.e)

INSTR = False
EXP = set()
PFD = 5
PLOOK = 2
HB1_TT = 6
KVLEAD = 11
WARM_AT = 9
TPUB_ = 46
TPOLL_ = 50
TB11_ = 52
WS_DBG = 0x1200000
class E:
    def __init__(self):
        self.l = []
        self.nts = 0
    def ts_reset(self):
        self.nts = 0
        if INSTR: self("s_memrealtime s[100:101]")
    def ts(self):
        if not INSTR: return
        k = self.nts; self.nts += 1
        self(f"s_memtime s[{64+2*k}:{65+2*k}]")
    def ts_dump(self, wsreg, waves_per_wg, kid):
        if not INSTR: return
        n = self.nts
        self(f"s_memrealtime s[96:97]")
        self("s_waitcnt lgkmcnt(0)")
        self("s_mov_b64 exec, -1")
        self(f"s_add_u32 s92, s{wsreg}, {WS_DBG + kid*0x100000}")
        self(f"s_addc_u32 s93, s{wsreg+1}, 0")
        self("s_mov_b32 s94, 0x100000")
        self("s_mov_b32 s95, 0x00020000")
        self(f"s_mul_i32 s98, s2, {waves_per_wg}")
        self("s_add_u32 s98, s98, s32")
        self("s_lshl_b32 s98, s98, 6")
        self("v_mov_b32 v1, 0")
        for k in range(n):
            self(f"v_mov_b32 v2, s{64+2*k}")
            self(f"buffer_store_dword v2, v1, s[92:95], s98 offen offset:{4*k}")
        self("v_mov_b32 v2, s96")
        self(f"buffer_store_dword v2, v1, s[92:95], s98 offen offset:60")
        self("v_mov_b32 v2, s100")
        self(f"buffer_store_dword v2, v1, s[92:95], s98 offen offset:56")
    def __call__(self, s):
        self.l.append("    " + s)
    def label(self, s):
        self.l.append(s + ":")
    def c(self, s):
        self.l.append("    ; " + s)
    def text(self):
        return "\n".join(self.l) + "\n"

def srd(e, d, lo, hi, nbytes):
    e(f"s_mov_b32 s{d}, s{lo}")
    e(f"s_mov_b32 s{d+1}, s{hi}")
    e(f"s_mov_b32 s{d+2}, {nbytes}")
    e(f"s_mov_b32 s{d+3}, 0x00020000")

def srd_off(e, d, lo, hi, off, nbytes):
    e(f"s_add_u32 s{d}, s{lo}, {off}")
    e(f"s_addc_u32 s{d+1}, s{hi}, 0")
    e(f"s_mov_b32 s{d+2}, {nbytes}")
    e(f"s_mov_b32 s{d+3}, 0x00020000")

def gen_gemm(e, pfx, NT, NSLOT, special=False):
    P = PLOOK
    XB = 16384
    SLOT = XB + NT * 4096
    NCH = 9
    XS_ = 6; XRS = 24; WRS = 16; WL = 2
    NQ = NT - 2 if special else NT
    TK = NT - 2; TV = NT - 1
    D = 4 + NQ + (8 if special else 0)
    vX = [2, 3, 4, 5]; vW = 6; vKV = 7
    vXr = [8, 9, 10, 11]; vWr = 12
    F = [16, 16 + 4 + 4 * NT]
    ACC = 64
    e.c(f"---- gemm body {pfx} NT={NT} NSLOT={NSLOT} special={special}")
    e.ts_reset()
    e.ts()
    e("v_and_b32 v1, 63, v0")
    e("v_lshrrev_b32 v13, 6, v0")
    e("s_nop 0")
    e("v_readfirstlane_b32 s32, v13")
    e("s_nop 3")
    e("s_cmp_lt_u32 s32, 4")
    e(f"s_cbranch_scc1 {pfx}_compute")
    e("s_sub_u32 s51, s32, 4")
    e("v_lshrrev_b32 v13, 3, v1")
    e("v_lshrrev_b32 v14, 4, v1")
    e("v_and_b32 v15, 7, v1")
    e("s_lshl_b32 s40, s51, 5")
    e("s_add_u32 s40, s40, s36")
    e("s_movk_i32 s41, 1152")
    for j in range(4):
        e(f"v_add_u32 v16, {4*j}, v14")
        e("v_and_b32 v16, 7, v16")
        e("v_xor_b32 v16, v16, v15")
        e("v_lshlrev_b32 v16, 4, v16")
        e(f"v_add_u32 v17, {8*j}, v13")
        e("v_add_u32 v17, s40, v17")
        e("v_mul_lo_u32 v17, v17, s41")
        e(f"v_add_u32 v{vX[j]}, v16, v17")
    e("v_lshrrev_b32 v16, 2, v1")
    e("s_lshl_b32 s40, s51, 4")
    e("v_add_u32 v16, s40, v16")
    e("v_mul_lo_u32 v16, v16, s33")
    e("v_and_b32 v17, 3, v1")
    e("v_lshlrev_b32 v17, 4, v17")
    e("v_add_u32 v16, v16, v17")
    e(f"v_add_u32 v{vW}, s37, v16")
    if special:
        e("v_add_u32 v16, s40, v14")
        e("v_mul_u32_u24 v16, 36, v16")
        e("v_and_b32 v17, 15, v1")
        e("v_min_u32 v17, 8, v17")
        e("v_lshlrev_b32 v17, 2, v17")
        e(f"v_add_u32 v{vKV}, v16, v17")
    e("s_lshl_b32 s48, s33, 6")
    e("s_mov_b32 s46, s50")
    e("s_lshl_b32 s44, s51, 12")
    e("s_lshl_b32 s45, s51, 10")
    e(f"s_add_u32 s45, s45, {XB}")

    def dma_chunk(n):
        sb = (n % NSLOT) * SLOT
        e("s_lshl_b32 s41, s46, 7")
        e("s_mul_i32 s42, s46, s48")
        if special:
            e("s_mul_i32 s43, s46, 2304")
        e("s_add_u32 s46, s46, 1")
        e(f"s_cmp_eq_u32 s46, {NCH}")
        e("s_cselect_b32 s46, 0, s46")
        if "nodma" in EXP: return
        for j in range(4):
            e(f"s_add_u32 m0, s44, {sb + j*1024}")
            e("s_nop 0")
            e(f"buffer_load_dwordx4 v{vX[j]}, s[8:11], s41 offen lds")
        for t in range(NQ):
            e(f"s_add_u32 m0, s45, {sb + t*4096 - 64*t}")
            e("s_nop 0")
            e(f"buffer_load_dwordx4 v{vW}, s[12:15], s42 offen offset:{64*t} lds")
        if special:
            for (t, sr) in ((TK, 20), (TV, 24)):
                for q in range(4):
                    e(f"s_add_u32 m0, s45, {sb + t*4096 + q*256 - 144*q}")
                    e("s_nop 0")
                    e(f"buffer_load_dword v{vKV}, s[{sr}:{sr+3}], s43 offen offset:{144*q} lds")
    for n in range(P):
        dma_chunk(n)
    for c in range(NCH + 1):
        issued = min(c - 1 + P, NCH - 1)
        allowed = max(issued - c, 0)
        e(f"s_waitcnt vmcnt({allowed*D})")
        e("s_barrier")
        if c + P <= NCH - 1:
            dma_chunk(c + P)
        if NT == 2 and c == WARM_AT and "k1warm" in EXP:
            e("s_load_dwordx4 s[40:43], s[0:1], 0")
            e("s_lshr_b32 s46, s2, 3")
            e("s_lshl_b32 s46, s46, 2")
            e("s_add_u32 s46, s46, s51")
            e("v_lshlrev_b32 v13, 7, v1")
            e("s_waitcnt lgkmcnt(0)")
            e("s_mov_b32 s52, s42")
            e("s_mov_b32 s53, s43")
            e(f"s_mov_b32 s54, {576*3456}")
            e("s_mov_b32 s55, 0x00020000")
            e("s_lshl_b32 s47, s46, 13")
            for i in range(4):
                e(f"s_add_u32 s49, s47, {i*80*8192}")
                e("buffer_load_dword v14, v13, s[52:55], s49 offen")
            e("s_mov_b32 s52, s40")
            e("s_mov_b32 s53, s41")
            e(f"s_mov_b32 s54, {2048*1152}")
            e("s_and_b32 s47, s2, 7")
            e("s_mul_i32 s47, s47, 294912")
            e("s_mul_i32 s49, s46, 3712")
            e("s_add_u32 s49, s49, s47")
            e("v_min_u32 v13, 28, v1")
            e("v_lshlrev_b32 v13, 7, v13")
            e("buffer_load_dword v14, v13, s[52:55], s49 offen")
    e("s_endpgm")
    e.label(f"{pfx}_compute")
    PF = PFD
    e("v_bfe_u32 v13, v1, 2, 3")
    e(f"s_mul_i32 s40, s6, {XRS}")
    e("s_add_u32 s40, s40, s36")
    e(f"s_mul_i32 s41, s32, {XRS//4}")
    e("s_add_u32 s40, s40, s41")
    e("v_add_u32 v14, s40, v13")
    e("v_mul_u32_u24 v3, 1152, v14")
    e("v_bfe_u32 v13, v1, 4, 2")
    e(f"v_min_u32 v13, {WRS//4-1}, v13")
    e(f"s_mul_i32 s40, s3, {WRS}")
    e(f"s_mul_i32 s41, s32, {WRS//4}")
    e("s_add_u32 s40, s40, s41")
    e("v_add_u32 v13, s40, v13")
    e("v_mul_lo_u32 v13, v13, s33")
    e("v_bfe_u32 v14, v1, 2, 2")
    e(f"v_min_u32 v14, {WL-1}, v14")
    e("v_lshlrev_b32 v14, 7, v14")
    e("v_add_u32 v13, v13, v14")
    e("v_add_u32 v4, s37, v13")
    e("s_lshl_b32 s48, s33, 6")
    e(f"s_movk_i32 s54, {128*P}")
    e(f"s_mul_i32 s55, s48, {P}")
    def pf():
        if "pf" not in EXP: return
        e("buffer_load_dword v2, v3, s[8:11], s54 offen")
        e("buffer_load_dword v2, v4, s[12:15], s55 offen")
        e("s_add_u32 s54, s54, 128")
        e("s_add_u32 s55, s55, s48")
    for _ in range(P, PF):
        pf()
    e("v_and_b32 v13, 31, v1")
    e("v_lshrrev_b32 v14, 5, v1")
    e("v_lshrrev_b32 v15, 1, v13")
    e("v_and_b32 v15, 7, v15")
    e("v_lshlrev_b32 v16, 7, v13")
    e("s_lshl_b32 s40, s32, 12")
    e("v_add_u32 v16, s40, v16")
    e("v_lshlrev_b32 v17, 2, v14")
    for j in range(4):
        e(f"v_add_u32 v18, {j}, v17")
        e("v_xor_b32 v18, v18, v15")
        e("v_lshlrev_b32 v18, 4, v18")
        e(f"v_add_u32 v{vXr[j]}, v16, v18")
    e("v_lshlrev_b32 v16, 11, v14")
    e("v_bfe_u32 v17, v1, 2, 2")
    e("v_lshlrev_b32 v17, 6, v17")
    e("v_add_u32 v16, v16, v17")
    e("v_bfe_u32 v17, v1, 4, 1")
    e("v_lshlrev_b32 v17, 5, v17")
    e("v_add_u32 v16, v16, v17")
    e("v_and_b32 v17, 3, v1")
    e("v_lshlrev_b32 v17, 3, v17")
    e("v_add_u32 v16, v16, v17")
    e(f"v_add_u32 v{vWr}, {XB}, v16")
    for i in range(NT * 16):
        e(f"v_mov_b32 v{ACC+i}, 0")
    e(f"s_mov_b32 s7, {SLOT}")

    def read_list(j, fb):
        b = F[fb]
        l = [f"ds_read_b128 v[{b}:{b+3}], v{vXr[j]}"]
        for t in range(NT):
            r = b + 4 + 4 * t
            l.append(f"ds_read_b64_tr_b16 v[{r}:{r+1}], v{vWr} offset:{t*4096 + j*512}")
            l.append(f"ds_read_b64_tr_b16 v[{r+2}:{r+3}], v{vWr} offset:{t*4096 + j*512 + 256}")
        if "noread" in EXP: l = []
        return l
    def mfma(fb, t):
        if "nomfma" in EXP: return
        b = F[fb]
        r = b + 4 + 4 * t
        a = ACC + 16 * t
        if special and t == TV:
            e(f"v_mfma_f32_32x32x16_bf16 v[{a}:{a+15}], v[{b}:{b+3}], v[{r}:{r+3}], v[{a}:{a+15}]")
        else:
            e(f"v_mfma_f32_32x32x16_bf16 v[{a}:{a+15}], v[{r}:{r+3}], v[{b}:{b+3}], v[{a}:{a+15}]")
    NR = 1 + 2 * NT
    def step(fb, nxt_reads, first_after=0):
        per = {}
        k = 0
        slots = list(range(first_after, NT - 1)) or [first_after]
        q = list(nxt_reads)
        chunk = -(-len(q) // min(len(slots), 3))
        issued_new = 0
        for t in range(NT):
            if first_after == 0:
                allowed = NR - (2 * t + 3) + issued_new
                e(f"s_waitcnt lgkmcnt({min(allowed, 15)})")
            mfma(fb, t)
            if t == 0 and first_after == 1:
                e("s_barrier")
            if t >= first_after - (1 if first_after == 1 else 0) and q:
                for _ in range(min(chunk, len(q))):
                    e(q.pop(0)); issued_new += 1
        assert not q
    e("s_mov_b32 s40, 0")
    e("s_mov_b32 s49, 0")
    e.ts()
    e("s_barrier")
    e.ts()
    for r in read_list(0, 0): e(r)
    e.label(f"{pfx}_loop")
    pf()
    step(0, read_list(1, 1))
    step(1, read_list(2, 0))
    step(0, read_list(3, 1))
    e("s_add_u32 s49, s49, 1")
    e(f"s_cmp_eq_u32 s49, {NSLOT}")
    e(f"s_cselect_b32 s47, {-(NSLOT-1)*SLOT}, s7")
    e("s_cselect_b32 s49, 0, s49")
    for j in range(4):
        e(f"v_add_u32 v{vXr[j]}, s47, v{vXr[j]}")
    e(f"v_add_u32 v{vWr}, s47, v{vWr}")
    e("s_add_u32 s40, s40, 1")
    e(f"s_cmp_lt_u32 s40, {NCH}")
    e("s_waitcnt lgkmcnt(0)")
    step(1, read_list(0, 0), first_after=1)
    e(f"s_cbranch_scc1 {pfx}_loop")
    e.ts()
    e("s_waitcnt lgkmcnt(0)")
    e("s_nop 15")
    e("s_nop 3")
    NTQ = NQ
    RS = 80
    TR = 32 * RS
    e("v_and_b32 v13, 31, v1")
    e("v_lshrrev_b32 v14, 5, v1")
    e(f"v_mul_u32_u24 v15, {RS}, v13")
    e("v_lshlrev_b32 v16, 3, v14")
    e("v_add_u32 v15, v15, v16")
    e(f"s_mul_i32 s40, s32, {NT*TR}")
    e("v_add_u32 v15, s40, v15")
    e("v_lshrrev_b32 v16, 2, v1")
    e(f"v_mul_u32_u24 v17, {RS}, v16")
    e("v_and_b32 v18, 3, v1")
    e("v_lshlrev_b32 v18, 4, v18")
    e("v_add_u32 v17, v17, v18")
    e("v_add_u32 v17, s40, v17")
    e("s_lshl_b32 s41, s32, 5")
    e("s_add_u32 s41, s41, s36")
    e("v_add_u32 v16, s41, v16")
    e("v_mul_lo_u32 v16, v16, s34")
    e("v_add_u32 v16, v16, v18")
    e("v_add_u32 v16, s38, v16")
    e("s_lshl_b32 s42, s34, 4")
    for t in range(NTQ):
        a = ACC + 16 * t
        for i in range(8):
            e(f"v_cvt_pk_bf16_f32 v{20+i}, v{a+2*i}, v{a+2*i+1}")
        for g in range(4):
            e(f"ds_write_b64 v15, v[{20+2*g}:{21+2*g}] offset:{t*TR + g*16}")
    e("s_waitcnt lgkmcnt(0)")
    for t in range(NTQ):
        e(f"ds_read_b128 v[{20+8*t}:{23+8*t}], v17 offset:{t*TR}")
        e(f"ds_read_b128 v[{24+8*t}:{27+8*t}], v17 offset:{t*TR + 16*RS}")
    for t in range(NTQ):
        if t == NTQ - 1 and not special:
            e(f"s_cmp_lt_u32 s39, {NTQ}")
            e(f"s_cbranch_scc1 {pfx}_skiplast")
        e(f"s_waitcnt lgkmcnt({2*(NTQ-1-t)})")
        fl = " sc1" if NT == 5 else ""
        e(f"buffer_store_dwordx4 v[{20+8*t}:{23+8*t}], v16, s[16:19], 0 offen offset:{64*t}{fl}")
        e(f"buffer_store_dwordx4 v[{24+8*t}:{27+8*t}], v16, s[16:19], s42 offen offset:{64*t}{fl}")
    if not special:
        e.label(f"{pfx}_skiplast")
    if special:
        e("s_lshr_b32 s43, s41, 5")
        e(f"s_mul_i32 s43, s43, {TILE_B}")
        a = ACC + 16 * TK
        for i in range(10):
            e(f"v_mul_f32 v{a+i}, s35, v{a+i}")
        for i in range(5):
            e(f"v_cvt_pk_bf16_f32 v{48+i}, v{a+2*i}, v{a+2*i+1}")
        e("v_lshlrev_b32 v56, 4, v13")
        e("v_lshlrev_b32 v57, 3, v14")
        e("v_add_u32 v56, v56, v57")
        e("buffer_store_dwordx2 v[48:49], v56, s[28:31], s43 offen")
        e("buffer_store_dwordx2 v[50:51], v56, s[28:31], s43 offen offset:512")
        e("v_lshlrev_b32 v57, 2, v13")
        e("v_cmp_gt_u32 vcc, 32, v1")
        e("s_and_saveexec_b64 s[52:53], vcc")
        e("buffer_store_dword v52, v57, s[28:31], s43 offen offset:1024")
        e("s_mov_b64 exec, s[52:53]")
        a = ACC + 16 * TV
        for i in range(8):
            e(f"v_cvt_pk_bf16_f32 v{40+i}, v{a+2*i}, v{a+2*i+1}")
        e("v_mov_b32 v58, 0x3f803f80")
        e("v_cmp_eq_u32 vcc, 18, v13")
        e("s_nop 1")
        for i in range(8):
            e(f"v_cndmask_b32 v{40+i}, v{40+i}, v58, vcc")
        e("v_lshlrev_b32 v56, 4, v13")
        e("v_mul_u32_u24 v57, 304, v14")
        e("v_add_u32 v56, v56, v57")
        e("v_cmp_gt_u32 vcc, 19, v13")
        e("s_and_saveexec_b64 s[52:53], vcc")
        e("buffer_store_dwordx4 v[40:43], v56, s[28:31], s43 offen offset:1152")
        e("buffer_store_dwordx4 v[44:47], v56, s[28:31], s43 offen offset:1760")
        e("s_mov_b64 exec, s[52:53]")
    e.ts()
    e("s_waitcnt vmcnt(0)") if INSTR else None
    e.ts()
    e.ts_dump(4, 8, 0 if NT != 3 else 2)
    e("s_endpgm")
    return NSLOT * SLOT

def kd(name, vgpr, sgpr=64):
    if INSTR: sgpr = 102
    acc = (vgpr + 3) // 4 * 4
    return f""".amdhsa_kernel {name}
  .amdhsa_next_free_vgpr {vgpr}
  .amdhsa_next_free_sgpr {sgpr}
  .amdhsa_accum_offset {acc}
  .amdhsa_group_segment_fixed_size 0
  .amdhsa_kernarg_size 88
  .amdhsa_user_sgpr_count 2
  .amdhsa_user_sgpr_kernarg_segment_ptr 1
  .amdhsa_system_sgpr_workgroup_id_x 1
.end_amdhsa_kernel
"""

def header(e, name):
    e.l.append(f".globl {name}")
    e.l.append(".p2align 8")
    e.l.append(f".type {name},@function")
    e.label(name)

def stagger(e, a, b):
    if "nostag" in EXP:
        e("s_mov_b32 s50, 0"); return
    e(f"s_lshl_b32 s50, {b}, 1")
    e(f"s_add_u32 s50, s50, {a}")
    e("s_cmp_ge_u32 s50, 9")
    e("s_cselect_b32 s51, 9, 0")
    e("s_sub_u32 s50, s50, s51")

def gen_proj(e):
    header(e, "proj_kernel")
    e("s_cmp_ge_u32 s2, 256")
    e("s_cbranch_scc1 proj_exit")
    e("s_load_dwordx2 s[52:53], s[0:1], 0")
    e("s_load_dwordx2 s[54:55], s[0:1], 8")
    e("s_load_dwordx2 s[56:57], s[0:1], 24")
    e("s_load_dwordx2 s[58:59], s[0:1], 32")
    e("s_load_dwordx2 s[60:61], s[0:1], 40")
    e("s_load_dwordx2 s[62:63], s[0:1], 48")
    e("s_load_dwordx2 s[4:5], s[0:1], 80")
    e("s_and_b32 s6, s2, 7")
    e("s_lshr_b32 s7, s2, 3")
    e("s_and_b32 s3, s7, 7")
    e("s_lshr_b32 s7, s7, 3")
    e("s_waitcnt lgkmcnt(0)")
    e("s_cmp_lt_u32 s6, 2")
    e("s_cbranch_scc1 proj_B")
    e("s_sub_u32 s6, s6, 2")
    e("s_and_b32 s40, s6, 1")
    e("s_lshl_b32 s40, s40, 3")
    e("s_add_u32 s40, s40, s3")
    e("s_lshr_b32 s41, s6, 1")
    e("s_lshl_b32 s41, s41, 2")
    e("s_add_u32 s41, s41, s7")
    e("s_cmp_ge_u32 s41, 11")
    e("s_cbranch_scc1 proj_exit")
    srd(e, 8, 52, 53, 2048 * 1152)
    srd(e, 12, 54, 55, 576 * 3456)
    srd_off(e, 16, 4, 5, WS_QKVA, 2048 * 3456)
    e("s_movk_i32 s33, 3456")
    e("s_movk_i32 s34, 3456")
    e("s_mov_b32 s35, 1.0")
    e("s_lshl_b32 s36, s40, 7")
    e("s_mul_i32 s37, s41, 320")
    e("s_mov_b32 s38, s37")
    e("s_cmp_eq_u32 s41, 10")
    e("s_cselect_b32 s39, 4, 5")
    stagger(e, "s3", "s7")
    e("s_mov_b32 s6, s7")
    e("s_branch proj_generic")
    e.label("proj_B")
    e("s_lshl_b32 s40, s6, 3")
    e("s_add_u32 s40, s40, s3")
    srd(e, 8, 56, 57, 2048 * 1152)
    srd(e, 12, 58, 59, 576 * 1152)
    srd_off(e, 16, 4, 5, WS_QB, 2048 * 1152)
    e("s_movk_i32 s33, 1152")
    e("s_movk_i32 s34, 1152")
    e(f"s_mov_b32 s35, {f32bits(CSCALE):#x}")
    e("s_lshl_b32 s36, s40, 7")
    e("s_mul_i32 s37, s7, 320")
    e("s_mov_b32 s38, s37")
    e("s_mov_b32 s39, 5")
    stagger(e, "s3", "s7")
    e("s_mov_b32 s6, s7")
    e("s_cmp_eq_u32 s7, 3")
    e("s_cbranch_scc1 proj_special")
    e.label("proj_generic")
    lds = gen_gemm(e, "pg", 5, 4)
    e.label("proj_special")
    srd(e, 20, 60, 61, 576 * 36)
    srd(e, 24, 62, 63, 576 * 36)
    srd_off(e, 28, 4, 5, WS_KV, KVIMG_B)
    gen_gemm(e, "ps", 5, 4, special=True)
    e.label("proj_exit")
    e("s_endpgm")
    return lds

def gen_out(e):
    header(e, "outp_kernel")
    e("s_cmp_ge_u32 s2, 192")
    e("s_cbranch_scc1 outp_exit")
    e("s_load_dwordx2 s[52:53], s[0:1], 16")
    e("s_load_dwordx2 s[54:55], s[0:1], 56")
    e("s_load_dwordx2 s[56:57], s[0:1], 64")
    e("s_load_dwordx2 s[4:5], s[0:1], 80")
    e("s_and_b32 s6, s2, 7")
    e("s_lshr_b32 s7, s2, 3")
    e("s_and_b32 s3, s7, 1")
    e("s_bfe_u32 s41, s7, 0x10001")
    e("s_lshl_b32 s40, s6, 1")
    e("s_add_u32 s40, s40, s41")
    e("s_lshr_b32 s41, s7, 2")
    e("s_waitcnt lgkmcnt(0)")
    e(f"s_mov_b32 s42, {WS_OB}")
    e("s_cmp_eq_u32 s3, 0")
    e(f"s_cselect_b32 s42, {WS_OA}, s42")
    e("s_cselect_b32 s58, s52, s54")
    e("s_cselect_b32 s59, s53, s55")
    e("s_add_u32 s8, s4, s42")
    e("s_addc_u32 s9, s5, 0")
    e(f"s_mov_b32 s10, {2048*1152}")
    e("s_mov_b32 s11, 0x00020000")
    srd(e, 12, 58, 59, 576 * 1152)
    srd(e, 16, 56, 57, 2048 * 2304)
    e("s_movk_i32 s33, 1152")
    e("s_movk_i32 s34, 2304")
    e("s_mov_b32 s35, 1.0")
    e("s_lshl_b32 s36, s40, 7")
    e("s_mul_i32 s37, s41, 192")
    e("s_mul_i32 s38, s3, 1152")
    e("s_add_u32 s38, s38, s37")
    e("s_mov_b32 s39, 3")
    e("s_and_b32 s40, s40, 1")
    stagger(e, "s41", "s40")
    e("s_mov_b32 s6, s41")
    e("s_mov_b32 s3, s40")
    lds = gen_gemm(e, "og", 3, 5)
    e.label("outp_exit")
    e("s_endpgm")
    return lds

def gen_attn(e):
    header(e, "attn_kernel")
    Q1 = 12; Q2 = 16; C = 20; S = [36, 52]; P = [68, 76]; O = 84
    KF = [100, 104]; K2F = [108, 112]; VF = [116, 124]
    T = 132
    SLOTB = [97280, 130048]
    SYNC = 162816
    vK1 = 4; vK2 = 5; vV = 6
    e("s_cmp_ge_u32 s2, 256")
    e("s_cbranch_scc1 attn_exit")
    e.ts_reset()
    e.ts()
    e("s_load_dwordx2 s[4:5], s[0:1], 80")
    e("s_load_dwordx2 s[46:47], s[0:1], 16")
    e("s_load_dwordx2 s[48:49], s[0:1], 56")
    e("s_load_dwordx4 s[28:31], s[0:1], 0")
    e("v_and_b32 v1, 63, v0")
    e("v_lshrrev_b32 v7, 6, v0")
    e("v_and_b32 v2, 31, v1")
    e("v_readfirstlane_b32 s32, v7")
    e("v_lshrrev_b32 v3, 5, v1")
    e("s_and_b32 s3, s2, 7")
    e("s_lshl_b32 s33, s3, 8")
    e("s_lshr_b32 s6, s2, 3")
    e("s_lshl_b32 s35, s6, 3")
    e("s_add_u32 s33, s33, s35")
    e("v_lshlrev_b32 v7, 4, v1")
    e("v_mul_u32_u24 v8, 36, v2")
    e("v_lshlrev_b32 v9, 4, v3")
    e("v_add_u32 v9, v8, v9")
    e("s_waitcnt lgkmcnt(0)")
    srd_off(e, 16, 4, 5, WS_KV, KVIMG_B)
    e("s_cmp_ge_u32 s32, 8")
    e("s_cbranch_scc1 attn_helper")
    e("s_add_u32 s33, s33, s32")
    srd_off(e, 12, 4, 5, WS_QB, 2048 * 1152)
    e("s_mul_i32 s36, s33, 1152")
    e(f"buffer_load_dwordx4 v[{Q1}:{Q1+3}], v9, s[12:15], s36 offen")
    e(f"buffer_load_dword v{Q2}, v8, s[12:15], s36 offen offset:32")
    srd_off(e, 24, 4, 5, WS_OB, 2048 * 1152)
    e(f"v_lshlrev_b32 v{vK1}, 4, v1")
    e(f"v_lshlrev_b32 v{vK2}, 2, v2")
    e(f"v_add_u32 v{vK2}, 1024, v{vK2}")
    e(f"v_min_u32 v{vV}, 18, v2")
    e(f"v_lshlrev_b32 v{vV}, 4, v{vV}")
    e("v_mul_u32_u24 v11, 304, v3")
    e(f"v_add_u32 v{vV}, v{vV}, v11")
    e(f"v_add_u32 v{vV}, 1152, v{vV}")
    e("v_cmp_gt_u32 vcc, 32, v1")
    e(f"v_mov_b32 v{Q2+1}, 0")
    e(f"v_mov_b32 v{Q2+2}, 0")
    e(f"v_mov_b32 v{Q2+3}, 0")
    e("s_mov_b32 s40, 0")
    e.ts()
    e("s_waitcnt vmcnt(0)")
    e(f"v_cndmask_b32 v{Q2}, 0, v{Q2}, vcc")
    e.ts()
    e("s_barrier")
    e.ts()
    MB = [36, 52, 68, 84]
    KB = [100, 108, 116, 124]
    def ld128(dst, vlds, vglb, off, src, soff="0"):
        if src == "lds": e(f"ds_read_b128 v[{dst}:{dst+3}], v{vlds} offset:{off}")
        else: e(f"buffer_load_dwordx4 v[{dst}:{dst+3}], v{vglb}, s[16:19], {soff} offen offset:{off}")
    def ld32(dst, vlds, vglb, off, src, soff="0"):
        if src == "lds": e(f"ds_read_b32 v{dst}, v{vlds} offset:{off}")
        else: e(f"buffer_load_dword v{dst}, v{vglb}, s[16:19], {soff} offen offset:{off}")
    def wait(n, src):
        e(f"s_waitcnt {'lgkmcnt' if src == 'lds' else 'vmcnt'}({n})")
    def maxpass(src):
        e("v_mov_b32 v10, 0xff800000")
        if src == "glb":
            e("s_mov_b32 s42, 0")
            e.label("attn_maxloop")
        for i in range(4):
            if src == "glb":
                e(f"s_add_u32 s35, s42, {i*TILE_B}")
                ld128(KB[i], 0, vK1, 0, src, "s35"); ld32(KB[i]+4, 0, vK2, 0, src, "s35")
            else:
                ld128(KB[i], vK1, 0, i*TILE_B, src); ld32(KB[i]+4, vK2, 0, i*TILE_B, src)
        for i in range(4):
            e(f"v_mov_b32 v{KB[i]+5}, 0")
        for i in range(4):
            wait(6-2*i, src)
            e(f"v_mfma_f32_32x32x16_bf16 v[{MB[i]}:{MB[i]+15}], v[{KB[i]}:{KB[i]+3}], v[{Q1}:{Q1+3}], 0")
        e("s_nop 9")
        for i in range(4):
            e(f"v_mfma_f32_32x32x8_bf16 v[{MB[i]}:{MB[i]+15}], v[{KB[i]+4}:{KB[i]+5}], v[{Q2}:{Q2+1}], v[{MB[i]}:{MB[i]+15}]")
        e("s_nop 9")
        for i in range(4):
            if i == 3:
                e("s_nop 3")
            for j in range(8):
                e(f"v_max3_f32 v10, v{MB[i]+2*j}, v{MB[i]+2*j+1}, v10")
        if src == "glb":
            e(f"s_add_u32 s42, s42, {4*TILE_B}")
            e(f"s_cmp_lt_u32 s42, {64*TILE_B}")
            e("s_cbranch_scc1 attn_maxloop")
    def prologue(src):
        e(f"v_mov_b32 v{T}, v{vK1}")
        e(f"v_mov_b32 v{T+1}, v{vK2}")
        e(f"v_mov_b32 v{T+2}, v{vV}")
        ld128(KF[0], T, vK1, 0, src); ld32(K2F[0], T+1, vK2, 0, src)
        ld128(KF[1], T, vK1, TILE_B, src); ld32(K2F[1], T+1, vK2, TILE_B, src)
        e("v_mov_b32 v11, v10")
        e("s_nop 1")
        e("v_permlane32_swap_b32 v10, v11")
        e("v_max_f32 v10, v10, v11")
        for i in range(16):
            e(f"v_sub_f32 v{C+i}, 0, v10")
        for b in range(2):
            e(f"v_mov_b32 v{K2F[b]+1}, 0")
        wait(2, src)
        e(f"v_mfma_f32_32x32x16_bf16 v[{S[0]}:{S[0]+15}], v[{KF[0]}:{KF[0]+3}], v[{Q1}:{Q1+3}], v[{C}:{C+15}]")
        for i in range(16):
            e(f"v_mov_b32 v{O+i}, 0")
        e(f"v_mfma_f32_32x32x8_bf16 v[{S[0]}:{S[0]+15}], v[{K2F[0]}:{K2F[0]+1}], v[{Q2}:{Q2+1}], v[{S[0]}:{S[0]+15}]")
        for i in range(8):
            e(f"v_mov_b32 v{P[1]+i}, 0")
            e(f"v_mov_b32 v{VF[1]+i}, 0")
    def tile(tt, top=None, src="lds"):
        cur = tt & 1; nxt = cur ^ 1
        wait(0, src)
        if top: top()
        if src == "lds":
            ld128(KF[cur], T, 0, (tt+2)*TILE_B, src); ld32(K2F[cur], T+1, 0, (tt+2)*TILE_B, src)
            ld128(VF[cur], T+2, 0, tt*TILE_B, src); ld128(VF[cur]+4, T+2, 0, tt*TILE_B+608, src)
        else:
            e(f"s_add_u32 s35, s42, {2*TILE_B}")
            ld128(KF[cur], 0, vK1, 0, src, "s35"); ld32(K2F[cur], 0, vK2, 0, src, "s35")
            ld128(VF[cur], 0, vV, 0, src, "s42"); ld128(VF[cur]+4, 0, vV, 608, src, "s42")
            e(f"s_add_u32 s42, s42, {TILE_B}")
        m = [f"v_mfma_f32_32x32x16_bf16 v[{S[nxt]}:{S[nxt]+15}], v[{KF[nxt]}:{KF[nxt]+3}], v[{Q1}:{Q1+3}], v[{C}:{C+15}]",
             f"v_mfma_f32_32x32x16_bf16 v[{O}:{O+15}], v[{VF[nxt]}:{VF[nxt]+3}], v[{P[nxt]}:{P[nxt]+3}], v[{O}:{O+15}]",
             f"v_mfma_f32_32x32x8_bf16 v[{S[nxt]}:{S[nxt]+15}], v[{K2F[nxt]}:{K2F[nxt]+1}], v[{Q2}:{Q2+1}], v[{S[nxt]}:{S[nxt]+15}]",
             f"v_mfma_f32_32x32x16_bf16 v[{O}:{O+15}], v[{VF[nxt]+4}:{VF[nxt]+7}], v[{P[nxt]+4}:{P[nxt]+7}], v[{O}:{O+15}]"]
        for g in range(4):
            e(m[g])
            for i in range(4):
                e(f"v_exp_f32 v{S[cur]+4*g+i}, v{S[cur]+4*g+i}")
            for i in range(2):
                j = 2 * g + i
                e(f"v_cvt_pk_bf16_f32 v{P[cur]+j}, v{S[cur]+2*j}, v{S[cur]+2*j+1}")
    maxpass("lds")
    prologue("lds")
    e("s_mov_b32 s42, 0")
    e.ts()
    e.label("attn_loop1")
    def topbar(it, name):
        def f():
            e(f"s_cmp_lg_u32 s42, {it}")
            e(f"s_cbranch_scc1 {name}")
            e("s_barrier")
            e.label(name)
        return f
    for tt in range(8):
        tile(tt, topbar(0, "attn_nobar1") if tt == HB1_TT else None)
    for i in range(3):
        e(f"v_add_u32 v{T+i}, {8*TILE_B}, v{T+i}")
    e("s_add_u32 s42, s42, 1")
    e("s_cmp_lt_u32 s42, 8")
    e("s_cbranch_scc1 attn_loop1")
    e("s_branch attn_done")
    e.label("attn_restart")
    maxpass("glb")
    prologue("glb")
    e("s_mov_b32 s42, 0")
    e.label("attn_loop2")
    for tt in range(2):
        tile(tt, src="glb")
    e(f"s_cmp_lt_u32 s42, {64*TILE_B}")
    e("s_cbranch_scc1 attn_loop2")
    e("s_waitcnt vmcnt(0)")
    e.label("attn_done")
    e.ts()
    e("s_waitcnt lgkmcnt(0)")
    e(f"v_mfma_f32_32x32x16_bf16 v[{O}:{O+15}], v[{VF[1]}:{VF[1]+3}], v[{P[1]}:{P[1]+3}], v[{O}:{O+15}]")
    e(f"v_mfma_f32_32x32x16_bf16 v[{O}:{O+15}], v[{VF[1]+4}:{VF[1]+7}], v[{P[1]+4}:{P[1]+7}], v[{O}:{O+15}]")
    e("s_nop 15")
    e("s_nop 3")
    e("s_cmp_lg_u32 s40, 0")
    e("s_cbranch_scc1 attn_fin")
    e("v_mov_b32 v10, 0x71800000")
    e(f"v_cmp_nlt_f32 vcc, v{O+10}, v10")
    e("s_mov_b64 s[44:45], vcc")
    e("v_mov_b32 v10, 0x207")
    for i in range(10):
        e(f"v_cmp_class_f32 vcc, v{O+i}, v10")
        e("s_or_b64 s[44:45], s[44:45], vcc")
    e("s_cmp_eq_u64 s[44:45], 0")
    e("s_cbranch_scc1 attn_fin")
    e("s_mov_b32 s40, 1")
    e("s_branch attn_restart")
    e.label("attn_fin")
    e(f"v_rcp_f32 v10, v{O+10}")
    e("s_nop 0")
    for i in range(10):
        e(f"v_mul_f32 v{O+i}, v{O+i}, v10")
    for i in range(5):
        e(f"v_cvt_pk_bf16_f32 v{S[0]+i}, v{O+2*i}, v{O+2*i+1}")
    e("v_lshlrev_b32 v10, 3, v3")
    e("v_add_u32 v10, v8, v10")
    e(f"buffer_store_dwordx2 v[{S[0]}:{S[0]+1}], v10, s[24:27], s36 offen")
    e(f"buffer_store_dwordx2 v[{S[0]+2}:{S[0]+3}], v10, s[24:27], s36 offen offset:16")
    e("v_cmp_gt_u32 vcc, 32, v1")
    e("s_and_saveexec_b64 s[44:45], vcc")
    e(f"buffer_store_dword v{S[0]+4}, v8, s[24:27], s36 offen offset:32")
    e.ts()
    e.ts_dump(4, 12, 1)
    e("s_endpgm")
    e.label("attn_helper")
    e.nts = 1
    if "hprio" in EXP: e("s_setprio 1")
    e("s_sub_u32 s41, s32, 8")
    e("s_lshl_b32 s34, s41, 10")
    def kvdma(i4):
        e(f"s_add_u32 m0, s34, {i4*4096}")
        e(f"s_add_u32 s35, s34, {i4*4096}")
        e("buffer_load_dwordx4 v7, s[16:19], s35 offen lds")
    for i4 in range(6):
        kvdma(i4)
    e("s_waitcnt vmcnt(0)")
    e("s_barrier")
    e.ts()
    for i4 in range(6, 37):
        kvdma(i4)
    srd_off(e, 8, 4, 5, WS_QKVA, 2048 * 3456)
    srd_off(e, 20, 4, 5, WS_OA, 2048 * 1152)
    srd(e, 12, 46, 47, 576 * 1152)
    srd(e, 60, 48, 49, 576 * 1152)
    e("s_lshl_b32 s40, s41, 1")
    e("s_add_u32 s40, s40, s33")
    e("s_add_u32 s42, s40, 2")
    e(f"s_mov_b32 s38, {f32bits(CSCALE):#x}")
    e("s_waitcnt vmcnt(0)")
    e("s_barrier")
    e.ts()
    e("s_lshl_b32 s39, s6, 2")
    e("s_add_u32 s39, s39, s41")
    e("s_mul_i32 s39, s39, 5248")
    e("v_min_u32 v24, 40, v1")
    e("v_lshlrev_b32 v24, 7, v24")
    e("buffer_load_dword v155, v24, s[12:15], s39 offen")
    e("buffer_load_dword v155, v24, s[60:63], s39 offen")
    AQ = 20; AK = 30; AV = 70; AO = 110; OA = 128; W = 134; R = 12
    e.label("attn_a_loop")
    e("v_lshlrev_b32 v10, 3, v3")
    e("v_sub_u32 v10, s40, v10")
    e("s_mul_i32 s35, s40, 3456")
    e(f"buffer_load_dwordx4 v[{AQ}:{AQ+3}], v8, s[8:11], s35 offen")
    e(f"buffer_load_dwordx4 v[{AQ+4}:{AQ+7}], v8, s[8:11], s35 offen offset:16")
    e(f"buffer_load_dword v{AQ+8}, v8, s[8:11], s35 offen offset:32")
    for i in range(4):
        e(f"v_subrev_u32 v{R+i}, {2*i}, v10")
        e(f"v_max_i32 v11, 0, v{R+i}")
        e("v_mul_u32_u24 v11, 3456, v11")
        e(f"v_add_u32 v{R+4+i}, v11, v8")
        k = AK + 10 * i; v = AV + 10 * i
        e(f"buffer_load_dwordx4 v[{k}:{k+3}], v{R+4+i}, s[8:11], 0 offen offset:1152")
        e(f"buffer_load_dwordx4 v[{k+4}:{k+7}], v{R+4+i}, s[8:11], 0 offen offset:1168")
        e(f"buffer_load_dword v{k+8}, v{R+4+i}, s[8:11], 0 offen offset:1184")
        e(f"buffer_load_dwordx4 v[{v}:{v+3}], v{R+4+i}, s[8:11], 0 offen offset:2304")
        e(f"buffer_load_dwordx4 v[{v+4}:{v+7}], v{R+4+i}, s[8:11], 0 offen offset:2320")
        e(f"buffer_load_dword v{v+8}, v{R+4+i}, s[8:11], 0 offen offset:2336")
    e("s_waitcnt vmcnt(0)")
    L = W
    for i in range(4):
        k = AK + 10 * i
        e(f"v_dot2_f32_bf16 v{L+i}, v{AQ}, v{k}, 0")
    for j in range(1, 9):
        for i in range(4):
            k = AK + 10 * i
            e(f"v_dot2_f32_bf16 v{L+i}, v{AQ+j}, v{k+j}, v{L+i}")
    e(f"v_mov_b32 v{W+4}, 0xff800000")
    e("s_nop 2")
    for i in range(4):
        e(f"v_mul_f32 v{L+i}, s38, v{L+i}")
        e(f"v_cmp_gt_i32 vcc, 0, v{R+i}")
        e("s_nop 1")
        e(f"v_cndmask_b32 v{L+i}, v{L+i}, v{W+4}, vcc")
    M = W + 5
    e(f"v_max_f32 v{M}, v{L}, v{L+1}")
    e(f"v_max3_f32 v{M}, v{L+2}, v{L+3}, v{M}")
    e(f"v_mov_b32 v{M+1}, v{M}")
    e("s_nop 1")
    e(f"v_permlane32_swap_b32 v{M}, v{M+1}")
    e(f"v_max_f32 v{M}, v{M}, v{M+1}")
    for i in range(4):
        e(f"v_sub_f32 v{L+i}, v{L+i}, v{M}")
    for i in range(4):
        e(f"v_exp_f32 v{L+i}, v{L+i}")
    e("s_nop 0")
    e(f"v_add_f32 v{M+2}, v{L}, v{L+1}")
    e(f"v_add_f32 v{M+3}, v{L+2}, v{L+3}")
    e(f"v_add_f32 v{M+2}, v{M+2}, v{M+3}")
    e(f"v_mov_b32 v{M+3}, v{M+2}")
    e("s_nop 1")
    e(f"v_permlane32_swap_b32 v{M+2}, v{M+3}")
    e(f"v_add_f32 v{M+2}, v{M+2}, v{M+3}")
    e(f"v_rcp_f32 v{M+2}, v{M+2}")
    e("s_nop 0")
    PL = W + 10; PH = W + 14
    for i in range(4):
        e(f"v_mul_f32 v{L+i}, v{L+i}, v{M+2}")
    for i in range(4):
        e(f"v_cvt_pk_bf16_f32 v{PL+i}, v{L+i}, 0")
        e(f"v_cvt_pk_bf16_f32 v{PH+i}, 0, v{L+i}")
    for i in range(4):
        v = AV + 10 * i
        for j in range(9):
            if i == 0:
                e(f"v_dot2_f32_bf16 v{AO+2*j}, v{v+j}, v{PL+i}, 0")
                e(f"v_dot2_f32_bf16 v{AO+2*j+1}, v{v+j}, v{PH+i}, 0")
            else:
                e(f"v_dot2_f32_bf16 v{AO+2*j}, v{v+j}, v{PL+i}, v{AO+2*j}")
                e(f"v_dot2_f32_bf16 v{AO+2*j+1}, v{v+j}, v{PH+i}, v{AO+2*j+1}")
    e("s_nop 2")
    e(f"v_mov_b32 v{W}, v{AO+16}")
    e(f"v_mov_b32 v{W+1}, v{AO+17}")
    e("s_nop 2")
    for d in range(8):
        e(f"v_permlane32_swap_b32 v{AO+d}, v{AO+d+8}")
    e(f"v_permlane32_swap_b32 v{AO+16}, v{W}")
    e(f"v_permlane32_swap_b32 v{AO+17}, v{W+1}")
    for d in range(8):
        e(f"v_add_f32 v{AO+d}, v{AO+d}, v{AO+d+8}")
    e(f"v_add_f32 v{AO+16}, v{AO+16}, v{W}")
    e(f"v_add_f32 v{AO+17}, v{AO+17}, v{W+1}")
    for i in range(4):
        e(f"v_cvt_pk_bf16_f32 v{OA+i}, v{AO+2*i}, v{AO+2*i+1}")
    e(f"v_cvt_pk_bf16_f32 v{OA+4}, v{AO+16}, v{AO+17}")
    e("s_mul_i32 s36, s40, 1152")
    e(f"buffer_store_dwordx4 v[{OA}:{OA+3}], v9, s[20:23], s36 offen")
    e(f"buffer_store_dword v{OA+4}, v8, s[20:23], s36 offen offset:32")
    e("s_add_u32 s40, s40, 1")
    e("s_cmp_lt_u32 s40, s42")
    e("s_cbranch_scc1 attn_a_loop")
    e.ts()
    e.ts_dump(4, 12, 1)
    e.label("attn_exit")
    e("s_endpgm")
    return 157696

def main():
    global INSTR
    INSTR = len(sys.argv) > 2 and sys.argv[2] == "instr"
    EXP.update(sys.argv[3:])
    global PFD, PLOOK
    for x in sys.argv[3:]:
        if x.startswith("pf="): PFD = int(x[3:])
        if x.startswith("pl="): PLOOK = int(x[3:])
        if x.startswith("tp="):
            global TPUB_, TPOLL_, TB11_
            TPUB_, TPOLL_, TB11_ = [int(y) for y in x[3:].split(",")]
    e = E()
    l1 = gen_proj(e)
    l2 = gen_attn(e)
    l3 = gen_out(e)
    ref = open(f"cdna_kernels/{NAME}.s.ref").read().splitlines()
    head = [l for l in ref if l.startswith(";") and "@launch" not in l and "Override" not in l and "grid=ceil" not in l]
    out = "\n".join(head) + "\n"
    out += f"; @launch kernel=proj_kernel grid=(256,1,1) block=(512,1,1) lds={l1}\n"
    out += f"; @launch kernel=attn_kernel grid=(256,1,1) block=(768,1,1) lds={l2}\n"
    out += f"; @launch kernel=outp_kernel grid=(192,1,1) block=(512,1,1) lds={l3}\n"
    out += '.amdgcn_target "amdgcn-amd-amdhsa--gfx950"\n.text\n'
    out += e.text()
    out += '.section .rodata,"a"\n.p2align 6\n'
    out += kd("proj_kernel", 144)
    out += ".p2align 6\n" + kd("attn_kernel", 160)
    out += ".p2align 6\n" + kd("outp_kernel", 112)
    path = sys.argv[1] if len(sys.argv) > 1 else f"cdna_kernels/{NAME}.s"
    open(path, "w").write(out)

main()
```

```python
files = []
def make(name, nload, stride_wave, pat):
    s = f"""; @launch grid=(256,1,1) block=(256,1,1) lds=0
.amdgcn_target "amdgcn-amd-amdhsa--gfx950"
.text
.globl mb_kernel
.p2align 8
.type mb_kernel,@function
mb_kernel:
    s_load_dwordx2 s[4:5], s[0:1], 0
    s_load_dwordx2 s[6:7], s[0:1], 8
    s_waitcnt lgkmcnt(0)
    s_mov_b32 s8, s4
    s_mov_b32 s9, s5
    s_mov_b32 s10, 0x100000
    s_mov_b32 s11, 0x00020000
    s_mov_b32 s12, s6
    s_mov_b32 s13, s7
    s_mov_b32 s14, 0x4000000
    s_mov_b32 s15, 0x00020000
    v_and_b32 v4, 63, v0
    v_lshrrev_b32 v5, 6, v0
    s_nop 0
    v_readfirstlane_b32 s27, v5
    s_lshl_b32 s25, s2, 2
    s_add_u32 s25, s25, s27
    s_mul_i32 s25, s25, {stride_wave}
"""
    if pat == "lin":
        s += "    v_lshlrev_b32 v3, 4, v4\n"
        step = 1024
    else:
        s += "    v_lshrrev_b32 v5, 3, v4\n    v_mul_u32_u24 v5, 1152, v5\n    v_and_b32 v3, 7, v4\n    v_lshlrev_b32 v3, 4, v3\n    v_add_u32 v3, v3, v5\n"
        step = 8 * 1152
    s += "    s_memtime s[16:17]\n    s_waitcnt lgkmcnt(0)\n"
    for i in range(nload):
        s += f"    s_add_u32 s24, s25, {i*step}\n"
        s += f"    buffer_load_dwordx4 v[{8+4*(i%16)}:{11+4*(i%16)}], v3, s[12:15], s24 offen\n"
    s += """    s_waitcnt vmcnt(0)
    s_memtime s[18:19]
    s_waitcnt lgkmcnt(0)
    s_sub_u32 s18, s18, s16
    v_lshrrev_b32 v1, 6, v0
    s_mul_i32 s21, s2, 4
    v_add_u32 v1, s21, v1
    v_lshlrev_b32 v1, 2, v1
    v_mov_b32 v2, s18
    v_and_b32 v3, 63, v0
    v_cmp_eq_u32 vcc, 0, v3
    s_and_saveexec_b64 s[22:23], vcc
    buffer_store_dword v2, v1, s[8:11], 0 offen
    s_endpgm
.section .rodata,"a"
.p2align 6
.amdhsa_kernel mb_kernel
  .amdhsa_next_free_vgpr 80
  .amdhsa_next_free_sgpr 32
  .amdhsa_accum_offset 80
  .amdhsa_group_segment_fixed_size 0
  .amdhsa_kernarg_size 16
  .amdhsa_user_sgpr_count 2
  .amdhsa_user_sgpr_kernarg_segment_ptr 1
  .amdhsa_system_sgpr_workgroup_id_x 1
.end_amdhsa_kernel
"""
    open(name, "w").write(s); files.append(name)
make("mb_c_lin1.s", 1, 1024, "lin")
make("mb_c_lin8.s", 8, 8192, "lin")
make("mb_c_lin32.s", 32, 32768, "lin")
make("mb_c_slab1.s", 1, 9216, "slab")
make("mb_c_slab4.s", 4, 36864, "slab")
print(" ".join(files))
```

```python
import gen_mb10, re
s=open("mb_c_lin8.s").read()
s2=s.replace("    s_lshl_b32 s25, s2, 2\n","    s_add_u32 s26, s2, 1\n    s_and_b32 s26, s26, 255\n    s_lshl_b32 s25, s26, 2\n")
open("mb_c_lin8_sh.s","w").write(s2)
s=open("mb_c_lin32.s").read()
s2=s.replace("    s_lshl_b32 s25, s2, 2\n","    s_add_u32 s26, s2, 1\n    s_and_b32 s26, s26, 255\n    s_lshl_b32 s25, s26, 2\n")
open("mb_c_lin32_sh.s","w").write(s2)
```

```python
import struct, sys, math

NAME = "concat_heads__sliding_local_dilated__grouped_kv_mqa__prompt"

WS_QKVA = 0x000000
WS_QB   = 0x700000
WS_KV   = 0xA00000
WS_FLAG = 0xA80000
WS_OA   = 0xB00000
WS_OB   = 0xE00000
TILE_B  = 2432
KVIMG_B = 64 * TILE_B

def f32bits(x):
    return struct.unpack("<I", struct.pack("<f", x))[0]

CSCALE = (18 ** -0.5) * math.log2(math.e)

INSTR = False
EXP = set()
PFD = 5
PLOOK = 2
HB1_TT = 6
KVLEAD = 11
WARM_AT = 9
TPUB_ = 46
TPOLL_ = 50
TB11_ = 52
WS_DBG = 0x1200000
class E:
    def __init__(self):
        self.l = []
        self.nts = 0
    def ts_reset(self):
        self.nts = 0
        if INSTR: self("s_memrealtime s[100:101]")
    def ts(self):
        if not INSTR: return
        k = self.nts; self.nts += 1
        self(f"s_memtime s[{64+2*k}:{65+2*k}]")
    def ts_dump(self, wsreg, waves_per_wg, kid):
        if not INSTR: return
        n = self.nts
        self(f"s_memrealtime s[96:97]")
        self("s_waitcnt lgkmcnt(0)")
        self("s_mov_b64 exec, -1")
        self(f"s_add_u32 s92, s{wsreg}, {WS_DBG + kid*0x100000}")
        self(f"s_addc_u32 s93, s{wsreg+1}, 0")
        self("s_mov_b32 s94, 0x100000")
        self("s_mov_b32 s95, 0x00020000")
        self(f"s_mul_i32 s98, s2, {waves_per_wg}")
        self("s_add_u32 s98, s98, s32")
        self("s_lshl_b32 s98, s98, 6")
        self("v_mov_b32 v1, 0")
        for k in range(n):
            self(f"v_mov_b32 v2, s{64+2*k}")
            self(f"buffer_store_dword v2, v1, s[92:95], s98 offen offset:{4*k}")
        self("v_mov_b32 v2, s96")
        self(f"buffer_store_dword v2, v1, s[92:95], s98 offen offset:60")
        self("v_mov_b32 v2, s100")
        self(f"buffer_store_dword v2, v1, s[92:95], s98 offen offset:56")
    def __call__(self, s):
        self.l.append("    " + s)
    def label(self, s):
        self.l.append(s + ":")
    def c(self, s):
        self.l.append("    ; " + s)
    def text(self):
        return "\n".join(self.l) + "\n"

def srd(e, d, lo, hi, nbytes):
    e(f"s_mov_b32 s{d}, s{lo}")
    e(f"s_mov_b32 s{d+1}, s{hi}")
    e(f"s_mov_b32 s{d+2}, {nbytes}")
    e(f"s_mov_b32 s{d+3}, 0x00020000")

def srd_off(e, d, lo, hi, off, nbytes):
    e(f"s_add_u32 s{d}, s{lo}, {off}")
    e(f"s_addc_u32 s{d+1}, s{hi}, 0")
    e(f"s_mov_b32 s{d+2}, {nbytes}")
    e(f"s_mov_b32 s{d+3}, 0x00020000")

def gen_gemm(e, pfx, NT, NSLOT, special=False):
    P = PLOOK
    XB = 16384
    SLOT = XB + NT * 4096
    NCH = 9
    XS_ = 6; XRS = 24; WRS = 16; WL = 2
    NQ = NT - 2 if special else NT
    TK = NT - 2; TV = NT - 1
    D = 4 + NQ + (8 if special else 0)
    vX = [2, 3, 4, 5]; vW = 6; vKV = 7
    vXr = [8, 9, 10, 11]; vWr = 12
    F = [16, 16 + 4 + 4 * NT]
    ACC = 64
    e.c(f"---- gemm body {pfx} NT={NT} NSLOT={NSLOT} special={special}")
    e.ts_reset()
    e.ts()
    e("v_and_b32 v1, 63, v0")
    e("v_lshrrev_b32 v13, 6, v0")
    e("s_nop 0")
    e("v_readfirstlane_b32 s32, v13")
    e("s_nop 3")
    e("s_cmp_lt_u32 s32, 4")
    e(f"s_cbranch_scc1 {pfx}_compute")
    e("s_sub_u32 s51, s32, 4")
    e("v_lshrrev_b32 v13, 3, v1")
    e("v_lshrrev_b32 v14, 4, v1")
    e("v_and_b32 v15, 7, v1")
    e("s_lshl_b32 s40, s51, 5")
    e("s_add_u32 s40, s40, s36")
    e("s_movk_i32 s41, 1152")
    for j in range(4):
        e(f"v_add_u32 v16, {4*j}, v14")
        e("v_and_b32 v16, 7, v16")
        e("v_xor_b32 v16, v16, v15")
        e("v_lshlrev_b32 v16, 4, v16")
        e(f"v_add_u32 v17, {8*j}, v13")
        e("v_add_u32 v17, s40, v17")
        e("v_mul_lo_u32 v17, v17, s41")
        e(f"v_add_u32 v{vX[j]}, v16, v17")
    e("v_lshrrev_b32 v16, 2, v1")
    e("s_lshl_b32 s40, s51, 4")
    e("v_add_u32 v16, s40, v16")
    e("v_mul_lo_u32 v16, v16, s33")
    e("v_and_b32 v17, 3, v1")
    e("v_lshlrev_b32 v17, 4, v17")
    e("v_add_u32 v16, v16, v17")
    e(f"v_add_u32 v{vW}, s37, v16")
    if special:
        e("v_add_u32 v16, s40, v14")
        e("v_mul_u32_u24 v16, 36, v16")
        e("v_and_b32 v17, 15, v1")
        e("v_min_u32 v17, 8, v17")
        e("v_lshlrev_b32 v17, 2, v17")
        e(f"v_add_u32 v{vKV}, v16, v17")
    e("s_lshl_b32 s48, s33, 6")
    e("s_mov_b32 s46, s50")
    e("s_lshl_b32 s44, s51, 12")
    e("s_lshl_b32 s45, s51, 10")
    e(f"s_add_u32 s45, s45, {XB}")

    def dma_chunk(n):
        sb = (n % NSLOT) * SLOT
        e("s_lshl_b32 s41, s46, 7")
        e("s_mul_i32 s42, s46, s48")
        if special:
            e("s_mul_i32 s43, s46, 2304")
        e("s_add_u32 s46, s46, 1")
        e(f"s_cmp_eq_u32 s46, {NCH}")
        e("s_cselect_b32 s46, 0, s46")
        if "nodma" in EXP: return
        for j in range(4):
            e(f"s_add_u32 m0, s44, {sb + j*1024}")
            e("s_nop 0")
            e(f"buffer_load_dwordx4 v{vX[j]}, s[8:11], s41 offen lds")
        for t in range(NQ):
            e(f"s_add_u32 m0, s45, {sb + t*4096 - 64*t}")
            e("s_nop 0")
            e(f"buffer_load_dwordx4 v{vW}, s[12:15], s42 offen offset:{64*t} lds")
        if special:
            for (t, sr) in ((TK, 20), (TV, 24)):
                for q in range(4):
                    e(f"s_add_u32 m0, s45, {sb + t*4096 + q*256 - 144*q}")
                    e("s_nop 0")
                    e(f"buffer_load_dword v{vKV}, s[{sr}:{sr+3}], s43 offen offset:{144*q} lds")
    for n in range(P):
        dma_chunk(n)
    for c in range(NCH + 1):
        issued = min(c - 1 + P, NCH - 1)
        allowed = max(issued - c, 0)
        e(f"s_waitcnt vmcnt({allowed*D})")
        e("s_barrier")
        if c + P <= NCH - 1:
            dma_chunk(c + P)
        if NT == 2 and c == WARM_AT and "k1warm" in EXP:
            e("s_load_dwordx4 s[40:43], s[0:1], 0")
            e("s_lshr_b32 s46, s2, 3")
            e("s_lshl_b32 s46, s46, 2")
            e("s_add_u32 s46, s46, s51")
            e("v_lshlrev_b32 v13, 7, v1")
            e("s_waitcnt lgkmcnt(0)")
            e("s_mov_b32 s52, s42")
            e("s_mov_b32 s53, s43")
            e(f"s_mov_b32 s54, {576*3456}")
            e("s_mov_b32 s55, 0x00020000")
            e("s_lshl_b32 s47, s46, 13")
            for i in range(4):
                e(f"s_add_u32 s49, s47, {i*80*8192}")
                e("buffer_load_dword v14, v13, s[52:55], s49 offen")
            e("s_mov_b32 s52, s40")
            e("s_mov_b32 s53, s41")
            e(f"s_mov_b32 s54, {2048*1152}")
            e("s_and_b32 s47, s2, 7")
            e("s_mul_i32 s47, s47, 294912")
            e("s_mul_i32 s49, s46, 3712")
            e("s_add_u32 s49, s49, s47")
            e("v_min_u32 v13, 28, v1")
            e("v_lshlrev_b32 v13, 7, v13")
            e("buffer_load_dword v14, v13, s[52:55], s49 offen")
    e("s_endpgm")
    e.label(f"{pfx}_compute")
    PF = PFD
    e("v_bfe_u32 v13, v1, 2, 3")
    e(f"s_mul_i32 s40, s6, {XRS}")
    e("s_add_u32 s40, s40, s36")
    e(f"s_mul_i32 s41, s32, {XRS//4}")
    e("s_add_u32 s40, s40, s41")
    e("v_add_u32 v14, s40, v13")
    e("v_mul_u32_u24 v3, 1152, v14")
    e("v_bfe_u32 v13, v1, 4, 2")
    e(f"v_min_u32 v13, {WRS//4-1}, v13")
    e(f"s_mul_i32 s40, s3, {WRS}")
    e(f"s_mul_i32 s41, s32, {WRS//4}")
    e("s_add_u32 s40, s40, s41")
    e("v_add_u32 v13, s40, v13")
    e("v_mul_lo_u32 v13, v13, s33")
    e("v_bfe_u32 v14, v1, 2, 2")
    e(f"v_min_u32 v14, {WL-1}, v14")
    e("v_lshlrev_b32 v14, 7, v14")
    e("v_add_u32 v13, v13, v14")
    e("v_add_u32 v4, s37, v13")
    e("s_lshl_b32 s48, s33, 6")
    e(f"s_movk_i32 s54, {128*P}")
    e(f"s_mul_i32 s55, s48, {P}")
    def pf():
        if "pf" not in EXP: return
        e("buffer_load_dword v2, v3, s[8:11], s54 offen")
        e("buffer_load_dword v2, v4, s[12:15], s55 offen")
        e("s_add_u32 s54, s54, 128")
        e("s_add_u32 s55, s55, s48")
    for _ in range(P, PF):
        pf()
    e("v_and_b32 v13, 31, v1")
    e("v_lshrrev_b32 v14, 5, v1")
    e("v_lshrrev_b32 v15, 1, v13")
    e("v_and_b32 v15, 7, v15")
    e("v_lshlrev_b32 v16, 7, v13")
    e("s_lshl_b32 s40, s32, 12")
    e("v_add_u32 v16, s40, v16")
    e("v_lshlrev_b32 v17, 2, v14")
    for j in range(4):
        e(f"v_add_u32 v18, {j}, v17")
        e("v_xor_b32 v18, v18, v15")
        e("v_lshlrev_b32 v18, 4, v18")
        e(f"v_add_u32 v{vXr[j]}, v16, v18")
    e("v_lshlrev_b32 v16, 11, v14")
    e("v_bfe_u32 v17, v1, 2, 2")
    e("v_lshlrev_b32 v17, 6, v17")
    e("v_add_u32 v16, v16, v17")
    e("v_bfe_u32 v17, v1, 4, 1")
    e("v_lshlrev_b32 v17, 5, v17")
    e("v_add_u32 v16, v16, v17")
    e("v_and_b32 v17, 3, v1")
    e("v_lshlrev_b32 v17, 3, v17")
    e("v_add_u32 v16, v16, v17")
    e(f"v_add_u32 v{vWr}, {XB}, v16")
    for i in range(NT * 16):
        e(f"v_mov_b32 v{ACC+i}, 0")
    e(f"s_mov_b32 s7, {SLOT}")

    def read_list(j, fb):
        b = F[fb]
        l = [f"ds_read_b128 v[{b}:{b+3}], v{vXr[j]}"]
        for t in range(NT):
            r = b + 4 + 4 * t
            l.append(f"ds_read_b64_tr_b16 v[{r}:{r+1}], v{vWr} offset:{t*4096 + j*512}")
            l.append(f"ds_read_b64_tr_b16 v[{r+2}:{r+3}], v{vWr} offset:{t*4096 + j*512 + 256}")
        if "noread" in EXP: l = []
        return l
    def mfma(fb, t):
        if "nomfma" in EXP: return
        b = F[fb]
        r = b + 4 + 4 * t
        a = ACC + 16 * t
        if special and t == TV:
            e(f"v_mfma_f32_32x32x16_bf16 v[{a}:{a+15}], v[{b}:{b+3}], v[{r}:{r+3}], v[{a}:{a+15}]")
        else:
            e(f"v_mfma_f32_32x32x16_bf16 v[{a}:{a+15}], v[{r}:{r+3}], v[{b}:{b+3}], v[{a}:{a+15}]")
    NR = 1 + 2 * NT
    def step(fb, nxt_reads, first_after=0):
        per = {}
        k = 0
        slots = list(range(first_after, NT - 1)) or [first_after]
        q = list(nxt_reads)
        chunk = -(-len(q) // min(len(slots), 3))
        issued_new = 0
        for t in range(NT):
            if first_after == 0:
                allowed = NR - (2 * t + 3) + issued_new
                e(f"s_waitcnt lgkmcnt({min(allowed, 15)})")
            mfma(fb, t)
            if t == 0 and first_after == 1:
                e("s_barrier")
            if t >= first_after - (1 if first_after == 1 else 0) and q:
                for _ in range(min(chunk, len(q))):
                    e(q.pop(0)); issued_new += 1
        assert not q
    e("s_mov_b32 s40, 0")
    e("s_mov_b32 s49, 0")
    e.ts()
    e("s_barrier")
    e.ts()
    for r in read_list(0, 0): e(r)
    e.label(f"{pfx}_loop")
    pf()
    step(0, read_list(1, 1))
    step(1, read_list(2, 0))
    step(0, read_list(3, 1))
    e("s_add_u32 s49, s49, 1")
    e(f"s_cmp_eq_u32 s49, {NSLOT}")
    e(f"s_cselect_b32 s47, {-(NSLOT-1)*SLOT}, s7")
    e("s_cselect_b32 s49, 0, s49")
    for j in range(4):
        e(f"v_add_u32 v{vXr[j]}, s47, v{vXr[j]}")
    e(f"v_add_u32 v{vWr}, s47, v{vWr}")
    e("s_add_u32 s40, s40, 1")
    e(f"s_cmp_lt_u32 s40, {NCH}")
    e("s_waitcnt lgkmcnt(0)")
    step(1, read_list(0, 0), first_after=1)
    e(f"s_cbranch_scc1 {pfx}_loop")
    e.ts()
    e("s_waitcnt lgkmcnt(0)")
    e("s_nop 15")
    e("s_nop 3")
    NTQ = NQ
    RS = 80
    TR = 32 * RS
    e("v_and_b32 v13, 31, v1")
    e("v_lshrrev_b32 v14, 5, v1")
    e(f"v_mul_u32_u24 v15, {RS}, v13")
    e("v_lshlrev_b32 v16, 3, v14")
    e("v_add_u32 v15, v15, v16")
    e(f"s_mul_i32 s40, s32, {NT*TR}")
    e("v_add_u32 v15, s40, v15")
    e("v_lshrrev_b32 v16, 2, v1")
    e(f"v_mul_u32_u24 v17, {RS}, v16")
    e("v_and_b32 v18, 3, v1")
    e("v_lshlrev_b32 v18, 4, v18")
    e("v_add_u32 v17, v17, v18")
    e("v_add_u32 v17, s40, v17")
    e("s_lshl_b32 s41, s32, 5")
    e("s_add_u32 s41, s41, s36")
    e("v_add_u32 v16, s41, v16")
    e("v_mul_lo_u32 v16, v16, s34")
    e("v_add_u32 v16, v16, v18")
    e("v_add_u32 v16, s38, v16")
    e("s_lshl_b32 s42, s34, 4")
    for t in range(NTQ):
        a = ACC + 16 * t
        for i in range(8):
            e(f"v_cvt_pk_bf16_f32 v{20+i}, v{a+2*i}, v{a+2*i+1}")
        for g in range(4):
            e(f"ds_write_b64 v15, v[{20+2*g}:{21+2*g}] offset:{t*TR + g*16}")
    e("s_waitcnt lgkmcnt(0)")
    for t in range(NTQ):
        e(f"ds_read_b128 v[{20+8*t}:{23+8*t}], v17 offset:{t*TR}")
        e(f"ds_read_b128 v[{24+8*t}:{27+8*t}], v17 offset:{t*TR + 16*RS}")
    for t in range(NTQ):
        if t == NTQ - 1 and not special:
            e(f"s_cmp_lt_u32 s39, {NTQ}")
            e(f"s_cbranch_scc1 {pfx}_skiplast")
        e(f"s_waitcnt lgkmcnt({2*(NTQ-1-t)})")
        fl = " sc1" if NT == 5 else ""
        e(f"buffer_store_dwordx4 v[{20+8*t}:{23+8*t}], v16, s[16:19], 0 offen offset:{64*t}{fl}")
        e(f"buffer_store_dwordx4 v[{24+8*t}:{27+8*t}], v16, s[16:19], s42 offen offset:{64*t}{fl}")
    if not special:
        e.label(f"{pfx}_skiplast")
    if special:
        e("s_lshr_b32 s43, s41, 5")
        e(f"s_mul_i32 s43, s43, {TILE_B}")
        a = ACC + 16 * TK
        for i in range(10):
            e(f"v_mul_f32 v{a+i}, s35, v{a+i}")
        for i in range(5):
            e(f"v_cvt_pk_bf16_f32 v{48+i}, v{a+2*i}, v{a+2*i+1}")
        e("v_lshlrev_b32 v56, 4, v13")
        e("v_lshlrev_b32 v57, 3, v14")
        e("v_add_u32 v56, v56, v57")
        e("buffer_store_dwordx2 v[48:49], v56, s[28:31], s43 offen")
        e("buffer_store_dwordx2 v[50:51], v56, s[28:31], s43 offen offset:512")
        e("v_lshlrev_b32 v57, 2, v13")
        e("v_cmp_gt_u32 vcc, 32, v1")
        e("s_and_saveexec_b64 s[52:53], vcc")
        e("buffer_store_dword v52, v57, s[28:31], s43 offen offset:1024")
        e("s_mov_b64 exec, s[52:53]")
        a = ACC + 16 * TV
        for i in range(8):
            e(f"v_cvt_pk_bf16_f32 v{40+i}, v{a+2*i}, v{a+2*i+1}")
        e("v_mov_b32 v58, 0x3f803f80")
        e("v_cmp_eq_u32 vcc, 18, v13")
        e("s_nop 1")
        for i in range(8):
            e(f"v_cndmask_b32 v{40+i}, v{40+i}, v58, vcc")
        e("v_cmp_ne_u32 vcc, 19, v13")
        e("s_nop 1")
        for i in range(8):
            e(f"v_cndmask_b32 v{40+i}, 0, v{40+i}, vcc")
        e("v_lshlrev_b32 v56, 4, v13")
        e("v_mul_u32_u24 v57, 320, v14")
        e("v_add_u32 v56, v56, v57")
        e("v_cmp_gt_u32 vcc, 20, v13")
        e("s_and_saveexec_b64 s[52:53], vcc")
        e("buffer_store_dwordx4 v[40:43], v56, s[28:31], s43 offen offset:1152")
        e("buffer_store_dwordx4 v[44:47], v56, s[28:31], s43 offen offset:1792")
        e("s_mov_b64 exec, s[52:53]")
    e.ts()
    e("s_waitcnt vmcnt(0)") if INSTR else None
    e.ts()
    e.ts_dump(4, 8, 0 if NT != 3 else 2)
    e("s_endpgm")
    return NSLOT * SLOT

def kd(name, vgpr, sgpr=64):
    if INSTR: sgpr = 102
    acc = (vgpr + 3) // 4 * 4
    return f""".amdhsa_kernel {name}
  .amdhsa_next_free_vgpr {vgpr}
  .amdhsa_next_free_sgpr {sgpr}
  .amdhsa_accum_offset {acc}
  .amdhsa_group_segment_fixed_size 0
  .amdhsa_kernarg_size 88
  .amdhsa_user_sgpr_count 2
  .amdhsa_user_sgpr_kernarg_segment_ptr 1
  .amdhsa_system_sgpr_workgroup_id_x 1
.end_amdhsa_kernel
"""

def header(e, name):
    e.l.append(f".globl {name}")
    e.l.append(".p2align 8")
    e.l.append(f".type {name},@function")
    e.label(name)

def stagger(e, a, b):
    if "nostag" in EXP:
        e("s_mov_b32 s50, 0"); return
    e(f"s_lshl_b32 s50, {b}, 1")
    e(f"s_add_u32 s50, s50, {a}")
    e("s_cmp_ge_u32 s50, 9")
    e("s_cselect_b32 s51, 9, 0")
    e("s_sub_u32 s50, s50, s51")

def gen_proj(e):
    header(e, "proj_kernel")
    e("s_cmp_ge_u32 s2, 256")
    e("s_cbranch_scc1 proj_exit")
    e("s_load_dwordx2 s[52:53], s[0:1], 0")
    e("s_load_dwordx2 s[54:55], s[0:1], 8")
    e("s_load_dwordx2 s[56:57], s[0:1], 24")
    e("s_load_dwordx2 s[58:59], s[0:1], 32")
    e("s_load_dwordx2 s[60:61], s[0:1], 40")
    e("s_load_dwordx2 s[62:63], s[0:1], 48")
    e("s_load_dwordx2 s[4:5], s[0:1], 80")
    e("s_and_b32 s6, s2, 7")
    e("s_lshr_b32 s7, s2, 3")
    e("s_and_b32 s3, s7, 7")
    e("s_lshr_b32 s7, s7, 3")
    e("s_waitcnt lgkmcnt(0)")
    e("s_cmp_lt_u32 s6, 2")
    e("s_cbranch_scc1 proj_B")
    e("s_sub_u32 s6, s6, 2")
    e("s_and_b32 s40, s6, 1")
    e("s_lshl_b32 s40, s40, 3")
    e("s_add_u32 s40, s40, s3")
    e("s_lshr_b32 s41, s6, 1")
    e("s_lshl_b32 s41, s41, 2")
    e("s_add_u32 s41, s41, s7")
    e("s_cmp_ge_u32 s41, 11")
    e("s_cbranch_scc1 proj_exit")
    srd(e, 8, 52, 53, 2048 * 1152)
    srd(e, 12, 54, 55, 576 * 3456)
    srd_off(e, 16, 4, 5, WS_QKVA, 2048 * 3456)
    e("s_movk_i32 s33, 3456")
    e("s_movk_i32 s34, 3456")
    e("s_mov_b32 s35, 1.0")
    e("s_lshl_b32 s36, s40, 7")
    e("s_mul_i32 s37, s41, 320")
    e("s_mov_b32 s38, s37")
    e("s_cmp_eq_u32 s41, 10")
    e("s_cselect_b32 s39, 4, 5")
    stagger(e, "s3", "s7")
    e("s_mov_b32 s6, s7")
    e("s_branch proj_generic")
    e.label("proj_B")
    e("s_lshl_b32 s40, s6, 3")
    e("s_add_u32 s40, s40, s3")
    srd(e, 8, 56, 57, 2048 * 1152)
    srd(e, 12, 58, 59, 576 * 1152)
    srd_off(e, 16, 4, 5, WS_QB, 2048 * 1152)
    e("s_movk_i32 s33, 1152")
    e("s_movk_i32 s34, 1152")
    e(f"s_mov_b32 s35, {f32bits(CSCALE):#x}")
    e("s_lshl_b32 s36, s40, 7")
    e("s_mul_i32 s37, s7, 320")
    e("s_mov_b32 s38, s37")
    e("s_mov_b32 s39, 5")
    stagger(e, "s3", "s7")
    e("s_mov_b32 s6, s7")
    e("s_cmp_eq_u32 s7, 3")
    e("s_cbranch_scc1 proj_special")
    e.label("proj_generic")
    lds = gen_gemm(e, "pg", 5, 4)
    e.label("proj_special")
    srd(e, 20, 60, 61, 576 * 36)
    srd(e, 24, 62, 63, 576 * 36)
    srd_off(e, 28, 4, 5, WS_KV, KVIMG_B)
    gen_gemm(e, "ps", 5, 4, special=True)
    e.label("proj_exit")
    e("s_endpgm")
    return lds

def gen_out(e):
    header(e, "outp_kernel")
    e("s_cmp_ge_u32 s2, 192")
    e("s_cbranch_scc1 outp_exit")
    e("s_load_dwordx2 s[52:53], s[0:1], 16")
    e("s_load_dwordx2 s[54:55], s[0:1], 56")
    e("s_load_dwordx2 s[56:57], s[0:1], 64")
    e("s_load_dwordx2 s[4:5], s[0:1], 80")
    e("s_and_b32 s6, s2, 7")
    e("s_lshr_b32 s7, s2, 3")
    e("s_and_b32 s3, s7, 1")
    e("s_bfe_u32 s41, s7, 0x10001")
    e("s_lshl_b32 s40, s6, 1")
    e("s_add_u32 s40, s40, s41")
    e("s_lshr_b32 s41, s7, 2")
    e("s_waitcnt lgkmcnt(0)")
    e(f"s_mov_b32 s42, {WS_OB}")
    e("s_cmp_eq_u32 s3, 0")
    e(f"s_cselect_b32 s42, {WS_OA}, s42")
    e("s_cselect_b32 s58, s52, s54")
    e("s_cselect_b32 s59, s53, s55")
    e("s_add_u32 s8, s4, s42")
    e("s_addc_u32 s9, s5, 0")
    e(f"s_mov_b32 s10, {2048*1152}")
    e("s_mov_b32 s11, 0x00020000")
    srd(e, 12, 58, 59, 576 * 1152)
    srd(e, 16, 56, 57, 2048 * 2304)
    e("s_movk_i32 s33, 1152")
    e("s_movk_i32 s34, 2304")
    e("s_mov_b32 s35, 1.0")
    e("s_lshl_b32 s36, s40, 7")
    e("s_mul_i32 s37, s41, 192")
    e("s_mul_i32 s38, s3, 1152")
    e("s_add_u32 s38, s38, s37")
    e("s_mov_b32 s39, 3")
    e("s_and_b32 s40, s40, 1")
    stagger(e, "s41", "s40")
    e("s_mov_b32 s6, s41")
    e("s_mov_b32 s3, s40")
    lds = gen_gemm(e, "og", 3, 5)
    e.label("outp_exit")
    e("s_endpgm")
    return lds

def gen_attn(e):
    header(e, "attn_kernel")
    Q1 = 12; Q2 = 16; C = 20; S = [36, 52]; P = [68, 76]; O = 84
    KF = [100, 104]; K2F = [108, 112]; VF = [116, 124]
    T = 132
    SLOTB = [97280, 130048]
    SYNC = 162816
    vK1 = 4; vK2 = 5; vV = 6
    e("s_cmp_ge_u32 s2, 256")
    e("s_cbranch_scc1 attn_exit")
    e.ts_reset()
    e.ts()
    e("s_load_dwordx2 s[4:5], s[0:1], 80")
    e("s_load_dwordx2 s[46:47], s[0:1], 16")
    e("s_load_dwordx2 s[48:49], s[0:1], 56")
    e("s_load_dwordx4 s[28:31], s[0:1], 0")
    e("v_and_b32 v1, 63, v0")
    e("v_lshrrev_b32 v7, 6, v0")
    e("v_and_b32 v2, 31, v1")
    e("v_readfirstlane_b32 s32, v7")
    e("v_lshrrev_b32 v3, 5, v1")
    e("s_and_b32 s3, s2, 7")
    e("s_lshl_b32 s33, s3, 8")
    e("s_lshr_b32 s6, s2, 3")
    e("s_lshl_b32 s35, s6, 3")
    e("s_add_u32 s33, s33, s35")
    e("v_lshlrev_b32 v7, 4, v1")
    e("v_mul_u32_u24 v8, 36, v2")
    e("v_lshlrev_b32 v9, 4, v3")
    e("v_add_u32 v9, v8, v9")
    e("s_waitcnt lgkmcnt(0)")
    srd_off(e, 16, 4, 5, WS_KV, KVIMG_B)
    e("s_cmp_ge_u32 s32, 8")
    e("s_cbranch_scc1 attn_helper")
    e("s_add_u32 s33, s33, s32")
    srd_off(e, 12, 4, 5, WS_QB, 2048 * 1152)
    e("s_mul_i32 s36, s33, 1152")
    e(f"buffer_load_dwordx4 v[{Q1}:{Q1+3}], v9, s[12:15], s36 offen")
    e(f"buffer_load_dword v{Q2}, v8, s[12:15], s36 offen offset:32")
    srd_off(e, 24, 4, 5, WS_OB, 2048 * 1152)
    e(f"v_lshlrev_b32 v{vK1}, 4, v1")
    e(f"v_lshlrev_b32 v{vK2}, 2, v2")
    e(f"v_add_u32 v{vK2}, 1024, v{vK2}")
    e(f"v_min_u32 v{vV}, 19, v2")
    e("v_cmp_eq_u32 vcc, 22, v2")
    e("v_mov_b32 v11, 18")
    e("s_nop 0")
    e(f"v_cndmask_b32 v{vV}, v{vV}, v11, vcc")
    e(f"v_lshlrev_b32 v{vV}, 4, v{vV}")
    e("v_mul_u32_u24 v11, 320, v3")
    e(f"v_add_u32 v{vV}, v{vV}, v11")
    e(f"v_add_u32 v{vV}, 1152, v{vV}")
    e("v_cmp_gt_u32 vcc, 32, v1")
    e(f"v_mov_b32 v{Q2+1}, 0")
    e(f"v_mov_b32 v{Q2+2}, 0")
    e(f"v_mov_b32 v{Q2+3}, 0")
    e("s_mov_b32 s40, 0")
    e("s_mov_b32 s50, 0x0047ffff")
    e("s_mov_b32 s51, 0x0047ffff")
    e.ts()
    e("s_waitcnt vmcnt(0)")
    e(f"v_cndmask_b32 v{Q2}, 0, v{Q2}, vcc")
    e.ts()
    e("s_barrier")
    e.ts()
    MB = [36, 52, 68, 84]
    KB = [100, 108, 116, 124]
    def ld128(dst, vlds, vglb, off, src, soff="0"):
        if src == "lds": e(f"ds_read_b128 v[{dst}:{dst+3}], v{vlds} offset:{off}")
        else: e(f"buffer_load_dwordx4 v[{dst}:{dst+3}], v{vglb}, s[16:19], {soff} offen offset:{off}")
    def ld32(dst, vlds, vglb, off, src, soff="0"):
        if src == "lds": e(f"ds_read_b32 v{dst}, v{vlds} offset:{off}")
        else: e(f"buffer_load_dword v{dst}, v{vglb}, s[16:19], {soff} offen offset:{off}")
    def wait(n, src):
        e(f"s_waitcnt {'lgkmcnt' if src == 'lds' else 'vmcnt'}({n})")
    def maxpass(src):
        e("v_mov_b32 v10, 0xff800000")
        if src == "glb":
            e("s_mov_b32 s42, 0")
            e.label("attn_maxloop")
        for i in range(4):
            if src == "glb":
                e(f"s_add_u32 s35, s42, {i*TILE_B}")
                ld128(KB[i], 0, vK1, 0, src, "s35"); ld32(KB[i]+4, 0, vK2, 0, src, "s35")
            else:
                ld128(KB[i], vK1, 0, i*TILE_B, src); ld32(KB[i]+4, vK2, 0, i*TILE_B, src)
        for i in range(4):
            e(f"v_mov_b32 v{KB[i]+5}, 0")
        for i in range(4):
            wait(6-2*i, src)
            e(f"v_mfma_f32_32x32x16_bf16 v[{MB[i]}:{MB[i]+15}], v[{KB[i]}:{KB[i]+3}], v[{Q1}:{Q1+3}], 0")
        e("s_nop 9")
        for i in range(4):
            e(f"v_mfma_f32_32x32x8_bf16 v[{MB[i]}:{MB[i]+15}], v[{KB[i]+4}:{KB[i]+5}], v[{Q2}:{Q2+1}], v[{MB[i]}:{MB[i]+15}]")
        e("s_nop 9")
        for i in range(4):
            if i == 3:
                e("s_nop 3")
            for j in range(8):
                e(f"v_max3_f32 v10, v{MB[i]+2*j}, v{MB[i]+2*j+1}, v10")
        if src == "glb":
            e(f"s_add_u32 s42, s42, {4*TILE_B}")
            e(f"s_cmp_lt_u32 s42, {64*TILE_B}")
            e("s_cbranch_scc1 attn_maxloop")
    def prologue(src):
        e(f"v_mov_b32 v{T}, v{vK1}")
        e(f"v_mov_b32 v{T+1}, v{vK2}")
        e(f"v_mov_b32 v{T+2}, v{vV}")
        ld128(KF[0], T, vK1, 0, src); ld32(K2F[0], T+1, vK2, 0, src)
        ld128(KF[1], T, vK1, TILE_B, src); ld32(K2F[1], T+1, vK2, TILE_B, src)
        e("v_mov_b32 v11, v10")
        e("s_nop 1")
        e("v_permlane32_swap_b32 v10, v11")
        e("v_max_f32 v10, v10, v11")
        e("v_sub_f32 v10, 0, v10")
        e(f"v_cvt_pk_bf16_f32 v{C}, v10, 0")
        e(f"v_lshlrev_b32 v{C}, 16, v{C}")
        e(f"v_sub_f32 v10, v10, v{C}")
        e(f"v_cvt_pk_bf16_f32 v{C+1}, v10, 0")
        e(f"v_lshlrev_b32 v{C+1}, 16, v{C+1}")
        e(f"v_sub_f32 v10, v10, v{C+1}")
        e("v_cmp_gt_u32 vcc, 32, v1")
        e(f"v_cvt_pk_bf16_f32 v{C+2}, v{C}, v{C+1}")
        e(f"v_cvt_pk_bf16_f32 v{C+3}, v10, 0")
        e(f"v_cndmask_b32 v{Q2+1}, v{C+3}, v{C+2}, vcc")
        for b in range(2):
            e(f"v_mov_b32 v{K2F[b]+1}, 0x3f803f80")
        wait(2, src)
        e(f"v_mfma_f32_32x32x16_bf16 v[{S[0]}:{S[0]+15}], v[{KF[0]}:{KF[0]+3}], v[{Q1}:{Q1+3}], 0")
        for i in range(16):
            e(f"v_mov_b32 v{O+i}, 0")

        e(f"v_mfma_f32_32x32x8_bf16 v[{S[0]}:{S[0]+15}], v[{K2F[0]}:{K2F[0]+1}], v[{Q2}:{Q2+1}], v[{S[0]}:{S[0]+15}]")
        for i in range(8):
            e(f"v_mov_b32 v{P[1]+i}, 0")
            e(f"v_mov_b32 v{VF[1]+i}, 0")
    def tile(tt, top=None, src="lds"):
        cur = tt & 1; nxt = cur ^ 1
        wait(0, src)
        if top: top()
        if src == "lds":
            ld128(KF[cur], T, 0, (tt+2)*TILE_B, src); ld32(K2F[cur], T+1, 0, (tt+2)*TILE_B, src)
            ld128(VF[cur], T+2, 0, tt*TILE_B, src); ld128(VF[cur]+4, T+2, 0, tt*TILE_B+640, src)
        else:
            e(f"s_add_u32 s35, s42, {2*TILE_B}")
            ld128(KF[cur], 0, vK1, 0, src, "s35"); ld32(K2F[cur], 0, vK2, 0, src, "s35")
            ld128(VF[cur], 0, vV, 0, src, "s42"); ld128(VF[cur]+4, 0, vV, 640, src, "s42")
            e(f"s_add_u32 s42, s42, {TILE_B}")
        m = [f"v_mfma_f32_32x32x16_bf16 v[{S[nxt]}:{S[nxt]+15}], v[{KF[nxt]}:{KF[nxt]+3}], v[{Q1}:{Q1+3}], 0",
             f"v_mfma_f32_32x32x16_bf16 v[{O}:{O+15}], v[{VF[nxt]}:{VF[nxt]+3}], v[{P[nxt]}:{P[nxt]+3}], v[{O}:{O+15}]",
             f"v_mfma_f32_32x32x8_bf16 v[{S[nxt]}:{S[nxt]+15}], v[{K2F[nxt]}:{K2F[nxt]+1}], v[{Q2}:{Q2+1}], v[{S[nxt]}:{S[nxt]+15}]",
             f"v_mfma_f32_32x32x16_bf16 v[{O}:{O+15}], v[{VF[nxt]+4}:{VF[nxt]+7}], v[{P[nxt]+4}:{P[nxt]+7}], v[{O}:{O+15}]"]
        for g in range(4):
            e(m[g])
            for i in range(4):
                e(f"v_exp_f32 v{S[cur]+4*g+i}, v{S[cur]+4*g+i}")
            for i in range(2):
                j = 2 * g + i
                e(f"v_cvt_pk_bf16_f32 v{P[cur]+j}, v{S[cur]+2*j}, v{S[cur]+2*j+1}")
    maxpass("lds")
    prologue("lds")
    e("s_mov_b32 s42, 0")
    e.ts()
    e.label("attn_loop1")
    def topbar(it, name):
        def f():
            e(f"s_cmp_lg_u32 s42, {it}")
            e(f"s_cbranch_scc1 {name}")
            e("s_barrier")
            e.label(name)
        return f
    for tt in range(8):
        tile(tt, topbar(0, "attn_nobar1") if tt == HB1_TT else None)
    for i in range(3):
        e(f"v_add_u32 v{T+i}, {8*TILE_B}, v{T+i}")
    e("s_add_u32 s42, s42, 1")
    e("s_cmp_lt_u32 s42, 8")
    e("s_cbranch_scc1 attn_loop1")
    e("s_branch attn_done")
    e.label("attn_restart")
    maxpass("glb")
    prologue("glb")
    e("s_mov_b32 s42, 0")
    e.label("attn_loop2")
    for tt in range(2):
        tile(tt, src="glb")
    e(f"s_cmp_lt_u32 s42, {64*TILE_B}")
    e("s_cbranch_scc1 attn_loop2")
    e("s_waitcnt vmcnt(0)")
    e.label("attn_done")
    e.ts()
    e("s_waitcnt lgkmcnt(0)")
    e(f"v_mfma_f32_32x32x16_bf16 v[{O}:{O+15}], v[{VF[1]}:{VF[1]+3}], v[{P[1]}:{P[1]+3}], v[{O}:{O+15}]")
    e(f"v_mfma_f32_32x32x16_bf16 v[{O}:{O+15}], v[{VF[1]+4}:{VF[1]+7}], v[{P[1]+4}:{P[1]+7}], v[{O}:{O+15}]")
    e("s_nop 15")
    e("s_nop 3")
    e("s_cmp_lg_u32 s40, 0")
    e("s_cbranch_scc1 attn_fin")
    e("v_mov_b32 v10, 0x71800000")
    e(f"v_cmp_nlt_f32 vcc, v{O+10}, v10")
    e("s_mov_b64 s[44:45], vcc")
    e("v_mov_b32 v10, 0x207")
    for i in range(10):
        e(f"v_cmp_class_f32 vcc, v{O+i}, v10")
        e("s_or_b64 s[44:45], s[44:45], vcc")
    e("s_cmp_eq_u64 s[44:45], 0")
    e("s_cbranch_scc1 attn_fin")
    e("s_mov_b32 s40, 1")
    e("s_branch attn_restart")
    e.label("attn_fin")
    e(f"v_rcp_f32 v10, v{O+10}")
    e("s_nop 0")
    for i in range(10):
        e(f"v_mul_f32 v{O+i}, v{O+i}, v10")
    for i in range(5):
        e(f"v_cvt_pk_bf16_f32 v{S[0]+i}, v{O+2*i}, v{O+2*i+1}")
    e("v_lshlrev_b32 v10, 3, v3")
    e("v_add_u32 v10, v8, v10")
    e(f"buffer_store_dwordx2 v[{S[0]}:{S[0]+1}], v10, s[24:27], s36 offen")
    e(f"buffer_store_dwordx2 v[{S[0]+2}:{S[0]+3}], v10, s[24:27], s36 offen offset:16")
    e("v_cmp_gt_u32 vcc, 32, v1")
    e("s_and_saveexec_b64 s[44:45], vcc")
    e(f"buffer_store_dword v{S[0]+4}, v8, s[24:27], s36 offen offset:32")
    e.ts()
    e.ts_dump(4, 12, 1)
    e("s_endpgm")
    e.label("attn_helper")
    e.nts = 1
    if "hprio" in EXP: e("s_setprio 1")
    e("s_sub_u32 s41, s32, 8")
    e("s_lshl_b32 s34, s41, 10")
    def kvdma(i4):
        e(f"s_add_u32 m0, s34, {i4*4096}")
        e(f"s_add_u32 s35, s34, {i4*4096}")
        e("buffer_load_dwordx4 v7, s[16:19], s35 offen lds")
    for i4 in range(6):
        kvdma(i4)
    e("s_waitcnt vmcnt(0)")
    e("s_barrier")
    e.ts()
    for i4 in range(6, 38):
        kvdma(i4)
    srd_off(e, 8, 4, 5, WS_QKVA, 2048 * 3456)
    srd_off(e, 20, 4, 5, WS_OA, 2048 * 1152)
    srd(e, 12, 46, 47, 576 * 1152)
    srd(e, 60, 48, 49, 576 * 1152)
    e("s_lshl_b32 s40, s41, 1")
    e("s_add_u32 s40, s40, s33")
    e("s_add_u32 s42, s40, 2")
    e(f"s_mov_b32 s38, {f32bits(CSCALE):#x}")
    e("s_waitcnt vmcnt(0)")
    e("s_barrier")
    e.ts()
    e("s_lshl_b32 s39, s6, 2")
    e("s_add_u32 s39, s39, s41")
    e("s_mul_i32 s39, s39, 5248")
    e("v_min_u32 v24, 40, v1")
    e("v_lshlrev_b32 v24, 7, v24")
    e("buffer_load_dword v155, v24, s[12:15], s39 offen")
    e("buffer_load_dword v155, v24, s[60:63], s39 offen")
    AQ = 20; AK = 30; AV = 70; AO = 110; OA = 128; W = 134; R = 12
    e.label("attn_a_loop")
    e("v_lshlrev_b32 v10, 3, v3")
    e("v_sub_u32 v10, s40, v10")
    e("s_mul_i32 s35, s40, 3456")
    e(f"buffer_load_dwordx4 v[{AQ}:{AQ+3}], v8, s[8:11], s35 offen")
    e(f"buffer_load_dwordx4 v[{AQ+4}:{AQ+7}], v8, s[8:11], s35 offen offset:16")
    e(f"buffer_load_dword v{AQ+8}, v8, s[8:11], s35 offen offset:32")
    for i in range(4):
        e(f"v_subrev_u32 v{R+i}, {2*i}, v10")
        e(f"v_max_i32 v11, 0, v{R+i}")
        e("v_mul_u32_u24 v11, 3456, v11")
        e(f"v_add_u32 v{R+4+i}, v11, v8")
        k = AK + 10 * i; v = AV + 10 * i
        e(f"buffer_load_dwordx4 v[{k}:{k+3}], v{R+4+i}, s[8:11], 0 offen offset:1152")
        e(f"buffer_load_dwordx4 v[{k+4}:{k+7}], v{R+4+i}, s[8:11], 0 offen offset:1168")
        e(f"buffer_load_dword v{k+8}, v{R+4+i}, s[8:11], 0 offen offset:1184")
        e(f"buffer_load_dwordx4 v[{v}:{v+3}], v{R+4+i}, s[8:11], 0 offen offset:2304")
        e(f"buffer_load_dwordx4 v[{v+4}:{v+7}], v{R+4+i}, s[8:11], 0 offen offset:2320")
        e(f"buffer_load_dword v{v+8}, v{R+4+i}, s[8:11], 0 offen offset:2336")
    e("s_waitcnt vmcnt(0)")
    L = W
    for i in range(4):
        k = AK + 10 * i
        e(f"v_dot2_f32_bf16 v{L+i}, v{AQ}, v{k}, 0")
    for j in range(1, 9):
        for i in range(4):
            k = AK + 10 * i
            e(f"v_dot2_f32_bf16 v{L+i}, v{AQ+j}, v{k+j}, v{L+i}")
    e(f"v_mov_b32 v{W+4}, 0xff800000")
    e("s_nop 2")
    for i in range(4):
        e(f"v_mul_f32 v{L+i}, s38, v{L+i}")
        e(f"v_cmp_gt_i32 vcc, 0, v{R+i}")
        e("s_nop 1")
        e(f"v_cndmask_b32 v{L+i}, v{L+i}, v{W+4}, vcc")
    M = W + 5
    e(f"v_max_f32 v{M}, v{L}, v{L+1}")
    e(f"v_max3_f32 v{M}, v{L+2}, v{L+3}, v{M}")
    e(f"v_mov_b32 v{M+1}, v{M}")
    e("s_nop 1")
    e(f"v_permlane32_swap_b32 v{M}, v{M+1}")
    e(f"v_max_f32 v{M}, v{M}, v{M+1}")
    for i in range(4):
        e(f"v_sub_f32 v{L+i}, v{L+i}, v{M}")
    for i in range(4):
        e(f"v_exp_f32 v{L+i}, v{L+i}")
    e("s_nop 0")
    e(f"v_add_f32 v{M+2}, v{L}, v{L+1}")
    e(f"v_add_f32 v{M+3}, v{L+2}, v{L+3}")
    e(f"v_add_f32 v{M+2}, v{M+2}, v{M+3}")
    e(f"v_mov_b32 v{M+3}, v{M+2}")
    e("s_nop 1")
    e(f"v_permlane32_swap_b32 v{M+2}, v{M+3}")
    e(f"v_add_f32 v{M+2}, v{M+2}, v{M+3}")
    e(f"v_rcp_f32 v{M+2}, v{M+2}")
    e("s_nop 0")
    PL = W + 10; PH = W + 14
    for i in range(4):
        e(f"v_mul_f32 v{L+i}, v{L+i}, v{M+2}")
    for i in range(4):
        e(f"v_cvt_pk_bf16_f32 v{PL+i}, v{L+i}, 0")
        e(f"v_cvt_pk_bf16_f32 v{PH+i}, 0, v{L+i}")
    for i in range(4):
        v = AV + 10 * i
        for j in range(9):
            if i == 0:
                e(f"v_dot2_f32_bf16 v{AO+2*j}, v{v+j}, v{PL+i}, 0")
                e(f"v_dot2_f32_bf16 v{AO+2*j+1}, v{v+j}, v{PH+i}, 0")
            else:
                e(f"v_dot2_f32_bf16 v{AO+2*j}, v{v+j}, v{PL+i}, v{AO+2*j}")
                e(f"v_dot2_f32_bf16 v{AO+2*j+1}, v{v+j}, v{PH+i}, v{AO+2*j+1}")
    e("s_nop 2")
    e(f"v_mov_b32 v{W}, v{AO+16}")
    e(f"v_mov_b32 v{W+1}, v{AO+17}")
    e("s_nop 2")
    for d in range(8):
        e(f"v_permlane32_swap_b32 v{AO+d}, v{AO+d+8}")
    e(f"v_permlane32_swap_b32 v{AO+16}, v{W}")
    e(f"v_permlane32_swap_b32 v{AO+17}, v{W+1}")
    for d in range(8):
        e(f"v_add_f32 v{AO+d}, v{AO+d}, v{AO+d+8}")
    e(f"v_add_f32 v{AO+16}, v{AO+16}, v{W}")
    e(f"v_add_f32 v{AO+17}, v{AO+17}, v{W+1}")
    for i in range(4):
        e(f"v_cvt_pk_bf16_f32 v{OA+i}, v{AO+2*i}, v{AO+2*i+1}")
    e(f"v_cvt_pk_bf16_f32 v{OA+4}, v{AO+16}, v{AO+17}")
    e("s_mul_i32 s36, s40, 1152")
    e(f"buffer_store_dwordx4 v[{OA}:{OA+3}], v9, s[20:23], s36 offen")
    e(f"buffer_store_dword v{OA+4}, v8, s[20:23], s36 offen offset:32")
    e("s_add_u32 s40, s40, 1")
    e("s_cmp_lt_u32 s40, s42")
    e("s_cbranch_scc1 attn_a_loop")
    e.ts()
    e.ts_dump(4, 12, 1)
    e.label("attn_exit")
    e("s_endpgm")
    return 160768

def main():
    global INSTR
    INSTR = len(sys.argv) > 2 and sys.argv[2] == "instr"
    EXP.update(sys.argv[3:])
    global PFD, PLOOK
    for x in sys.argv[3:]:
        if x.startswith("pf="): PFD = int(x[3:])
        if x.startswith("pl="): PLOOK = int(x[3:])
        if x.startswith("tp="):
            global TPUB_, TPOLL_, TB11_
            TPUB_, TPOLL_, TB11_ = [int(y) for y in x[3:].split(",")]
    e = E()
    l1 = gen_proj(e)
    l2 = gen_attn(e)
    l3 = gen_out(e)
    ref = open(f"cdna_kernels/{NAME}.s.ref").read().splitlines()
    head = [l for l in ref if l.startswith(";") and "@launch" not in l and "Override" not in l and "grid=ceil" not in l]
    out = "\n".join(head) + "\n"
    out += f"; @launch kernel=proj_kernel grid=(256,1,1) block=(512,1,1) lds={l1}\n"
    out += f"; @launch kernel=attn_kernel grid=(256,1,1) block=(768,1,1) lds={l2}\n"
    out += f"; @launch kernel=outp_kernel grid=(192,1,1) block=(512,1,1) lds={l3}\n"
    out += '.amdgcn_target "amdgcn-amd-amdhsa--gfx950"\n.text\n'
    out += e.text()
    out += '.section .rodata,"a"\n.p2align 6\n'
    out += kd("proj_kernel", 144)
    out += ".p2align 6\n" + kd("attn_kernel", 160)
    out += ".p2align 6\n" + kd("outp_kernel", 112)
    path = sys.argv[1] if len(sys.argv) > 1 else f"cdna_kernels/{NAME}.s"
    open(path, "w").write(out)

main()
```

```python
import struct, sys, math

NAME = "concat_heads__sliding_local_dilated__grouped_kv_mqa__prompt"

WS_QKVA = 0x000000
WS_QB   = 0x700000
WS_KV   = 0xA00000
WS_FLAG = 0xA80000
WS_OA   = 0xB00000
WS_OB   = 0xE00000
TILE_B  = 2432
KVIMG_B = 64 * TILE_B

def f32bits(x):
    return struct.unpack("<I", struct.pack("<f", x))[0]

CSCALE = (18 ** -0.5) * math.log2(math.e)

INSTR = False
EXP = set()
PFD = 5
PLOOK = 2
HB1_TT = 6
KVLEAD = 11
WARM_AT = 9
TPUB_ = 46
TPOLL_ = 50
TB11_ = 52
WS_DBG = 0x1200000
class E:
    def __init__(self):
        self.l = []
        self.nts = 0
    def ts_reset(self):
        self.nts = 0
        if INSTR: self("s_memrealtime s[100:101]")
    def ts(self):
        if not INSTR: return
        k = self.nts; self.nts += 1
        self(f"s_memtime s[{64+2*k}:{65+2*k}]")
    def ts_dump(self, wsreg, waves_per_wg, kid):
        if not INSTR: return
        n = self.nts
        self(f"s_memrealtime s[96:97]")
        self("s_waitcnt lgkmcnt(0)")
        self("s_mov_b64 exec, -1")
        self(f"s_add_u32 s92, s{wsreg}, {WS_DBG + kid*0x100000}")
        self(f"s_addc_u32 s93, s{wsreg+1}, 0")
        self("s_mov_b32 s94, 0x100000")
        self("s_mov_b32 s95, 0x00020000")
        self(f"s_mul_i32 s98, s2, {waves_per_wg}")
        self("s_add_u32 s98, s98, s32")
        self("s_lshl_b32 s98, s98, 6")
        self("v_mov_b32 v1, 0")
        for k in range(n):
            self(f"v_mov_b32 v2, s{64+2*k}")
            self(f"buffer_store_dword v2, v1, s[92:95], s98 offen offset:{4*k}")
        self("v_mov_b32 v2, s96")
        self(f"buffer_store_dword v2, v1, s[92:95], s98 offen offset:60")
        self("v_mov_b32 v2, s100")
        self(f"buffer_store_dword v2, v1, s[92:95], s98 offen offset:56")
    def __call__(self, s):
        self.l.append("    " + s)
    def label(self, s):
        self.l.append(s + ":")
    def c(self, s):
        self.l.append("    ; " + s)
    def text(self):
        return "\n".join(self.l) + "\n"

def srd(e, d, lo, hi, nbytes):
    e(f"s_mov_b32 s{d}, s{lo}")
    e(f"s_mov_b32 s{d+1}, s{hi}")
    e(f"s_mov_b32 s{d+2}, {nbytes}")
    e(f"s_mov_b32 s{d+3}, 0x00020000")

def srd_off(e, d, lo, hi, off, nbytes):
    e(f"s_add_u32 s{d}, s{lo}, {off}")
    e(f"s_addc_u32 s{d+1}, s{hi}, 0")
    e(f"s_mov_b32 s{d+2}, {nbytes}")
    e(f"s_mov_b32 s{d+3}, 0x00020000")

def gen_gemm(e, pfx, NT, NSLOT, special=False):
    P = PLOOK
    XB = 16384
    SLOT = XB + NT * 4096
    NCH = 9
    XS_ = 6; XRS = 24; WRS = 16; WL = 2
    NQ = NT - 2 if special else NT
    TK = NT - 2; TV = NT - 1
    D = 4 + NQ + (8 if special else 0)
    vX = [2, 3, 4, 5]; vW = 6; vKV = 7
    vXr = [8, 9, 10, 11]; vWr = 12
    F = [16, 16 + 4 + 4 * NT]
    ACC = 64
    e.c(f"---- gemm body {pfx} NT={NT} NSLOT={NSLOT} special={special}")
    e.ts_reset()
    e.ts()
    e("v_and_b32 v1, 63, v0")
    e("v_lshrrev_b32 v13, 6, v0")
    e("s_nop 0")
    e("v_readfirstlane_b32 s32, v13")
    e("s_nop 3")
    e("s_cmp_lt_u32 s32, 4")
    e(f"s_cbranch_scc1 {pfx}_compute")
    e("s_sub_u32 s51, s32, 4")
    e("v_lshrrev_b32 v13, 3, v1")
    e("v_lshrrev_b32 v14, 4, v1")
    e("v_and_b32 v15, 7, v1")
    e("s_lshl_b32 s40, s51, 5")
    e("s_add_u32 s40, s40, s36")
    e("s_movk_i32 s41, 1152")
    for j in range(4):
        e(f"v_add_u32 v16, {4*j}, v14")
        e("v_and_b32 v16, 7, v16")
        e("v_xor_b32 v16, v16, v15")
        e("v_lshlrev_b32 v16, 4, v16")
        e(f"v_add_u32 v17, {8*j}, v13")
        e("v_add_u32 v17, s40, v17")
        e("v_mul_lo_u32 v17, v17, s41")
        e(f"v_add_u32 v{vX[j]}, v16, v17")
    e("v_lshrrev_b32 v16, 2, v1")
    e("s_lshl_b32 s40, s51, 4")
    e("v_add_u32 v16, s40, v16")
    e("v_mul_lo_u32 v16, v16, s33")
    e("v_and_b32 v17, 3, v1")
    e("v_lshlrev_b32 v17, 4, v17")
    e("v_add_u32 v16, v16, v17")
    e(f"v_add_u32 v{vW}, s37, v16")
    if special:
        e("v_add_u32 v16, s40, v14")
        e("v_mul_u32_u24 v16, 36, v16")
        e("v_and_b32 v17, 15, v1")
        e("v_min_u32 v17, 8, v17")
        e("v_lshlrev_b32 v17, 2, v17")
        e(f"v_add_u32 v{vKV}, v16, v17")
    e("s_lshl_b32 s48, s33, 6")
    e("s_mov_b32 s46, s50")
    e("s_lshl_b32 s44, s51, 12")
    e("s_lshl_b32 s45, s51, 10")
    e(f"s_add_u32 s45, s45, {XB}")

    def dma_chunk(n):
        sb = (n % NSLOT) * SLOT
        e("s_lshl_b32 s41, s46, 7")
        e("s_mul_i32 s42, s46, s48")
        if special:
            e("s_mul_i32 s43, s46, 2304")
        e("s_add_u32 s46, s46, 1")
        e(f"s_cmp_eq_u32 s46, {NCH}")
        e("s_cselect_b32 s46, 0, s46")
        if "nodma" in EXP: return
        for j in range(4):
            e(f"s_add_u32 m0, s44, {sb + j*1024}")
            e("s_nop 0")
            e(f"buffer_load_dwordx4 v{vX[j]}, s[8:11], s41 offen lds")
        for t in range(NQ):
            e(f"s_add_u32 m0, s45, {sb + t*4096 - 64*t}")
            e("s_nop 0")
            e(f"buffer_load_dwordx4 v{vW}, s[12:15], s42 offen offset:{64*t} lds")
        if special:
            for (t, sr) in ((TK, 20), (TV, 24)):
                for q in range(4):
                    e(f"s_add_u32 m0, s45, {sb + t*4096 + q*256 - 144*q}")
                    e("s_nop 0")
                    e(f"buffer_load_dword v{vKV}, s[{sr}:{sr+3}], s43 offen offset:{144*q} lds")
    for n in range(P):
        dma_chunk(n)
    for c in range(NCH + 1):
        issued = min(c - 1 + P, NCH - 1)
        allowed = max(issued - c, 0)
        e(f"s_waitcnt vmcnt({allowed*D})")
        e("s_barrier")
        if c + P <= NCH - 1:
            dma_chunk(c + P)
        if NT == 2 and c == WARM_AT and "k1warm" in EXP:
            e("s_load_dwordx4 s[40:43], s[0:1], 0")
            e("s_lshr_b32 s46, s2, 3")
            e("s_lshl_b32 s46, s46, 2")
            e("s_add_u32 s46, s46, s51")
            e("v_lshlrev_b32 v13, 7, v1")
            e("s_waitcnt lgkmcnt(0)")
            e("s_mov_b32 s52, s42")
            e("s_mov_b32 s53, s43")
            e(f"s_mov_b32 s54, {576*3456}")
            e("s_mov_b32 s55, 0x00020000")
            e("s_lshl_b32 s47, s46, 13")
            for i in range(4):
                e(f"s_add_u32 s49, s47, {i*80*8192}")
                e("buffer_load_dword v14, v13, s[52:55], s49 offen")
            e("s_mov_b32 s52, s40")
            e("s_mov_b32 s53, s41")
            e(f"s_mov_b32 s54, {2048*1152}")
            e("s_and_b32 s47, s2, 7")
            e("s_mul_i32 s47, s47, 294912")
            e("s_mul_i32 s49, s46, 3712")
            e("s_add_u32 s49, s49, s47")
            e("v_min_u32 v13, 28, v1")
            e("v_lshlrev_b32 v13, 7, v13")
            e("buffer_load_dword v14, v13, s[52:55], s49 offen")
    e("s_endpgm")
    e.label(f"{pfx}_compute")
    if pfx == "pg" and "nocw" not in EXP:
        e("s_cmp_gt_u32 s2, 7")
        e("s_cbranch_scc1 pg_nocw")
        e("s_cmp_lg_u32 s32, 0")
        e("s_cbranch_scc1 pg_nocw")
        e("s_getpc_b64 s[56:57]")
        e.label("pg_cw_pc")
        e("s_add_u32 s56, s56, attn_kernel-pg_cw_pc")
        e("s_addc_u32 s57, s57, 0")
        e("v_lshlrev_b32 v13, 7, v1")
        for i in range(3):
            e(f"v_add_u32 v14, {i*8192}, v13")
            e("v_min_u32 v14, code_end-attn_kernel-4, v14")
            e("global_load_dword v2, v14, s[56:57]")
        e("s_getpc_b64 s[56:57]")
        e("s_add_u32 s56, s56, kd_start@rel32@lo+4")
        e("s_addc_u32 s57, s57, kd_start@rel32@hi+12")
        e("v_and_b32 v14, 3, v1")
        e("v_lshlrev_b32 v14, 6, v14")
        e("v_min_u32 v14, 128, v14")
        e("global_load_dword v2, v14, s[56:57]")
        e.label("pg_nocw")
    PF = PFD
    e("v_bfe_u32 v13, v1, 2, 3")
    e(f"s_mul_i32 s40, s6, {XRS}")
    e("s_add_u32 s40, s40, s36")
    e(f"s_mul_i32 s41, s32, {XRS//4}")
    e("s_add_u32 s40, s40, s41")
    e("v_add_u32 v14, s40, v13")
    e("v_mul_u32_u24 v3, 1152, v14")
    e("v_bfe_u32 v13, v1, 4, 2")
    e(f"v_min_u32 v13, {WRS//4-1}, v13")
    e(f"s_mul_i32 s40, s3, {WRS}")
    e(f"s_mul_i32 s41, s32, {WRS//4}")
    e("s_add_u32 s40, s40, s41")
    e("v_add_u32 v13, s40, v13")
    e("v_mul_lo_u32 v13, v13, s33")
    e("v_bfe_u32 v14, v1, 2, 2")
    e(f"v_min_u32 v14, {WL-1}, v14")
    e("v_lshlrev_b32 v14, 7, v14")
    e("v_add_u32 v13, v13, v14")
    e("v_add_u32 v4, s37, v13")
    e("s_lshl_b32 s48, s33, 6")
    e(f"s_movk_i32 s54, {128*P}")
    e(f"s_mul_i32 s55, s48, {P}")
    def pf():
        if "pf" not in EXP: return
        e("buffer_load_dword v2, v3, s[8:11], s54 offen")
        e("buffer_load_dword v2, v4, s[12:15], s55 offen")
        e("s_add_u32 s54, s54, 128")
        e("s_add_u32 s55, s55, s48")
    for _ in range(P, PF):
        pf()
    e("v_and_b32 v13, 31, v1")
    e("v_lshrrev_b32 v14, 5, v1")
    e("v_lshrrev_b32 v15, 1, v13")
    e("v_and_b32 v15, 7, v15")
    e("v_lshlrev_b32 v16, 7, v13")
    e("s_lshl_b32 s40, s32, 12")
    e("v_add_u32 v16, s40, v16")
    e("v_lshlrev_b32 v17, 2, v14")
    for j in range(4):
        e(f"v_add_u32 v18, {j}, v17")
        e("v_xor_b32 v18, v18, v15")
        e("v_lshlrev_b32 v18, 4, v18")
        e(f"v_add_u32 v{vXr[j]}, v16, v18")
    e("v_lshlrev_b32 v16, 11, v14")
    e("v_bfe_u32 v17, v1, 2, 2")
    e("v_lshlrev_b32 v17, 6, v17")
    e("v_add_u32 v16, v16, v17")
    e("v_bfe_u32 v17, v1, 4, 1")
    e("v_lshlrev_b32 v17, 5, v17")
    e("v_add_u32 v16, v16, v17")
    e("v_and_b32 v17, 3, v1")
    e("v_lshlrev_b32 v17, 3, v17")
    e("v_add_u32 v16, v16, v17")
    e(f"v_add_u32 v{vWr}, {XB}, v16")
    for i in range(NT * 16):
        e(f"v_mov_b32 v{ACC+i}, 0")
    e(f"s_mov_b32 s7, {SLOT}")

    def read_list(j, fb):
        b = F[fb]
        l = [f"ds_read_b128 v[{b}:{b+3}], v{vXr[j]}"]
        for t in range(NT):
            r = b + 4 + 4 * t
            l.append(f"ds_read_b64_tr_b16 v[{r}:{r+1}], v{vWr} offset:{t*4096 + j*512}")
            l.append(f"ds_read_b64_tr_b16 v[{r+2}:{r+3}], v{vWr} offset:{t*4096 + j*512 + 256}")
        if "noread" in EXP: l = []
        return l
    def mfma(fb, t):
        if "nomfma" in EXP: return
        b = F[fb]
        r = b + 4 + 4 * t
        a = ACC + 16 * t
        if special and t == TV:
            e(f"v_mfma_f32_32x32x16_bf16 v[{a}:{a+15}], v[{b}:{b+3}], v[{r}:{r+3}], v[{a}:{a+15}]")
        else:
            e(f"v_mfma_f32_32x32x16_bf16 v[{a}:{a+15}], v[{r}:{r+3}], v[{b}:{b+3}], v[{a}:{a+15}]")
    NR = 1 + 2 * NT
    def step(fb, nxt_reads, first_after=0):
        per = {}
        k = 0
        slots = list(range(first_after, NT - 1)) or [first_after]
        q = list(nxt_reads)
        chunk = -(-len(q) // min(len(slots), 3))
        issued_new = 0
        for t in range(NT):
            if first_after == 0:
                allowed = NR - (2 * t + 3) + issued_new
                e(f"s_waitcnt lgkmcnt({min(allowed, 15)})")
            mfma(fb, t)
            if t == 0 and first_after == 1:
                e("s_barrier")
            if t >= first_after - (1 if first_after == 1 else 0) and q:
                for _ in range(min(chunk, len(q))):
                    e(q.pop(0)); issued_new += 1
        assert not q
    e("s_mov_b32 s40, 0")
    e("s_mov_b32 s49, 0")
    e.ts()
    e("s_barrier")
    e.ts()
    for r in read_list(0, 0): e(r)
    e.label(f"{pfx}_loop")
    pf()
    step(0, read_list(1, 1))
    step(1, read_list(2, 0))
    step(0, read_list(3, 1))
    e("s_add_u32 s49, s49, 1")
    e(f"s_cmp_eq_u32 s49, {NSLOT}")
    e(f"s_cselect_b32 s47, {-(NSLOT-1)*SLOT}, s7")
    e("s_cselect_b32 s49, 0, s49")
    for j in range(4):
        e(f"v_add_u32 v{vXr[j]}, s47, v{vXr[j]}")
    e(f"v_add_u32 v{vWr}, s47, v{vWr}")
    e("s_add_u32 s40, s40, 1")
    e(f"s_cmp_lt_u32 s40, {NCH}")
    e("s_waitcnt lgkmcnt(0)")
    step(1, read_list(0, 0), first_after=1)
    e(f"s_cbranch_scc1 {pfx}_loop")
    e.ts()
    e("s_waitcnt lgkmcnt(0)")
    e("s_nop 15")
    e("s_nop 3")
    NTQ = NQ
    RS = 80
    TR = 32 * RS
    e("v_and_b32 v13, 31, v1")
    e("v_lshrrev_b32 v14, 5, v1")
    e(f"v_mul_u32_u24 v15, {RS}, v13")
    e("v_lshlrev_b32 v16, 3, v14")
    e("v_add_u32 v15, v15, v16")
    e(f"s_mul_i32 s40, s32, {NT*TR}")
    e("v_add_u32 v15, s40, v15")
    e("v_lshrrev_b32 v16, 2, v1")
    e(f"v_mul_u32_u24 v17, {RS}, v16")
    e("v_and_b32 v18, 3, v1")
    e("v_lshlrev_b32 v18, 4, v18")
    e("v_add_u32 v17, v17, v18")
    e("v_add_u32 v17, s40, v17")
    e("s_lshl_b32 s41, s32, 5")
    e("s_add_u32 s41, s41, s36")
    e("v_add_u32 v16, s41, v16")
    e("v_mul_lo_u32 v16, v16, s34")
    e("v_add_u32 v16, v16, v18")
    e("v_add_u32 v16, s38, v16")
    e("s_lshl_b32 s42, s34, 4")
    for t in range(NTQ):
        a = ACC + 16 * t
        for i in range(8):
            e(f"v_cvt_pk_bf16_f32 v{20+i}, v{a+2*i}, v{a+2*i+1}")
        for g in range(4):
            e(f"ds_write_b64 v15, v[{20+2*g}:{21+2*g}] offset:{t*TR + g*16}")
    e("s_waitcnt lgkmcnt(0)")
    for t in range(NTQ):
        e(f"ds_read_b128 v[{20+8*t}:{23+8*t}], v17 offset:{t*TR}")
        e(f"ds_read_b128 v[{24+8*t}:{27+8*t}], v17 offset:{t*TR + 16*RS}")
    for t in range(NTQ):
        if t == NTQ - 1 and not special:
            e(f"s_cmp_lt_u32 s39, {NTQ}")
            e(f"s_cbranch_scc1 {pfx}_skiplast")
        e(f"s_waitcnt lgkmcnt({2*(NTQ-1-t)})")
        fl = " sc1" if NT == 5 else ""
        e(f"buffer_store_dwordx4 v[{20+8*t}:{23+8*t}], v16, s[16:19], 0 offen offset:{64*t}{fl}")
        e(f"buffer_store_dwordx4 v[{24+8*t}:{27+8*t}], v16, s[16:19], s42 offen offset:{64*t}{fl}")
    if not special:
        e.label(f"{pfx}_skiplast")
    if special:
        e("s_lshr_b32 s43, s41, 5")
        e(f"s_mul_i32 s43, s43, {TILE_B}")
        a = ACC + 16 * TK
        for i in range(10):
            e(f"v_mul_f32 v{a+i}, s35, v{a+i}")
        for i in range(5):
            e(f"v_cvt_pk_bf16_f32 v{48+i}, v{a+2*i}, v{a+2*i+1}")
        e("v_lshlrev_b32 v56, 4, v13")
        e("v_lshlrev_b32 v57, 3, v14")
        e("v_add_u32 v56, v56, v57")
        e("buffer_store_dwordx2 v[48:49], v56, s[28:31], s43 offen")
        e("buffer_store_dwordx2 v[50:51], v56, s[28:31], s43 offen offset:512")
        e("v_lshlrev_b32 v57, 2, v13")
        e("v_cmp_gt_u32 vcc, 32, v1")
        e("s_and_saveexec_b64 s[52:53], vcc")
        e("buffer_store_dword v52, v57, s[28:31], s43 offen offset:1024")
        e("s_mov_b64 exec, s[52:53]")
        a = ACC + 16 * TV
        for i in range(8):
            e(f"v_cvt_pk_bf16_f32 v{40+i}, v{a+2*i}, v{a+2*i+1}")
        e("v_mov_b32 v58, 0x3f803f80")
        e("v_cmp_eq_u32 vcc, 18, v13")
        e("s_nop 1")
        for i in range(8):
            e(f"v_cndmask_b32 v{40+i}, v{40+i}, v58, vcc")
        e("v_cmp_ne_u32 vcc, 19, v13")
        e("s_nop 1")
        for i in range(8):
            e(f"v_cndmask_b32 v{40+i}, 0, v{40+i}, vcc")
        e("v_lshlrev_b32 v56, 4, v13")
        e("v_mul_u32_u24 v57, 320, v14")
        e("v_add_u32 v56, v56, v57")
        e("v_cmp_gt_u32 vcc, 20, v13")
        e("s_and_saveexec_b64 s[52:53], vcc")
        e("buffer_store_dwordx4 v[40:43], v56, s[28:31], s43 offen offset:1152")
        e("buffer_store_dwordx4 v[44:47], v56, s[28:31], s43 offen offset:1792")
        e("s_mov_b64 exec, s[52:53]")
    e.ts()
    e("s_waitcnt vmcnt(0)") if INSTR else None
    e.ts()
    e.ts_dump(4, 8, 0 if NT != 3 else 2)
    e("s_endpgm")
    return NSLOT * SLOT

def kd(name, vgpr, sgpr=64):
    if INSTR: sgpr = 102
    acc = (vgpr + 3) // 4 * 4
    return f""".amdhsa_kernel {name}
  .amdhsa_next_free_vgpr {vgpr}
  .amdhsa_next_free_sgpr {sgpr}
  .amdhsa_accum_offset {acc}
  .amdhsa_group_segment_fixed_size 0
  .amdhsa_kernarg_size 88
  .amdhsa_user_sgpr_count 2
  .amdhsa_user_sgpr_kernarg_segment_ptr 1
  .amdhsa_system_sgpr_workgroup_id_x 1
.end_amdhsa_kernel
"""

def header(e, name):
    e.l.append(f".globl {name}")
    e.l.append(".p2align 8")
    e.l.append(f".type {name},@function")
    e.label(name)

def stagger(e, a, b):
    if "nostag" in EXP:
        e("s_mov_b32 s50, 0"); return
    e(f"s_lshl_b32 s50, {b}, 1")
    e(f"s_add_u32 s50, s50, {a}")
    e("s_cmp_ge_u32 s50, 9")
    e("s_cselect_b32 s51, 9, 0")
    e("s_sub_u32 s50, s50, s51")

def gen_proj(e):
    header(e, "proj_kernel")
    e("s_cmp_ge_u32 s2, 256")
    e("s_cbranch_scc1 proj_exit")
    e("s_load_dwordx2 s[52:53], s[0:1], 0")
    e("s_load_dwordx2 s[54:55], s[0:1], 8")
    e("s_load_dwordx2 s[56:57], s[0:1], 24")
    e("s_load_dwordx2 s[58:59], s[0:1], 32")
    e("s_load_dwordx2 s[60:61], s[0:1], 40")
    e("s_load_dwordx2 s[62:63], s[0:1], 48")
    e("s_load_dwordx2 s[4:5], s[0:1], 80")
    e("s_and_b32 s6, s2, 7")
    e("s_lshr_b32 s7, s2, 3")
    e("s_and_b32 s3, s7, 7")
    e("s_lshr_b32 s7, s7, 3")
    e("s_waitcnt lgkmcnt(0)")
    e("s_cmp_lt_u32 s6, 2")
    e("s_cbranch_scc1 proj_B")
    e("s_sub_u32 s6, s6, 2")
    e("s_and_b32 s40, s6, 1")
    e("s_lshl_b32 s40, s40, 3")
    e("s_add_u32 s40, s40, s3")
    e("s_lshr_b32 s41, s6, 1")
    e("s_lshl_b32 s41, s41, 2")
    e("s_add_u32 s41, s41, s7")
    e("s_cmp_ge_u32 s41, 11")
    e("s_cbranch_scc1 proj_exit")
    srd(e, 8, 52, 53, 2048 * 1152)
    srd(e, 12, 54, 55, 576 * 3456)
    srd_off(e, 16, 4, 5, WS_QKVA, 2048 * 3456)
    e("s_movk_i32 s33, 3456")
    e("s_movk_i32 s34, 3456")
    e("s_mov_b32 s35, 1.0")
    e("s_lshl_b32 s36, s40, 7")
    e("s_mul_i32 s37, s41, 320")
    e("s_mov_b32 s38, s37")
    e("s_cmp_eq_u32 s41, 10")
    e("s_cselect_b32 s39, 4, 5")
    stagger(e, "s3", "s7")
    e("s_mov_b32 s6, s7")
    e("s_branch proj_generic")
    e.label("proj_B")
    e("s_lshl_b32 s40, s6, 3")
    e("s_add_u32 s40, s40, s3")
    srd(e, 8, 56, 57, 2048 * 1152)
    srd(e, 12, 58, 59, 576 * 1152)
    srd_off(e, 16, 4, 5, WS_QB, 2048 * 1152)
    e("s_movk_i32 s33, 1152")
    e("s_movk_i32 s34, 1152")
    e(f"s_mov_b32 s35, {f32bits(CSCALE):#x}")
    e("s_lshl_b32 s36, s40, 7")
    e("s_mul_i32 s37, s7, 320")
    e("s_mov_b32 s38, s37")
    e("s_mov_b32 s39, 5")
    stagger(e, "s3", "s7")
    e("s_mov_b32 s6, s7")
    e("s_cmp_eq_u32 s7, 3")
    e("s_cbranch_scc1 proj_special")
    e.label("proj_generic")
    lds = gen_gemm(e, "pg", 5, 4)
    e.label("proj_special")
    srd(e, 20, 60, 61, 576 * 36)
    srd(e, 24, 62, 63, 576 * 36)
    srd_off(e, 28, 4, 5, WS_KV, KVIMG_B)
    gen_gemm(e, "ps", 5, 4, special=True)
    e.label("proj_exit")
    e("s_endpgm")
    return lds

def gen_out(e):
    header(e, "outp_kernel")
    e("s_cmp_ge_u32 s2, 192")
    e("s_cbranch_scc1 outp_exit")
    e("s_load_dwordx2 s[52:53], s[0:1], 16")
    e("s_load_dwordx2 s[54:55], s[0:1], 56")
    e("s_load_dwordx2 s[56:57], s[0:1], 64")
    e("s_load_dwordx2 s[4:5], s[0:1], 80")
    e("s_and_b32 s6, s2, 7")
    e("s_lshr_b32 s7, s2, 3")
    e("s_and_b32 s3, s7, 1")
    e("s_bfe_u32 s41, s7, 0x10001")
    e("s_lshl_b32 s40, s6, 1")
    e("s_add_u32 s40, s40, s41")
    e("s_lshr_b32 s41, s7, 2")
    e("s_waitcnt lgkmcnt(0)")
    e(f"s_mov_b32 s42, {WS_OB}")
    e("s_cmp_eq_u32 s3, 0")
    e(f"s_cselect_b32 s42, {WS_OA}, s42")
    e("s_cselect_b32 s58, s52, s54")
    e("s_cselect_b32 s59, s53, s55")
    e("s_add_u32 s8, s4, s42")
    e("s_addc_u32 s9, s5, 0")
    e(f"s_mov_b32 s10, {2048*1152}")
    e("s_mov_b32 s11, 0x00020000")
    srd(e, 12, 58, 59, 576 * 1152)
    srd(e, 16, 56, 57, 2048 * 2304)
    e("s_movk_i32 s33, 1152")
    e("s_movk_i32 s34, 2304")
    e("s_mov_b32 s35, 1.0")
    e("s_lshl_b32 s36, s40, 7")
    e("s_mul_i32 s37, s41, 192")
    e("s_mul_i32 s38, s3, 1152")
    e("s_add_u32 s38, s38, s37")
    e("s_mov_b32 s39, 3")
    e("s_and_b32 s40, s40, 1")
    stagger(e, "s41", "s40")
    e("s_mov_b32 s6, s41")
    e("s_mov_b32 s3, s40")
    lds = gen_gemm(e, "og", 3, 5)
    e.label("outp_exit")
    e("s_endpgm")
    return lds

def gen_attn(e):
    header(e, "attn_kernel")
    Q1 = 12; Q2 = 16; C = 20; S = [36, 52]; P = [68, 76]; O = 84
    KF = [100, 104]; K2F = [108, 112]; VF = [116, 124]
    T = 132
    SLOTB = [97280, 130048]
    SYNC = 162816
    vK1 = 4; vK2 = 5; vV = 6
    e("s_cmp_ge_u32 s2, 256")
    e("s_cbranch_scc1 attn_exit")
    e.ts_reset()
    e.ts()
    e("s_load_dwordx2 s[4:5], s[0:1], 80")
    e("s_load_dwordx2 s[46:47], s[0:1], 16")
    e("s_load_dwordx2 s[48:49], s[0:1], 56")
    e("s_load_dwordx4 s[28:31], s[0:1], 0")
    e("v_and_b32 v1, 63, v0")
    e("v_lshrrev_b32 v7, 6, v0")
    e("v_and_b32 v2, 31, v1")
    e("v_readfirstlane_b32 s32, v7")
    e("v_lshrrev_b32 v3, 5, v1")
    e("s_and_b32 s3, s2, 7")
    e("s_lshl_b32 s33, s3, 8")
    e("s_lshr_b32 s6, s2, 3")
    e("s_lshl_b32 s35, s6, 3")
    e("s_add_u32 s33, s33, s35")
    e("v_lshlrev_b32 v7, 4, v1")
    e("v_mul_u32_u24 v8, 36, v2")
    e("v_lshlrev_b32 v9, 4, v3")
    e("v_add_u32 v9, v8, v9")
    e("s_waitcnt lgkmcnt(0)")
    srd_off(e, 16, 4, 5, WS_KV, KVIMG_B)
    e("s_cmp_ge_u32 s32, 8")
    e("s_cbranch_scc1 attn_helper")
    e("s_add_u32 s33, s33, s32")
    srd_off(e, 12, 4, 5, WS_QB, 2048 * 1152)
    e("s_mul_i32 s36, s33, 1152")
    e(f"buffer_load_dwordx4 v[{Q1}:{Q1+3}], v9, s[12:15], s36 offen")
    e(f"buffer_load_dword v{Q2}, v8, s[12:15], s36 offen offset:32")
    srd_off(e, 24, 4, 5, WS_OB, 2048 * 1152)
    e(f"v_lshlrev_b32 v{vK1}, 4, v1")
    e(f"v_lshlrev_b32 v{vK2}, 2, v2")
    e(f"v_add_u32 v{vK2}, 1024, v{vK2}")
    e(f"v_min_u32 v{vV}, 19, v2")
    e("v_cmp_eq_u32 vcc, 22, v2")
    e("v_mov_b32 v11, 18")
    e("s_nop 0")
    e(f"v_cndmask_b32 v{vV}, v{vV}, v11, vcc")
    e(f"v_lshlrev_b32 v{vV}, 4, v{vV}")
    e("v_mul_u32_u24 v11, 320, v3")
    e(f"v_add_u32 v{vV}, v{vV}, v11")
    e(f"v_add_u32 v{vV}, 1152, v{vV}")
    e("v_cmp_gt_u32 vcc, 32, v1")
    e(f"v_mov_b32 v{Q2+1}, 0")
    e(f"v_mov_b32 v{Q2+2}, 0")
    e(f"v_mov_b32 v{Q2+3}, 0")
    e("s_mov_b32 s40, 0")
    e("s_mov_b32 s50, 0x0047ffff")
    e("s_mov_b32 s51, 0x0047ffff")
    e.ts()
    e("s_waitcnt vmcnt(0)")
    e(f"v_cndmask_b32 v{Q2}, 0, v{Q2}, vcc")
    e.ts()
    e("s_barrier")
    e.ts()
    MB = [36, 52, 68, 84]
    KB = [100, 108, 116, 124]
    def ld128(dst, vlds, vglb, off, src, soff="0"):
        if src == "lds": e(f"ds_read_b128 v[{dst}:{dst+3}], v{vlds} offset:{off}")
        else: e(f"buffer_load_dwordx4 v[{dst}:{dst+3}], v{vglb}, s[16:19], {soff} offen offset:{off}")
    def ld32(dst, vlds, vglb, off, src, soff="0"):
        if src == "lds": e(f"ds_read_b32 v{dst}, v{vlds} offset:{off}")
        else: e(f"buffer_load_dword v{dst}, v{vglb}, s[16:19], {soff} offen offset:{off}")
    def wait(n, src):
        e(f"s_waitcnt {'lgkmcnt' if src == 'lds' else 'vmcnt'}({n})")
    def maxpass(src):
        e("v_mov_b32 v10, 0xff800000")
        if src == "glb":
            e("s_mov_b32 s42, 0")
            e.label("attn_maxloop")
        for i in range(4):
            if src == "glb":
                e(f"s_add_u32 s35, s42, {i*TILE_B}")
                ld128(KB[i], 0, vK1, 0, src, "s35"); ld32(KB[i]+4, 0, vK2, 0, src, "s35")
            else:
                ld128(KB[i], vK1, 0, i*TILE_B, src); ld32(KB[i]+4, vK2, 0, i*TILE_B, src)
        for i in range(4):
            e(f"v_mov_b32 v{KB[i]+5}, 0")
        for i in range(4):
            wait(6-2*i, src)
            e(f"v_mfma_f32_32x32x16_bf16 v[{MB[i]}:{MB[i]+15}], v[{KB[i]}:{KB[i]+3}], v[{Q1}:{Q1+3}], 0")
        e("s_nop 9")
        for i in range(4):
            e(f"v_mfma_f32_32x32x8_bf16 v[{MB[i]}:{MB[i]+15}], v[{KB[i]+4}:{KB[i]+5}], v[{Q2}:{Q2+1}], v[{MB[i]}:{MB[i]+15}]")
        e("s_nop 9")
        for i in range(4):
            if i == 3:
                e("s_nop 3")
            for j in range(8):
                e(f"v_max3_f32 v10, v{MB[i]+2*j}, v{MB[i]+2*j+1}, v10")
        if src == "glb":
            e(f"s_add_u32 s42, s42, {4*TILE_B}")
            e(f"s_cmp_lt_u32 s42, {64*TILE_B}")
            e("s_cbranch_scc1 attn_maxloop")
    def prologue(src):
        e(f"v_mov_b32 v{T}, v{vK1}")
        e(f"v_mov_b32 v{T+1}, v{vK2}")
        e(f"v_mov_b32 v{T+2}, v{vV}")
        ld128(KF[0], T, vK1, 0, src); ld32(K2F[0], T+1, vK2, 0, src)
        ld128(KF[1], T, vK1, TILE_B, src); ld32(K2F[1], T+1, vK2, TILE_B, src)
        e("v_mov_b32 v11, v10")
        e("s_nop 1")
        e("v_permlane32_swap_b32 v10, v11")
        e("v_max_f32 v10, v10, v11")
        e("v_sub_f32 v10, 0, v10")
        e(f"v_cvt_pk_bf16_f32 v{C}, v10, 0")
        e(f"v_lshlrev_b32 v{C}, 16, v{C}")
        e(f"v_sub_f32 v10, v10, v{C}")
        e(f"v_cvt_pk_bf16_f32 v{C+1}, v10, 0")
        e(f"v_lshlrev_b32 v{C+1}, 16, v{C+1}")
        e(f"v_sub_f32 v10, v10, v{C+1}")
        e("v_cmp_gt_u32 vcc, 32, v1")
        e(f"v_cvt_pk_bf16_f32 v{C+2}, v{C}, v{C+1}")
        e(f"v_cvt_pk_bf16_f32 v{C+3}, v10, 0")
        e(f"v_cndmask_b32 v{Q2+1}, v{C+3}, v{C+2}, vcc")
        for b in range(2):
            e(f"v_mov_b32 v{K2F[b]+1}, 0x3f803f80")
        wait(2, src)
        e(f"v_mfma_f32_32x32x16_bf16 v[{S[0]}:{S[0]+15}], v[{KF[0]}:{KF[0]+3}], v[{Q1}:{Q1+3}], 0")
        for i in range(16):
            e(f"v_mov_b32 v{O+i}, 0")

        e(f"v_mfma_f32_32x32x8_bf16 v[{S[0]}:{S[0]+15}], v[{K2F[0]}:{K2F[0]+1}], v[{Q2}:{Q2+1}], v[{S[0]}:{S[0]+15}]")
        for i in range(8):
            e(f"v_mov_b32 v{P[1]+i}, 0")
            e(f"v_mov_b32 v{VF[1]+i}, 0")
    def tile(tt, top=None, src="lds"):
        cur = tt & 1; nxt = cur ^ 1
        wait(0, src)
        if top: top()
        if src == "lds":
            ld128(KF[cur], T, 0, (tt+2)*TILE_B, src); ld32(K2F[cur], T+1, 0, (tt+2)*TILE_B, src)
            ld128(VF[cur], T+2, 0, tt*TILE_B, src); ld128(VF[cur]+4, T+2, 0, tt*TILE_B+640, src)
        else:
            e(f"s_add_u32 s35, s42, {2*TILE_B}")
            ld128(KF[cur], 0, vK1, 0, src, "s35"); ld32(K2F[cur], 0, vK2, 0, src, "s35")
            ld128(VF[cur], 0, vV, 0, src, "s42"); ld128(VF[cur]+4, 0, vV, 640, src, "s42")
            e(f"s_add_u32 s42, s42, {TILE_B}")
        m = [f"v_mfma_f32_32x32x16_bf16 v[{S[nxt]}:{S[nxt]+15}], v[{KF[nxt]}:{KF[nxt]+3}], v[{Q1}:{Q1+3}], 0",
             f"v_mfma_f32_32x32x16_bf16 v[{O}:{O+15}], v[{VF[nxt]}:{VF[nxt]+3}], v[{P[nxt]}:{P[nxt]+3}], v[{O}:{O+15}]",
             f"v_mfma_f32_32x32x8_bf16 v[{S[nxt]}:{S[nxt]+15}], v[{K2F[nxt]}:{K2F[nxt]+1}], v[{Q2}:{Q2+1}], v[{S[nxt]}:{S[nxt]+15}]",
             f"v_mfma_f32_32x32x16_bf16 v[{O}:{O+15}], v[{VF[nxt]+4}:{VF[nxt]+7}], v[{P[nxt]+4}:{P[nxt]+7}], v[{O}:{O+15}]"]
        for g in range(4):
            e(m[g])
            for i in range(4):
                e(f"v_exp_f32 v{S[cur]+4*g+i}, v{S[cur]+4*g+i}")
            for i in range(2):
                j = 2 * g + i
                e(f"v_cvt_pk_bf16_f32 v{P[cur]+j}, v{S[cur]+2*j}, v{S[cur]+2*j+1}")
    maxpass("lds")
    prologue("lds")
    e("s_mov_b32 s42, 0")
    e.ts()
    e.label("attn_loop1")
    def topbar(it, name):
        def f():
            e(f"s_cmp_lg_u32 s42, {it}")
            e(f"s_cbranch_scc1 {name}")
            e("s_barrier")
            e.label(name)
        return f
    for tt in range(8):
        tile(tt, topbar(0, "attn_nobar1") if tt == HB1_TT else None)
    for i in range(3):
        e(f"v_add_u32 v{T+i}, {8*TILE_B}, v{T+i}")
    e("s_add_u32 s42, s42, 1")
    e("s_cmp_lt_u32 s42, 8")
    e("s_cbranch_scc1 attn_loop1")
    e("s_branch attn_done")
    e.label("attn_restart")
    maxpass("glb")
    prologue("glb")
    e("s_mov_b32 s42, 0")
    e.label("attn_loop2")
    for tt in range(2):
        tile(tt, src="glb")
    e(f"s_cmp_lt_u32 s42, {64*TILE_B}")
    e("s_cbranch_scc1 attn_loop2")
    e("s_waitcnt vmcnt(0)")
    e.label("attn_done")
    e.ts()
    e("s_waitcnt lgkmcnt(0)")
    e(f"v_mfma_f32_32x32x16_bf16 v[{O}:{O+15}], v[{VF[1]}:{VF[1]+3}], v[{P[1]}:{P[1]+3}], v[{O}:{O+15}]")
    e(f"v_mfma_f32_32x32x16_bf16 v[{O}:{O+15}], v[{VF[1]+4}:{VF[1]+7}], v[{P[1]+4}:{P[1]+7}], v[{O}:{O+15}]")
    e("s_nop 15")
    e("s_nop 3")
    e("s_cmp_lg_u32 s40, 0")
    e("s_cbranch_scc1 attn_fin")
    e("v_mov_b32 v10, 0x71800000")
    e(f"v_cmp_nlt_f32 vcc, v{O+10}, v10")
    e("s_mov_b64 s[44:45], vcc")
    e("v_mov_b32 v10, 0x207")
    for i in range(10):
        e(f"v_cmp_class_f32 vcc, v{O+i}, v10")
        e("s_or_b64 s[44:45], s[44:45], vcc")
    e("s_cmp_eq_u64 s[44:45], 0")
    e("s_cbranch_scc1 attn_fin")
    e("s_mov_b32 s40, 1")
    e("s_branch attn_restart")
    e.label("attn_fin")
    e(f"v_rcp_f32 v10, v{O+10}")
    e("s_nop 0")
    for i in range(10):
        e(f"v_mul_f32 v{O+i}, v{O+i}, v10")
    for i in range(5):
        e(f"v_cvt_pk_bf16_f32 v{S[0]+i}, v{O+2*i}, v{O+2*i+1}")
    e("v_lshlrev_b32 v10, 3, v3")
    e("v_add_u32 v10, v8, v10")
    e(f"buffer_store_dwordx2 v[{S[0]}:{S[0]+1}], v10, s[24:27], s36 offen")
    e(f"buffer_store_dwordx2 v[{S[0]+2}:{S[0]+3}], v10, s[24:27], s36 offen offset:16")
    e("v_cmp_gt_u32 vcc, 32, v1")
    e("s_and_saveexec_b64 s[44:45], vcc")
    e(f"buffer_store_dword v{S[0]+4}, v8, s[24:27], s36 offen offset:32")
    e.ts()
    e.ts_dump(4, 12, 1)
    e("s_endpgm")
    e.label("attn_helper")
    e.nts = 1
    if "hprio" in EXP: e("s_setprio 1")
    e("s_sub_u32 s41, s32, 8")
    e("s_lshl_b32 s34, s41, 10")
    def kvdma(i4):
        e(f"s_add_u32 m0, s34, {i4*4096}")
        e(f"s_add_u32 s35, s34, {i4*4096}")
        e("buffer_load_dwordx4 v7, s[16:19], s35 offen lds")
    for i4 in range(6):
        kvdma(i4)
    e("s_waitcnt vmcnt(0)")
    e("s_barrier")
    e.ts()
    for i4 in range(6, 38):
        kvdma(i4)
    srd_off(e, 8, 4, 5, WS_QKVA, 2048 * 3456)
    srd_off(e, 20, 4, 5, WS_OA, 2048 * 1152)
    srd(e, 12, 46, 47, 576 * 1152)
    srd(e, 60, 48, 49, 576 * 1152)
    e("s_lshl_b32 s40, s41, 1")
    e("s_add_u32 s40, s40, s33")
    e("s_add_u32 s42, s40, 2")
    e(f"s_mov_b32 s38, {f32bits(CSCALE):#x}")
    e("s_waitcnt vmcnt(0)")
    e("s_barrier")
    e.ts()
    e("s_lshl_b32 s39, s6, 2")
    e("s_add_u32 s39, s39, s41")
    e("s_mul_i32 s39, s39, 5248")
    e("v_min_u32 v24, 40, v1")
    e("v_lshlrev_b32 v24, 7, v24")
    e("buffer_load_dword v155, v24, s[12:15], s39 offen")
    e("buffer_load_dword v155, v24, s[60:63], s39 offen")
    AQ = 20; AK = 30; AV = 70; AO = 110; OA = 128; W = 134; R = 12
    e.label("attn_a_loop")
    e("v_lshlrev_b32 v10, 3, v3")
    e("v_sub_u32 v10, s40, v10")
    e("s_mul_i32 s35, s40, 3456")
    e(f"buffer_load_dwordx4 v[{AQ}:{AQ+3}], v8, s[8:11], s35 offen")
    e(f"buffer_load_dwordx4 v[{AQ+4}:{AQ+7}], v8, s[8:11], s35 offen offset:16")
    e(f"buffer_load_dword v{AQ+8}, v8, s[8:11], s35 offen offset:32")
    for i in range(4):
        e(f"v_subrev_u32 v{R+i}, {2*i}, v10")
        e(f"v_max_i32 v11, 0, v{R+i}")
        e("v_mul_u32_u24 v11, 3456, v11")
        e(f"v_add_u32 v{R+4+i}, v11, v8")
        k = AK + 10 * i; v = AV + 10 * i
        e(f"buffer_load_dwordx4 v[{k}:{k+3}], v{R+4+i}, s[8:11], 0 offen offset:1152")
        e(f"buffer_load_dwordx4 v[{k+4}:{k+7}], v{R+4+i}, s[8:11], 0 offen offset:1168")
        e(f"buffer_load_dword v{k+8}, v{R+4+i}, s[8:11], 0 offen offset:1184")
        e(f"buffer_load_dwordx4 v[{v}:{v+3}], v{R+4+i}, s[8:11], 0 offen offset:2304")
        e(f"buffer_load_dwordx4 v[{v+4}:{v+7}], v{R+4+i}, s[8:11], 0 offen offset:2320")
        e(f"buffer_load_dword v{v+8}, v{R+4+i}, s[8:11], 0 offen offset:2336")
    e("s_waitcnt vmcnt(0)")
    L = W
    for i in range(4):
        k = AK + 10 * i
        e(f"v_dot2_f32_bf16 v{L+i}, v{AQ}, v{k}, 0")
    for j in range(1, 9):
        for i in range(4):
            k = AK + 10 * i
            e(f"v_dot2_f32_bf16 v{L+i}, v{AQ+j}, v{k+j}, v{L+i}")
    e(f"v_mov_b32 v{W+4}, 0xff800000")
    e("s_nop 2")
    for i in range(4):
        e(f"v_mul_f32 v{L+i}, s38, v{L+i}")
        e(f"v_cmp_gt_i32 vcc, 0, v{R+i}")
        e("s_nop 1")
        e(f"v_cndmask_b32 v{L+i}, v{L+i}, v{W+4}, vcc")
    M = W + 5
    e(f"v_max_f32 v{M}, v{L}, v{L+1}")
    e(f"v_max3_f32 v{M}, v{L+2}, v{L+3}, v{M}")
    e(f"v_mov_b32 v{M+1}, v{M}")
    e("s_nop 1")
    e(f"v_permlane32_swap_b32 v{M}, v{M+1}")
    e(f"v_max_f32 v{M}, v{M}, v{M+1}")
    for i in range(4):
        e(f"v_sub_f32 v{L+i}, v{L+i}, v{M}")
    for i in range(4):
        e(f"v_exp_f32 v{L+i}, v{L+i}")
    e("s_nop 0")
    e(f"v_add_f32 v{M+2}, v{L}, v{L+1}")
    e(f"v_add_f32 v{M+3}, v{L+2}, v{L+3}")
    e(f"v_add_f32 v{M+2}, v{M+2}, v{M+3}")
    e(f"v_mov_b32 v{M+3}, v{M+2}")
    e("s_nop 1")
    e(f"v_permlane32_swap_b32 v{M+2}, v{M+3}")
    e(f"v_add_f32 v{M+2}, v{M+2}, v{M+3}")
    e(f"v_rcp_f32 v{M+2}, v{M+2}")
    e("s_nop 0")
    PL = W + 10; PH = W + 14
    for i in range(4):
        e(f"v_mul_f32 v{L+i}, v{L+i}, v{M+2}")
    for i in range(4):
        e(f"v_cvt_pk_bf16_f32 v{PL+i}, v{L+i}, 0")
        e(f"v_cvt_pk_bf16_f32 v{PH+i}, 0, v{L+i}")
    for i in range(4):
        v = AV + 10 * i
        for j in range(9):
            if i == 0:
                e(f"v_dot2_f32_bf16 v{AO+2*j}, v{v+j}, v{PL+i}, 0")
                e(f"v_dot2_f32_bf16 v{AO+2*j+1}, v{v+j}, v{PH+i}, 0")
            else:
                e(f"v_dot2_f32_bf16 v{AO+2*j}, v{v+j}, v{PL+i}, v{AO+2*j}")
                e(f"v_dot2_f32_bf16 v{AO+2*j+1}, v{v+j}, v{PH+i}, v{AO+2*j+1}")
    e("s_nop 2")
    e(f"v_mov_b32 v{W}, v{AO+16}")
    e(f"v_mov_b32 v{W+1}, v{AO+17}")
    e("s_nop 2")
    for d in range(8):
        e(f"v_permlane32_swap_b32 v{AO+d}, v{AO+d+8}")
    e(f"v_permlane32_swap_b32 v{AO+16}, v{W}")
    e(f"v_permlane32_swap_b32 v{AO+17}, v{W+1}")
    for d in range(8):
        e(f"v_add_f32 v{AO+d}, v{AO+d}, v{AO+d+8}")
    e(f"v_add_f32 v{AO+16}, v{AO+16}, v{W}")
    e(f"v_add_f32 v{AO+17}, v{AO+17}, v{W+1}")
    for i in range(4):
        e(f"v_cvt_pk_bf16_f32 v{OA+i}, v{AO+2*i}, v{AO+2*i+1}")
    e(f"v_cvt_pk_bf16_f32 v{OA+4}, v{AO+16}, v{AO+17}")
    e("s_mul_i32 s36, s40, 1152")
    e(f"buffer_store_dwordx4 v[{OA}:{OA+3}], v9, s[20:23], s36 offen")
    e(f"buffer_store_dword v{OA+4}, v8, s[20:23], s36 offen offset:32")
    e("s_add_u32 s40, s40, 1")
    e("s_cmp_lt_u32 s40, s42")
    e("s_cbranch_scc1 attn_a_loop")
    e.ts()
    e.ts_dump(4, 12, 1)
    e.label("attn_exit")
    e("s_endpgm")
    return 160768

def main():
    global INSTR
    INSTR = len(sys.argv) > 2 and sys.argv[2] == "instr"
    EXP.update(sys.argv[3:])
    global PFD, PLOOK
    for x in sys.argv[3:]:
        if x.startswith("pf="): PFD = int(x[3:])
        if x.startswith("pl="): PLOOK = int(x[3:])
        if x.startswith("tp="):
            global TPUB_, TPOLL_, TB11_
            TPUB_, TPOLL_, TB11_ = [int(y) for y in x[3:].split(",")]
    e = E()
    l1 = gen_proj(e)
    l2 = gen_attn(e)
    l3 = gen_out(e)
    ref = open(f"cdna_kernels/{NAME}.s.ref").read().splitlines()
    head = [l for l in ref if l.startswith(";") and "@launch" not in l and "Override" not in l and "grid=ceil" not in l]
    out = "\n".join(head) + "\n"
    out += f"; @launch kernel=proj_kernel grid=(256,1,1) block=(512,1,1) lds={l1}\n"
    out += f"; @launch kernel=attn_kernel grid=(256,1,1) block=(768,1,1) lds={l2}\n"
    out += f"; @launch kernel=outp_kernel grid=(192,1,1) block=(512,1,1) lds={l3}\n"
    out += '.amdgcn_target "amdgcn-amd-amdhsa--gfx950"\n.text\n'
    out += e.text()
    out += "code_end:\n"
    out += '.section .rodata,"a"\n.p2align 6\nkd_start:\n'
    out += kd("proj_kernel", 144)
    out += ".p2align 6\n" + kd("attn_kernel", 160)
    out += ".p2align 6\n" + kd("outp_kernel", 112)
    path = sys.argv[1] if len(sys.argv) > 1 else f"cdna_kernels/{NAME}.s"
    open(path, "w").write(out)

main()
```

```python
import struct, sys, math

NAME = "concat_heads__sliding_local_dilated__grouped_kv_mqa__prompt"

WS_QKVA = 0x000000
WS_QB   = 0x700000
WS_KV   = 0xA00000
WS_FLAG = 0xA80000
WS_OA   = 0xB00000
WS_OB   = 0xE00000
TILE_B  = 2432
KVIMG_B = 64 * TILE_B

def f32bits(x):
    return struct.unpack("<I", struct.pack("<f", x))[0]

CSCALE = (18 ** -0.5) * math.log2(math.e)

INSTR = False
EXP = set()
PFD = 5
PLOOK = 2
HB1_TT = 6
KVLEAD = 11
WARM_AT = 9
TPUB_ = 46
TPOLL_ = 50
TB11_ = 52
WS_DBG = 0x1200000
class E:
    def __init__(self):
        self.l = []
        self.nts = 0
    def ts_reset(self):
        self.nts = 0
        if INSTR: self("s_memrealtime s[100:101]")
    def ts(self):
        if not INSTR: return
        k = self.nts; self.nts += 1
        self(f"s_memtime s[{64+2*k}:{65+2*k}]")
    def ts_dump(self, wsreg, waves_per_wg, kid):
        if not INSTR: return
        n = self.nts
        self(f"s_memrealtime s[96:97]")
        self("s_waitcnt lgkmcnt(0)")
        self("s_mov_b64 exec, -1")
        self(f"s_add_u32 s92, s{wsreg}, {WS_DBG + kid*0x100000}")
        self(f"s_addc_u32 s93, s{wsreg+1}, 0")
        self("s_mov_b32 s94, 0x100000")
        self("s_mov_b32 s95, 0x00020000")
        self(f"s_mul_i32 s98, s2, {waves_per_wg}")
        self("s_add_u32 s98, s98, s32")
        self("s_lshl_b32 s98, s98, 6")
        self("v_mov_b32 v1, 0")
        for k in range(n):
            self(f"v_mov_b32 v2, s{64+2*k}")
            self(f"buffer_store_dword v2, v1, s[92:95], s98 offen offset:{4*k}")
        self("v_mov_b32 v2, s96")
        self(f"buffer_store_dword v2, v1, s[92:95], s98 offen offset:60")
        self("v_mov_b32 v2, s100")
        self(f"buffer_store_dword v2, v1, s[92:95], s98 offen offset:56")
    def __call__(self, s):
        self.l.append("    " + s)
    def label(self, s):
        self.l.append(s + ":")
    def c(self, s):
        self.l.append("    ; " + s)
    def text(self):
        return "\n".join(self.l) + "\n"

def srd(e, d, lo, hi, nbytes):
    e(f"s_mov_b32 s{d}, s{lo}")
    e(f"s_mov_b32 s{d+1}, s{hi}")
    e(f"s_mov_b32 s{d+2}, {nbytes}")
    e(f"s_mov_b32 s{d+3}, 0x00020000")

def srd_off(e, d, lo, hi, off, nbytes):
    e(f"s_add_u32 s{d}, s{lo}, {off}")
    e(f"s_addc_u32 s{d+1}, s{hi}, 0")
    e(f"s_mov_b32 s{d+2}, {nbytes}")
    e(f"s_mov_b32 s{d+3}, 0x00020000")

def gen_gemm(e, pfx, NT, NSLOT, special=False):
    P = PLOOK
    XB = 16384
    SLOT = XB + NT * 4096
    NCH = 9
    XS_ = 6; XRS = 24; WRS = 16; WL = 2
    NQ = NT - 2 if special else NT
    TK = NT - 2; TV = NT - 1
    D = 4 + NQ + (8 if special else 0)
    vX = [2, 3, 4, 5]; vW = 6; vKV = 7
    vXr = [8, 9, 10, 11]; vWr = 12
    F = [16, 16 + 4 + 4 * NT]
    ACC = 64
    e.c(f"---- gemm body {pfx} NT={NT} NSLOT={NSLOT} special={special}")
    e.ts_reset()
    e.ts()
    e("v_and_b32 v1, 63, v0")
    e("v_lshrrev_b32 v13, 6, v0")
    e("s_nop 0")
    e("v_readfirstlane_b32 s32, v13")
    e("s_nop 3")
    e("s_cmp_lt_u32 s32, 4")
    e(f"s_cbranch_scc1 {pfx}_compute")
    e("s_sub_u32 s51, s32, 4")
    e("v_lshrrev_b32 v13, 3, v1")
    e("v_lshrrev_b32 v14, 4, v1")
    e("v_and_b32 v15, 7, v1")
    e("s_lshl_b32 s40, s51, 5")
    e("s_add_u32 s40, s40, s36")
    e("s_movk_i32 s41, 1152")
    for j in range(4):
        e(f"v_add_u32 v16, {4*j}, v14")
        e("v_and_b32 v16, 7, v16")
        e("v_xor_b32 v16, v16, v15")
        e("v_lshlrev_b32 v16, 4, v16")
        e(f"v_add_u32 v17, {8*j}, v13")
        e("v_add_u32 v17, s40, v17")
        e("v_mul_lo_u32 v17, v17, s41")
        e(f"v_add_u32 v{vX[j]}, v16, v17")
    e("v_lshrrev_b32 v16, 2, v1")
    e("s_lshl_b32 s40, s51, 4")
    e("v_add_u32 v16, s40, v16")
    e("v_mul_lo_u32 v16, v16, s33")
    e("v_and_b32 v17, 3, v1")
    e("v_lshlrev_b32 v17, 4, v17")
    e("v_add_u32 v16, v16, v17")
    e(f"v_add_u32 v{vW}, s37, v16")
    if special:
        e("v_add_u32 v16, s40, v14")
        e("v_mul_u32_u24 v16, 36, v16")
        e("v_and_b32 v17, 15, v1")
        e("v_min_u32 v17, 8, v17")
        e("v_lshlrev_b32 v17, 2, v17")
        e(f"v_add_u32 v{vKV}, v16, v17")
    e("s_lshl_b32 s48, s33, 6")
    e("s_mov_b32 s46, s50")
    e("s_lshl_b32 s44, s51, 12")
    e("s_lshl_b32 s45, s51, 10")
    e(f"s_add_u32 s45, s45, {XB}")

    def dma_chunk(n):
        sb = (n % NSLOT) * SLOT
        e("s_lshl_b32 s41, s46, 7")
        e("s_mul_i32 s42, s46, s48")
        if special:
            e("s_mul_i32 s43, s46, 2304")
        e("s_add_u32 s46, s46, 1")
        e(f"s_cmp_eq_u32 s46, {NCH}")
        e("s_cselect_b32 s46, 0, s46")
        if "nodma" in EXP: return
        for j in range(4):
            e(f"s_add_u32 m0, s44, {sb + j*1024}")
            e("s_nop 0")
            e(f"buffer_load_dwordx4 v{vX[j]}, s[8:11], s41 offen lds")
        for t in range(NQ):
            e(f"s_add_u32 m0, s45, {sb + t*4096 - 64*t}")
            e("s_nop 0")
            e(f"buffer_load_dwordx4 v{vW}, s[12:15], s42 offen offset:{64*t} lds")
        if special:
            for (t, sr) in ((TK, 20), (TV, 24)):
                for q in range(4):
                    e(f"s_add_u32 m0, s45, {sb + t*4096 + q*256 - 144*q}")
                    e("s_nop 0")
                    e(f"buffer_load_dword v{vKV}, s[{sr}:{sr+3}], s43 offen offset:{144*q} lds")
    for n in range(P):
        dma_chunk(n)
    for c in range(NCH + 1):
        issued = min(c - 1 + P, NCH - 1)
        allowed = max(issued - c, 0)
        e(f"s_waitcnt vmcnt({allowed*D})")
        e("s_barrier")
        if c + P <= NCH - 1:
            dma_chunk(c + P)
        if NT == 2 and c == WARM_AT and "k1warm" in EXP:
            e("s_load_dwordx4 s[40:43], s[0:1], 0")
            e("s_lshr_b32 s46, s2, 3")
            e("s_lshl_b32 s46, s46, 2")
            e("s_add_u32 s46, s46, s51")
            e("v_lshlrev_b32 v13, 7, v1")
            e("s_waitcnt lgkmcnt(0)")
            e("s_mov_b32 s52, s42")
            e("s_mov_b32 s53, s43")
            e(f"s_mov_b32 s54, {576*3456}")
            e("s_mov_b32 s55, 0x00020000")
            e("s_lshl_b32 s47, s46, 13")
            for i in range(4):
                e(f"s_add_u32 s49, s47, {i*80*8192}")
                e("buffer_load_dword v14, v13, s[52:55], s49 offen")
            e("s_mov_b32 s52, s40")
            e("s_mov_b32 s53, s41")
            e(f"s_mov_b32 s54, {2048*1152}")
            e("s_and_b32 s47, s2, 7")
            e("s_mul_i32 s47, s47, 294912")
            e("s_mul_i32 s49, s46, 3712")
            e("s_add_u32 s49, s49, s47")
            e("v_min_u32 v13, 28, v1")
            e("v_lshlrev_b32 v13, 7, v13")
            e("buffer_load_dword v14, v13, s[52:55], s49 offen")
    e("s_endpgm")
    e.label(f"{pfx}_compute")
    if pfx == "pg" and "nocw" not in EXP:
        e("s_cmp_gt_u32 s2, 7")
        e("s_cbranch_scc1 pg_nocw")
        e("s_cmp_lg_u32 s32, 0")
        e("s_cbranch_scc1 pg_nocw")
        e("s_getpc_b64 s[56:57]")
        e.label("pg_cw_pc")
        e("s_add_u32 s56, s56, attn_kernel-pg_cw_pc")
        e("s_addc_u32 s57, s57, 0")
        e("v_lshlrev_b32 v13, 7, v1")
        for i in range(3):
            e(f"v_add_u32 v14, {i*8192}, v13")
            e("v_min_u32 v14, code_end-attn_kernel-4, v14")
            e("global_load_dword v2, v14, s[56:57]")
        e("s_getpc_b64 s[56:57]")
        e("s_add_u32 s56, s56, kd_start@rel32@lo+4")
        e("s_addc_u32 s57, s57, kd_start@rel32@hi+12")
        e("v_and_b32 v14, 3, v1")
        e("v_lshlrev_b32 v14, 6, v14")
        e("v_min_u32 v14, 128, v14")
        e("global_load_dword v2, v14, s[56:57]")
        e.label("pg_nocw")
    PF = PFD
    e("v_bfe_u32 v13, v1, 2, 3")
    e(f"s_mul_i32 s40, s6, {XRS}")
    e("s_add_u32 s40, s40, s36")
    e(f"s_mul_i32 s41, s32, {XRS//4}")
    e("s_add_u32 s40, s40, s41")
    e("v_add_u32 v14, s40, v13")
    e("v_mul_u32_u24 v3, 1152, v14")
    e("v_bfe_u32 v13, v1, 4, 2")
    e(f"v_min_u32 v13, {WRS//4-1}, v13")
    e(f"s_mul_i32 s40, s3, {WRS}")
    e(f"s_mul_i32 s41, s32, {WRS//4}")
    e("s_add_u32 s40, s40, s41")
    e("v_add_u32 v13, s40, v13")
    e("v_mul_lo_u32 v13, v13, s33")
    e("v_bfe_u32 v14, v1, 2, 2")
    e(f"v_min_u32 v14, {WL-1}, v14")
    e("v_lshlrev_b32 v14, 7, v14")
    e("v_add_u32 v13, v13, v14")
    e("v_add_u32 v4, s37, v13")
    e("s_lshl_b32 s48, s33, 6")
    e(f"s_movk_i32 s54, {128*P}")
    e(f"s_mul_i32 s55, s48, {P}")
    def pf():
        if "pf" not in EXP: return
        e("buffer_load_dword v2, v3, s[8:11], s54 offen")
        e("buffer_load_dword v2, v4, s[12:15], s55 offen")
        e("s_add_u32 s54, s54, 128")
        e("s_add_u32 s55, s55, s48")
    for _ in range(P, PF):
        pf()
    e("v_and_b32 v13, 31, v1")
    e("v_lshrrev_b32 v14, 5, v1")
    e("v_lshrrev_b32 v15, 1, v13")
    e("v_and_b32 v15, 7, v15")
    e("v_lshlrev_b32 v16, 7, v13")
    e("s_lshl_b32 s40, s32, 12")
    e("v_add_u32 v16, s40, v16")
    e("v_lshlrev_b32 v17, 2, v14")
    for j in range(4):
        e(f"v_add_u32 v18, {j}, v17")
        e("v_xor_b32 v18, v18, v15")
        e("v_lshlrev_b32 v18, 4, v18")
        e(f"v_add_u32 v{vXr[j]}, v16, v18")
    e("v_lshlrev_b32 v16, 11, v14")
    e("v_bfe_u32 v17, v1, 2, 2")
    e("v_lshlrev_b32 v17, 6, v17")
    e("v_add_u32 v16, v16, v17")
    e("v_bfe_u32 v17, v1, 4, 1")
    e("v_lshlrev_b32 v17, 5, v17")
    e("v_add_u32 v16, v16, v17")
    e("v_and_b32 v17, 3, v1")
    e("v_lshlrev_b32 v17, 3, v17")
    e("v_add_u32 v16, v16, v17")
    e(f"v_add_u32 v{vWr}, {XB}, v16")
    for i in range(NT * 16):
        e(f"v_mov_b32 v{ACC+i}, 0")
    e(f"s_mov_b32 s7, {SLOT}")

    def read_list(j, fb):
        b = F[fb]
        l = [f"ds_read_b128 v[{b}:{b+3}], v{vXr[j]}"]
        for t in range(NT):
            r = b + 4 + 4 * t
            l.append(f"ds_read_b64_tr_b16 v[{r}:{r+1}], v{vWr} offset:{t*4096 + j*512}")
            l.append(f"ds_read_b64_tr_b16 v[{r+2}:{r+3}], v{vWr} offset:{t*4096 + j*512 + 256}")
        if "noread" in EXP: l = []
        return l
    def mfma(fb, t):
        if "nomfma" in EXP: return
        b = F[fb]
        r = b + 4 + 4 * t
        a = ACC + 16 * t
        if special and t == TV:
            e(f"v_mfma_f32_32x32x16_bf16 v[{a}:{a+15}], v[{b}:{b+3}], v[{r}:{r+3}], v[{a}:{a+15}]")
        else:
            e(f"v_mfma_f32_32x32x16_bf16 v[{a}:{a+15}], v[{r}:{r+3}], v[{b}:{b+3}], v[{a}:{a+15}]")
    NR = 1 + 2 * NT
    def step(fb, nxt_reads, first_after=0):
        per = {}
        k = 0
        slots = list(range(first_after, NT - 1)) or [first_after]
        q = list(nxt_reads)
        chunk = -(-len(q) // min(len(slots), 3))
        issued_new = 0
        for t in range(NT):
            if first_after == 0:
                allowed = NR - (2 * t + 3) + issued_new
                e(f"s_waitcnt lgkmcnt({min(allowed, 15)})")
            mfma(fb, t)
            if t == 0 and first_after == 1:
                e("s_barrier")
            if t >= first_after - (1 if first_after == 1 else 0) and q:
                for _ in range(min(chunk, len(q))):
                    e(q.pop(0)); issued_new += 1
        assert not q
    e("s_mov_b32 s40, 0")
    e("s_mov_b32 s49, 0")
    e.ts()
    e("s_barrier")
    e.ts()
    for r in read_list(0, 0): e(r)
    e.label(f"{pfx}_loop")
    pf()
    step(0, read_list(1, 1))
    step(1, read_list(2, 0))
    step(0, read_list(3, 1))
    e("s_add_u32 s49, s49, 1")
    e(f"s_cmp_eq_u32 s49, {NSLOT}")
    e(f"s_cselect_b32 s47, {-(NSLOT-1)*SLOT}, s7")
    e("s_cselect_b32 s49, 0, s49")
    for j in range(4):
        e(f"v_add_u32 v{vXr[j]}, s47, v{vXr[j]}")
    e(f"v_add_u32 v{vWr}, s47, v{vWr}")
    e("s_add_u32 s40, s40, 1")
    e(f"s_cmp_lt_u32 s40, {NCH}")
    e("s_waitcnt lgkmcnt(0)")
    step(1, read_list(0, 0), first_after=1)
    e(f"s_cbranch_scc1 {pfx}_loop")
    e.ts()
    e("s_waitcnt lgkmcnt(0)")
    e("s_nop 15")
    e("s_nop 3")
    NTQ = NQ
    RS = 80
    TR = 32 * RS
    e("v_and_b32 v13, 31, v1")
    e("v_lshrrev_b32 v14, 5, v1")
    e(f"v_mul_u32_u24 v15, {RS}, v13")
    e("v_lshlrev_b32 v16, 3, v14")
    e("v_add_u32 v15, v15, v16")
    e(f"s_mul_i32 s40, s32, {NT*TR}")
    e("v_add_u32 v15, s40, v15")
    e("v_lshrrev_b32 v16, 2, v1")
    e(f"v_mul_u32_u24 v17, {RS}, v16")
    e("v_and_b32 v18, 3, v1")
    e("v_lshlrev_b32 v18, 4, v18")
    e("v_add_u32 v17, v17, v18")
    e("v_add_u32 v17, s40, v17")
    e("s_lshl_b32 s41, s32, 5")
    e("s_add_u32 s41, s41, s36")
    e("v_add_u32 v16, s41, v16")
    e("v_mul_lo_u32 v16, v16, s34")
    e("v_add_u32 v16, v16, v18")
    e("v_add_u32 v16, s38, v16")
    e("s_lshl_b32 s42, s34, 4")
    for t in range(NTQ):
        a = ACC + 16 * t
        for i in range(8):
            e(f"v_cvt_pk_bf16_f32 v{20+i}, v{a+2*i}, v{a+2*i+1}")
        for g in range(4):
            e(f"ds_write_b64 v15, v[{20+2*g}:{21+2*g}] offset:{t*TR + g*16}")
    e("s_waitcnt lgkmcnt(0)")
    for t in range(NTQ):
        e(f"ds_read_b128 v[{20+8*t}:{23+8*t}], v17 offset:{t*TR}")
        e(f"ds_read_b128 v[{24+8*t}:{27+8*t}], v17 offset:{t*TR + 16*RS}")
    for t in range(NTQ):
        if t == NTQ - 1 and not special:
            e(f"s_cmp_lt_u32 s39, {NTQ}")
            e(f"s_cbranch_scc1 {pfx}_skiplast")
        e(f"s_waitcnt lgkmcnt({2*(NTQ-1-t)})")
        fl = " sc1" if NT == 5 else ""
        e(f"buffer_store_dwordx4 v[{20+8*t}:{23+8*t}], v16, s[16:19], 0 offen offset:{64*t}{fl}")
        e(f"buffer_store_dwordx4 v[{24+8*t}:{27+8*t}], v16, s[16:19], s42 offen offset:{64*t}{fl}")
    if not special:
        e.label(f"{pfx}_skiplast")
    if special:
        e("s_lshr_b32 s43, s41, 5")
        e(f"s_mul_i32 s43, s43, {TILE_B}")
        a = ACC + 16 * TK
        for i in range(10):
            e(f"v_mul_f32 v{a+i}, s35, v{a+i}")
        for i in range(5):
            e(f"v_cvt_pk_bf16_f32 v{48+i}, v{a+2*i}, v{a+2*i+1}")
        e("v_lshlrev_b32 v56, 4, v13")
        e("v_lshlrev_b32 v57, 3, v14")
        e("v_add_u32 v56, v56, v57")
        e("buffer_store_dwordx2 v[48:49], v56, s[28:31], s43 offen")
        e("buffer_store_dwordx2 v[50:51], v56, s[28:31], s43 offen offset:512")
        e("v_lshlrev_b32 v57, 2, v13")
        e("v_cmp_gt_u32 vcc, 32, v1")
        e("s_and_saveexec_b64 s[52:53], vcc")
        e("buffer_store_dword v52, v57, s[28:31], s43 offen offset:1024")
        e("s_mov_b64 exec, s[52:53]")
        a = ACC + 16 * TV
        for i in range(8):
            e(f"v_cvt_pk_bf16_f32 v{40+i}, v{a+2*i}, v{a+2*i+1}")
        e("v_mov_b32 v58, 0x3f803f80")
        e("v_cmp_eq_u32 vcc, 18, v13")
        e("s_nop 1")
        for i in range(8):
            e(f"v_cndmask_b32 v{40+i}, v{40+i}, v58, vcc")
        e("v_cmp_ne_u32 vcc, 19, v13")
        e("s_nop 1")
        for i in range(8):
            e(f"v_cndmask_b32 v{40+i}, 0, v{40+i}, vcc")
        e("v_lshlrev_b32 v56, 4, v13")
        e("v_mul_u32_u24 v57, 320, v14")
        e("v_add_u32 v56, v56, v57")
        e("v_cmp_gt_u32 vcc, 20, v13")
        e("s_and_saveexec_b64 s[52:53], vcc")
        e("buffer_store_dwordx4 v[40:43], v56, s[28:31], s43 offen offset:1152")
        e("buffer_store_dwordx4 v[44:47], v56, s[28:31], s43 offen offset:1792")
        e("s_mov_b64 exec, s[52:53]")
    e.ts()
    e("s_waitcnt vmcnt(0)") if INSTR else None
    e.ts()
    e.ts_dump(4, 8, 0 if NT != 3 else 2)
    e("s_endpgm")
    return NSLOT * SLOT

def kd(name, vgpr, sgpr=64):
    if INSTR: sgpr = 102
    acc = (vgpr + 3) // 4 * 4
    return f""".amdhsa_kernel {name}
  .amdhsa_next_free_vgpr {vgpr}
  .amdhsa_next_free_sgpr {sgpr}
  .amdhsa_accum_offset {acc}
  .amdhsa_group_segment_fixed_size 0
  .amdhsa_kernarg_size 88
  .amdhsa_user_sgpr_count 2
  .amdhsa_user_sgpr_kernarg_segment_ptr 1
  .amdhsa_system_sgpr_workgroup_id_x 1
.end_amdhsa_kernel
"""

def header(e, name):
    e.l.append(f".globl {name}")
    e.l.append(".p2align 8")
    e.l.append(f".type {name},@function")
    e.label(name)

def stagger(e, a, b):
    if "nostag" in EXP:
        e("s_mov_b32 s50, 0"); return
    e(f"s_lshl_b32 s50, {b}, 1")
    e(f"s_add_u32 s50, s50, {a}")
    e("s_cmp_ge_u32 s50, 9")
    e("s_cselect_b32 s51, 9, 0")
    e("s_sub_u32 s50, s50, s51")

def gen_proj(e):
    header(e, "proj_kernel")
    e("s_cmp_ge_u32 s2, 256")
    e("s_cbranch_scc1 proj_exit")
    if "nocw1" not in EXP:
        e("s_cmp_gt_u32 s2, 7")
        e("s_cbranch_scc1 proj_nocw")
        e("s_getpc_b64 s[4:5]")
        e.label("proj_cw_pc")
        e("v_lshlrev_b32 v1, 7, v0")
        e("v_min_u32 v1, attn_kernel-proj_cw_pc-4, v1")
        e("v_cmp_gt_u32 vcc, 128, v0")
        e("s_and_saveexec_b64 s[6:7], vcc")
        e("s_cbranch_execz proj_cw_skip")
        e("global_load_dword v2, v1, s[4:5]")
        e.label("proj_cw_skip")
        e("s_mov_b64 exec, s[6:7]")
        e.label("proj_nocw")
    e("s_load_dwordx2 s[52:53], s[0:1], 0")
    e("s_load_dwordx2 s[54:55], s[0:1], 8")
    e("s_load_dwordx2 s[56:57], s[0:1], 24")
    e("s_load_dwordx2 s[58:59], s[0:1], 32")
    e("s_load_dwordx2 s[60:61], s[0:1], 40")
    e("s_load_dwordx2 s[62:63], s[0:1], 48")
    e("s_load_dwordx2 s[4:5], s[0:1], 80")
    e("s_and_b32 s6, s2, 7")
    e("s_lshr_b32 s7, s2, 3")
    e("s_and_b32 s3, s7, 7")
    e("s_lshr_b32 s7, s7, 3")
    e("s_waitcnt lgkmcnt(0)")
    e("s_cmp_lt_u32 s6, 2")
    e("s_cbranch_scc1 proj_B")
    e("s_sub_u32 s6, s6, 2")
    e("s_and_b32 s40, s6, 1")
    e("s_lshl_b32 s40, s40, 3")
    e("s_add_u32 s40, s40, s3")
    e("s_lshr_b32 s41, s6, 1")
    e("s_lshl_b32 s41, s41, 2")
    e("s_add_u32 s41, s41, s7")
    e("s_cmp_ge_u32 s41, 11")
    e("s_cbranch_scc1 proj_exit")
    srd(e, 8, 52, 53, 2048 * 1152)
    srd(e, 12, 54, 55, 576 * 3456)
    srd_off(e, 16, 4, 5, WS_QKVA, 2048 * 3456)
    e("s_movk_i32 s33, 3456")
    e("s_movk_i32 s34, 3456")
    e("s_mov_b32 s35, 1.0")
    e("s_lshl_b32 s36, s40, 7")
    e("s_mul_i32 s37, s41, 320")
    e("s_mov_b32 s38, s37")
    e("s_cmp_eq_u32 s41, 10")
    e("s_cselect_b32 s39, 4, 5")
    stagger(e, "s3", "s7")
    e("s_mov_b32 s6, s7")
    e("s_branch proj_generic")
    e.label("proj_B")
    e("s_lshl_b32 s40, s6, 3")
    e("s_add_u32 s40, s40, s3")
    srd(e, 8, 56, 57, 2048 * 1152)
    srd(e, 12, 58, 59, 576 * 1152)
    srd_off(e, 16, 4, 5, WS_QB, 2048 * 1152)
    e("s_movk_i32 s33, 1152")
    e("s_movk_i32 s34, 1152")
    e(f"s_mov_b32 s35, {f32bits(CSCALE):#x}")
    e("s_lshl_b32 s36, s40, 7")
    e("s_mul_i32 s37, s7, 320")
    e("s_mov_b32 s38, s37")
    e("s_mov_b32 s39, 5")
    stagger(e, "s3", "s7")
    e("s_mov_b32 s6, s7")
    e("s_cmp_eq_u32 s7, 3")
    e("s_cbranch_scc1 proj_special")
    e.label("proj_generic")
    lds = gen_gemm(e, "pg", 5, 4)
    e.label("proj_special")
    srd(e, 20, 60, 61, 576 * 36)
    srd(e, 24, 62, 63, 576 * 36)
    srd_off(e, 28, 4, 5, WS_KV, KVIMG_B)
    gen_gemm(e, "ps", 5, 4, special=True)
    e.label("proj_exit")
    e("s_endpgm")
    return lds

def gen_out(e):
    header(e, "outp_kernel")
    e("s_cmp_ge_u32 s2, 192")
    e("s_cbranch_scc1 outp_exit")
    e("s_load_dwordx2 s[52:53], s[0:1], 16")
    e("s_load_dwordx2 s[54:55], s[0:1], 56")
    e("s_load_dwordx2 s[56:57], s[0:1], 64")
    e("s_load_dwordx2 s[4:5], s[0:1], 80")
    e("s_and_b32 s6, s2, 7")
    e("s_lshr_b32 s7, s2, 3")
    e("s_and_b32 s3, s7, 1")
    e("s_bfe_u32 s41, s7, 0x10001")
    e("s_lshl_b32 s40, s6, 1")
    e("s_add_u32 s40, s40, s41")
    e("s_lshr_b32 s41, s7, 2")
    e("s_waitcnt lgkmcnt(0)")
    e(f"s_mov_b32 s42, {WS_OB}")
    e("s_cmp_eq_u32 s3, 0")
    e(f"s_cselect_b32 s42, {WS_OA}, s42")
    e("s_cselect_b32 s58, s52, s54")
    e("s_cselect_b32 s59, s53, s55")
    e("s_add_u32 s8, s4, s42")
    e("s_addc_u32 s9, s5, 0")
    e(f"s_mov_b32 s10, {2048*1152}")
    e("s_mov_b32 s11, 0x00020000")
    srd(e, 12, 58, 59, 576 * 1152)
    srd(e, 16, 56, 57, 2048 * 2304)
    e("s_movk_i32 s33, 1152")
    e("s_movk_i32 s34, 2304")
    e("s_mov_b32 s35, 1.0")
    e("s_lshl_b32 s36, s40, 7")
    e("s_mul_i32 s37, s41, 192")
    e("s_mul_i32 s38, s3, 1152")
    e("s_add_u32 s38, s38, s37")
    e("s_mov_b32 s39, 3")
    e("s_and_b32 s40, s40, 1")
    stagger(e, "s41", "s40")
    e("s_mov_b32 s6, s41")
    e("s_mov_b32 s3, s40")
    lds = gen_gemm(e, "og", 3, 5)
    e.label("outp_exit")
    e("s_endpgm")
    return lds

def gen_attn(e):
    header(e, "attn_kernel")
    Q1 = 12; Q2 = 16; C = 20; S = [36, 52]; P = [68, 76]; O = 84
    KF = [100, 104]; K2F = [108, 112]; VF = [116, 124]
    T = 132
    SLOTB = [97280, 130048]
    SYNC = 162816
    vK1 = 4; vK2 = 5; vV = 6
    e("s_cmp_ge_u32 s2, 256")
    e("s_cbranch_scc1 attn_exit")
    e.ts_reset()
    e.ts()
    e("s_load_dwordx2 s[4:5], s[0:1], 80")
    e("s_load_dwordx2 s[46:47], s[0:1], 16")
    e("s_load_dwordx2 s[48:49], s[0:1], 56")
    e("s_load_dwordx4 s[28:31], s[0:1], 0")
    e("v_and_b32 v1, 63, v0")
    e("v_lshrrev_b32 v7, 6, v0")
    e("v_and_b32 v2, 31, v1")
    e("v_readfirstlane_b32 s32, v7")
    e("v_lshrrev_b32 v3, 5, v1")
    e("s_and_b32 s3, s2, 7")
    e("s_lshl_b32 s33, s3, 8")
    e("s_lshr_b32 s6, s2, 3")
    e("s_lshl_b32 s35, s6, 3")
    e("s_add_u32 s33, s33, s35")
    e("v_lshlrev_b32 v7, 4, v1")
    e("v_mul_u32_u24 v8, 36, v2")
    e("v_lshlrev_b32 v9, 4, v3")
    e("v_add_u32 v9, v8, v9")
    e("s_waitcnt lgkmcnt(0)")
    srd_off(e, 16, 4, 5, WS_KV, KVIMG_B)
    e("s_cmp_ge_u32 s32, 8")
    e("s_cbranch_scc1 attn_helper")
    e("s_add_u32 s33, s33, s32")
    srd_off(e, 12, 4, 5, WS_QB, 2048 * 1152)
    e("s_mul_i32 s36, s33, 1152")
    e(f"buffer_load_dwordx4 v[{Q1}:{Q1+3}], v9, s[12:15], s36 offen")
    e(f"buffer_load_dword v{Q2}, v8, s[12:15], s36 offen offset:32")
    srd_off(e, 24, 4, 5, WS_OB, 2048 * 1152)
    e(f"v_lshlrev_b32 v{vK1}, 4, v1")
    e(f"v_lshlrev_b32 v{vK2}, 2, v2")
    e(f"v_add_u32 v{vK2}, 1024, v{vK2}")
    e(f"v_min_u32 v{vV}, 19, v2")
    e("v_cmp_eq_u32 vcc, 22, v2")
    e("v_mov_b32 v11, 18")
    e("s_nop 0")
    e(f"v_cndmask_b32 v{vV}, v{vV}, v11, vcc")
    e(f"v_lshlrev_b32 v{vV}, 4, v{vV}")
    e("v_mul_u32_u24 v11, 320, v3")
    e(f"v_add_u32 v{vV}, v{vV}, v11")
    e(f"v_add_u32 v{vV}, 1152, v{vV}")
    e("v_cmp_gt_u32 vcc, 32, v1")
    e(f"v_mov_b32 v{Q2+1}, 0")
    e(f"v_mov_b32 v{Q2+2}, 0")
    e(f"v_mov_b32 v{Q2+3}, 0")
    e("s_mov_b32 s40, 0")
    e("s_mov_b32 s50, 0x0047ffff")
    e("s_mov_b32 s51, 0x0047ffff")
    e.ts()
    e("s_waitcnt vmcnt(0)")
    e(f"v_cndmask_b32 v{Q2}, 0, v{Q2}, vcc")
    e.ts()
    e("s_barrier")
    e.ts()
    MB = [36, 52, 68, 84]
    KB = [100, 108, 116, 124]
    def ld128(dst, vlds, vglb, off, src, soff="0"):
        if src == "lds": e(f"ds_read_b128 v[{dst}:{dst+3}], v{vlds} offset:{off}")
        else: e(f"buffer_load_dwordx4 v[{dst}:{dst+3}], v{vglb}, s[16:19], {soff} offen offset:{off}")
    def ld32(dst, vlds, vglb, off, src, soff="0"):
        if src == "lds": e(f"ds_read_b32 v{dst}, v{vlds} offset:{off}")
        else: e(f"buffer_load_dword v{dst}, v{vglb}, s[16:19], {soff} offen offset:{off}")
    def wait(n, src):
        e(f"s_waitcnt {'lgkmcnt' if src == 'lds' else 'vmcnt'}({n})")
    def maxpass(src):
        e("v_mov_b32 v10, 0xff800000")
        if src == "glb":
            e("s_mov_b32 s42, 0")
            e.label("attn_maxloop")
        for i in range(4):
            if src == "glb":
                e(f"s_add_u32 s35, s42, {i*TILE_B}")
                ld128(KB[i], 0, vK1, 0, src, "s35"); ld32(KB[i]+4, 0, vK2, 0, src, "s35")
            else:
                ld128(KB[i], vK1, 0, i*TILE_B, src); ld32(KB[i]+4, vK2, 0, i*TILE_B, src)
        for i in range(4):
            e(f"v_mov_b32 v{KB[i]+5}, 0")
        for i in range(4):
            wait(6-2*i, src)
            e(f"v_mfma_f32_32x32x16_bf16 v[{MB[i]}:{MB[i]+15}], v[{KB[i]}:{KB[i]+3}], v[{Q1}:{Q1+3}], 0")
        e("s_nop 9")
        for i in range(4):
            e(f"v_mfma_f32_32x32x8_bf16 v[{MB[i]}:{MB[i]+15}], v[{KB[i]+4}:{KB[i]+5}], v[{Q2}:{Q2+1}], v[{MB[i]}:{MB[i]+15}]")
        e("s_nop 9")
        for i in range(4):
            if i == 3:
                e("s_nop 3")
            for j in range(8):
                e(f"v_max3_f32 v10, v{MB[i]+2*j}, v{MB[i]+2*j+1}, v10")
        if src == "glb":
            e(f"s_add_u32 s42, s42, {4*TILE_B}")
            e(f"s_cmp_lt_u32 s42, {64*TILE_B}")
            e("s_cbranch_scc1 attn_maxloop")
    def prologue(src):
        e(f"v_mov_b32 v{T}, v{vK1}")
        e(f"v_mov_b32 v{T+1}, v{vK2}")
        e(f"v_mov_b32 v{T+2}, v{vV}")
        ld128(KF[0], T, vK1, 0, src); ld32(K2F[0], T+1, vK2, 0, src)
        ld128(KF[1], T, vK1, TILE_B, src); ld32(K2F[1], T+1, vK2, TILE_B, src)
        e("v_mov_b32 v11, v10")
        e("s_nop 1")
        e("v_permlane32_swap_b32 v10, v11")
        e("v_max_f32 v10, v10, v11")
        e("v_sub_f32 v10, 0, v10")
        e(f"v_cvt_pk_bf16_f32 v{C}, v10, 0")
        e(f"v_lshlrev_b32 v{C}, 16, v{C}")
        e(f"v_sub_f32 v10, v10, v{C}")
        e(f"v_cvt_pk_bf16_f32 v{C+1}, v10, 0")
        e(f"v_lshlrev_b32 v{C+1}, 16, v{C+1}")
        e(f"v_sub_f32 v10, v10, v{C+1}")
        e("v_cmp_gt_u32 vcc, 32, v1")
        e(f"v_cvt_pk_bf16_f32 v{C+2}, v{C}, v{C+1}")
        e(f"v_cvt_pk_bf16_f32 v{C+3}, v10, 0")
        e(f"v_cndmask_b32 v{Q2+1}, v{C+3}, v{C+2}, vcc")
        for b in range(2):
            e(f"v_mov_b32 v{K2F[b]+1}, 0x3f803f80")
        wait(2, src)
        e(f"v_mfma_f32_32x32x16_bf16 v[{S[0]}:{S[0]+15}], v[{KF[0]}:{KF[0]+3}], v[{Q1}:{Q1+3}], 0")
        for i in range(16):
            e(f"v_mov_b32 v{O+i}, 0")

        e(f"v_mfma_f32_32x32x8_bf16 v[{S[0]}:{S[0]+15}], v[{K2F[0]}:{K2F[0]+1}], v[{Q2}:{Q2+1}], v[{S[0]}:{S[0]+15}]")
        for i in range(8):
            e(f"v_mov_b32 v{P[1]+i}, 0")
            e(f"v_mov_b32 v{VF[1]+i}, 0")
    def tile(tt, top=None, src="lds"):
        cur = tt & 1; nxt = cur ^ 1
        wait(0, src)
        if top: top()
        if src == "lds":
            ld128(KF[cur], T, 0, (tt+2)*TILE_B, src); ld32(K2F[cur], T+1, 0, (tt+2)*TILE_B, src)
            ld128(VF[cur], T+2, 0, tt*TILE_B, src); ld128(VF[cur]+4, T+2, 0, tt*TILE_B+640, src)
        else:
            e(f"s_add_u32 s35, s42, {2*TILE_B}")
            ld128(KF[cur], 0, vK1, 0, src, "s35"); ld32(K2F[cur], 0, vK2, 0, src, "s35")
            ld128(VF[cur], 0, vV, 0, src, "s42"); ld128(VF[cur]+4, 0, vV, 640, src, "s42")
            e(f"s_add_u32 s42, s42, {TILE_B}")
        m = [f"v_mfma_f32_32x32x16_bf16 v[{S[nxt]}:{S[nxt]+15}], v[{KF[nxt]}:{KF[nxt]+3}], v[{Q1}:{Q1+3}], 0",
             f"v_mfma_f32_32x32x16_bf16 v[{O}:{O+15}], v[{VF[nxt]}:{VF[nxt]+3}], v[{P[nxt]}:{P[nxt]+3}], v[{O}:{O+15}]",
             f"v_mfma_f32_32x32x8_bf16 v[{S[nxt]}:{S[nxt]+15}], v[{K2F[nxt]}:{K2F[nxt]+1}], v[{Q2}:{Q2+1}], v[{S[nxt]}:{S[nxt]+15}]",
             f"v_mfma_f32_32x32x16_bf16 v[{O}:{O+15}], v[{VF[nxt]+4}:{VF[nxt]+7}], v[{P[nxt]+4}:{P[nxt]+7}], v[{O}:{O+15}]"]
        for g in range(4):
            e(m[g])
            for i in range(4):
                e(f"v_exp_f32 v{S[cur]+4*g+i}, v{S[cur]+4*g+i}")
            for i in range(2):
                j = 2 * g + i
                e(f"v_cvt_pk_bf16_f32 v{P[cur]+j}, v{S[cur]+2*j}, v{S[cur]+2*j+1}")
    maxpass("lds")
    prologue("lds")
    e("s_mov_b32 s42, 0")
    e.ts()
    e.label("attn_loop1")
    def topbar(it, name):
        def f():
            e(f"s_cmp_lg_u32 s42, {it}")
            e(f"s_cbranch_scc1 {name}")
            e("s_barrier")
            e.label(name)
        return f
    for tt in range(8):
        tile(tt, topbar(0, "attn_nobar1") if tt == HB1_TT else None)
    for i in range(3):
        e(f"v_add_u32 v{T+i}, {8*TILE_B}, v{T+i}")
    e("s_add_u32 s42, s42, 1")
    e("s_cmp_lt_u32 s42, 8")
    e("s_cbranch_scc1 attn_loop1")
    e("s_branch attn_done")
    e.label("attn_restart")
    maxpass("glb")
    prologue("glb")
    e("s_mov_b32 s42, 0")
    e.label("attn_loop2")
    for tt in range(2):
        tile(tt, src="glb")
    e(f"s_cmp_lt_u32 s42, {64*TILE_B}")
    e("s_cbranch_scc1 attn_loop2")
    e("s_waitcnt vmcnt(0)")
    e.label("attn_done")
    e.ts()
    e("s_waitcnt lgkmcnt(0)")
    e(f"v_mfma_f32_32x32x16_bf16 v[{O}:{O+15}], v[{VF[1]}:{VF[1]+3}], v[{P[1]}:{P[1]+3}], v[{O}:{O+15}]")
    e(f"v_mfma_f32_32x32x16_bf16 v[{O}:{O+15}], v[{VF[1]+4}:{VF[1]+7}], v[{P[1]+4}:{P[1]+7}], v[{O}:{O+15}]")
    e("s_nop 15")
    e("s_nop 3")
    e("s_cmp_lg_u32 s40, 0")
    e("s_cbranch_scc1 attn_fin")
    e("v_mov_b32 v10, 0x71800000")
    e(f"v_cmp_nlt_f32 vcc, v{O+10}, v10")
    e("s_mov_b64 s[44:45], vcc")
    e("v_mov_b32 v10, 0x207")
    for i in range(10):
        e(f"v_cmp_class_f32 vcc, v{O+i}, v10")
        e("s_or_b64 s[44:45], s[44:45], vcc")
    e("s_cmp_eq_u64 s[44:45], 0")
    e("s_cbranch_scc1 attn_fin")
    e("s_mov_b32 s40, 1")
    e("s_branch attn_restart")
    e.label("attn_fin")
    e(f"v_rcp_f32 v10, v{O+10}")
    e("s_nop 0")
    for i in range(10):
        e(f"v_mul_f32 v{O+i}, v{O+i}, v10")
    for i in range(5):
        e(f"v_cvt_pk_bf16_f32 v{S[0]+i}, v{O+2*i}, v{O+2*i+1}")
    e("v_lshlrev_b32 v10, 3, v3")
    e("v_add_u32 v10, v8, v10")
    e(f"buffer_store_dwordx2 v[{S[0]}:{S[0]+1}], v10, s[24:27], s36 offen")
    e(f"buffer_store_dwordx2 v[{S[0]+2}:{S[0]+3}], v10, s[24:27], s36 offen offset:16")
    e("v_cmp_gt_u32 vcc, 32, v1")
    e("s_and_saveexec_b64 s[44:45], vcc")
    e(f"buffer_store_dword v{S[0]+4}, v8, s[24:27], s36 offen offset:32")
    e.ts()
    e.ts_dump(4, 12, 1)
    e("s_endpgm")
    e.label("attn_helper")
    e.nts = 1
    if "hprio" in EXP: e("s_setprio 1")
    e("s_sub_u32 s41, s32, 8")
    e("s_lshl_b32 s34, s41, 10")
    def kvdma(i4):
        e(f"s_add_u32 m0, s34, {i4*4096}")
        e(f"s_add_u32 s35, s34, {i4*4096}")
        e("buffer_load_dwordx4 v7, s[16:19], s35 offen lds")
    for i4 in range(6):
        kvdma(i4)
    e("s_waitcnt vmcnt(0)")
    e("s_barrier")
    e.ts()
    for i4 in range(6, 38):
        kvdma(i4)
    srd_off(e, 8, 4, 5, WS_QKVA, 2048 * 3456)
    srd_off(e, 20, 4, 5, WS_OA, 2048 * 1152)
    srd(e, 12, 46, 47, 576 * 1152)
    srd(e, 60, 48, 49, 576 * 1152)
    e("s_lshl_b32 s40, s41, 1")
    e("s_add_u32 s40, s40, s33")
    e("s_add_u32 s42, s40, 2")
    e(f"s_mov_b32 s38, {f32bits(CSCALE):#x}")
    e("s_waitcnt vmcnt(0)")
    e("s_barrier")
    e.ts()
    e("s_lshl_b32 s39, s6, 2")
    e("s_add_u32 s39, s39, s41")
    e("s_mul_i32 s39, s39, 5248")
    e("v_min_u32 v24, 40, v1")
    e("v_lshlrev_b32 v24, 7, v24")
    e("buffer_load_dword v155, v24, s[12:15], s39 offen")
    e("buffer_load_dword v155, v24, s[60:63], s39 offen")
    if "nocw2" not in EXP:
        e("s_cmp_gt_u32 s2, 7")
        e("s_cbranch_scc1 attn_nocw")
        e("s_cmp_lg_u32 s41, 0")
        e("s_cbranch_scc1 attn_nocw")
        e("s_getpc_b64 s[56:57]")
        e.label("attn_cw_pc")
        e("s_add_u32 s56, s56, outp_kernel-attn_cw_pc")
        e("s_addc_u32 s57, s57, 0")
        e("v_lshlrev_b32 v24, 7, v1")
        e("v_min_u32 v24, code_end-outp_kernel-4, v24")
        e("global_load_dword v155, v24, s[56:57]")
        e("s_getpc_b64 s[56:57]")
        e("s_add_u32 s56, s56, kd_start@rel32@lo+4")
        e("s_addc_u32 s57, s57, kd_start@rel32@hi+12")
        e("v_and_b32 v24, 3, v1")
        e("v_lshlrev_b32 v24, 6, v24")
        e("v_min_u32 v24, 128, v24")
        e("global_load_dword v155, v24, s[56:57]")
        e.label("attn_nocw")
    AQ = 20; AK = 30; AV = 70; AO = 110; OA = 128; W = 134; R = 12
    e.label("attn_a_loop")
    e("v_lshlrev_b32 v10, 3, v3")
    e("v_sub_u32 v10, s40, v10")
    e("s_mul_i32 s35, s40, 3456")
    e(f"buffer_load_dwordx4 v[{AQ}:{AQ+3}], v8, s[8:11], s35 offen")
    e(f"buffer_load_dwordx4 v[{AQ+4}:{AQ+7}], v8, s[8:11], s35 offen offset:16")
    e(f"buffer_load_dword v{AQ+8}, v8, s[8:11], s35 offen offset:32")
    for i in range(4):
        e(f"v_subrev_u32 v{R+i}, {2*i}, v10")
        e(f"v_max_i32 v11, 0, v{R+i}")
        e("v_mul_u32_u24 v11, 3456, v11")
        e(f"v_add_u32 v{R+4+i}, v11, v8")
        k = AK + 10 * i; v = AV + 10 * i
        e(f"buffer_load_dwordx4 v[{k}:{k+3}], v{R+4+i}, s[8:11], 0 offen offset:1152")
        e(f"buffer_load_dwordx4 v[{k+4}:{k+7}], v{R+4+i}, s[8:11], 0 offen offset:1168")
        e(f"buffer_load_dword v{k+8}, v{R+4+i}, s[8:11], 0 offen offset:1184")
        e(f"buffer_load_dwordx4 v[{v}:{v+3}], v{R+4+i}, s[8:11], 0 offen offset:2304")
        e(f"buffer_load_dwordx4 v[{v+4}:{v+7}], v{R+4+i}, s[8:11], 0 offen offset:2320")
        e(f"buffer_load_dword v{v+8}, v{R+4+i}, s[8:11], 0 offen offset:2336")
    e("s_waitcnt vmcnt(0)")
    L = W
    for i in range(4):
        k = AK + 10 * i
        e(f"v_dot2_f32_bf16 v{L+i}, v{AQ}, v{k}, 0")
    for j in range(1, 9):
        for i in range(4):
            k = AK + 10 * i
            e(f"v_dot2_f32_bf16 v{L+i}, v{AQ+j}, v{k+j}, v{L+i}")
    e(f"v_mov_b32 v{W+4}, 0xff800000")
    e("s_nop 2")
    for i in range(4):
        e(f"v_mul_f32 v{L+i}, s38, v{L+i}")
        e(f"v_cmp_gt_i32 vcc, 0, v{R+i}")
        e("s_nop 1")
        e(f"v_cndmask_b32 v{L+i}, v{L+i}, v{W+4}, vcc")
    M = W + 5
    e(f"v_max_f32 v{M}, v{L}, v{L+1}")
    e(f"v_max3_f32 v{M}, v{L+2}, v{L+3}, v{M}")
    e(f"v_mov_b32 v{M+1}, v{M}")
    e("s_nop 1")
    e(f"v_permlane32_swap_b32 v{M}, v{M+1}")
    e(f"v_max_f32 v{M}, v{M}, v{M+1}")
    for i in range(4):
        e(f"v_sub_f32 v{L+i}, v{L+i}, v{M}")
    for i in range(4):
        e(f"v_exp_f32 v{L+i}, v{L+i}")
    e("s_nop 0")
    e(f"v_add_f32 v{M+2}, v{L}, v{L+1}")
    e(f"v_add_f32 v{M+3}, v{L+2}, v{L+3}")
    e(f"v_add_f32 v{M+2}, v{M+2}, v{M+3}")
    e(f"v_mov_b32 v{M+3}, v{M+2}")
    e("s_nop 1")
    e(f"v_permlane32_swap_b32 v{M+2}, v{M+3}")
    e(f"v_add_f32 v{M+2}, v{M+2}, v{M+3}")
    e(f"v_rcp_f32 v{M+2}, v{M+2}")
    e("s_nop 0")
    PL = W + 10; PH = W + 14
    for i in range(4):
        e(f"v_mul_f32 v{L+i}, v{L+i}, v{M+2}")
    for i in range(4):
        e(f"v_cvt_pk_bf16_f32 v{PL+i}, v{L+i}, 0")
        e(f"v_cvt_pk_bf16_f32 v{PH+i}, 0, v{L+i}")
    for i in range(4):
        v = AV + 10 * i
        for j in range(9):
            if i == 0:
                e(f"v_dot2_f32_bf16 v{AO+2*j}, v{v+j}, v{PL+i}, 0")
                e(f"v_dot2_f32_bf16 v{AO+2*j+1}, v{v+j}, v{PH+i}, 0")
            else:
                e(f"v_dot2_f32_bf16 v{AO+2*j}, v{v+j}, v{PL+i}, v{AO+2*j}")
                e(f"v_dot2_f32_bf16 v{AO+2*j+1}, v{v+j}, v{PH+i}, v{AO+2*j+1}")
    e("s_nop 2")
    e(f"v_mov_b32 v{W}, v{AO+16}")
    e(f"v_mov_b32 v{W+1}, v{AO+17}")
    e("s_nop 2")
    for d in range(8):
        e(f"v_permlane32_swap_b32 v{AO+d}, v{AO+d+8}")
    e(f"v_permlane32_swap_b32 v{AO+16}, v{W}")
    e(f"v_permlane32_swap_b32 v{AO+17}, v{W+1}")
    for d in range(8):
        e(f"v_add_f32 v{AO+d}, v{AO+d}, v{AO+d+8}")
    e(f"v_add_f32 v{AO+16}, v{AO+16}, v{W}")
    e(f"v_add_f32 v{AO+17}, v{AO+17}, v{W+1}")
    for i in range(4):
        e(f"v_cvt_pk_bf16_f32 v{OA+i}, v{AO+2*i}, v{AO+2*i+1}")
    e(f"v_cvt_pk_bf16_f32 v{OA+4}, v{AO+16}, v{AO+17}")
    e("s_mul_i32 s36, s40, 1152")
    e(f"buffer_store_dwordx4 v[{OA}:{OA+3}], v9, s[20:23], s36 offen")
    e(f"buffer_store_dword v{OA+4}, v8, s[20:23], s36 offen offset:32")
    e("s_add_u32 s40, s40, 1")
    e("s_cmp_lt_u32 s40, s42")
    e("s_cbranch_scc1 attn_a_loop")
    e.ts()
    e.ts_dump(4, 12, 1)
    e.label("attn_exit")
    e("s_endpgm")
    return 160768

def main():
    global INSTR
    INSTR = len(sys.argv) > 2 and sys.argv[2] == "instr"
    EXP.update(sys.argv[3:])
    global PFD, PLOOK
    for x in sys.argv[3:]:
        if x.startswith("pf="): PFD = int(x[3:])
        if x.startswith("pl="): PLOOK = int(x[3:])
        if x.startswith("tp="):
            global TPUB_, TPOLL_, TB11_
            TPUB_, TPOLL_, TB11_ = [int(y) for y in x[3:].split(",")]
    e = E()
    l1 = gen_proj(e)
    l2 = gen_attn(e)
    l3 = gen_out(e)
    ref = open(f"cdna_kernels/{NAME}.s.ref").read().splitlines()
    head = [l for l in ref if l.startswith(";") and "@launch" not in l and "Override" not in l and "grid=ceil" not in l]
    out = "\n".join(head) + "\n"
    out += f"; @launch kernel=proj_kernel grid=(256,1,1) block=(512,1,1) lds={l1}\n"
    out += f"; @launch kernel=attn_kernel grid=(256,1,1) block=(768,1,1) lds={l2}\n"
    out += f"; @launch kernel=outp_kernel grid=(192,1,1) block=(512,1,1) lds={l3}\n"
    out += '.amdgcn_target "amdgcn-amd-amdhsa--gfx950"\n.text\n'
    out += e.text()
    out += "code_end:\n"
    out += '.section .rodata,"a"\n.p2align 6\nkd_start:\n'
    out += kd("proj_kernel", 144)
    out += ".p2align 6\n" + kd("attn_kernel", 160)
    out += ".p2align 6\n" + kd("outp_kernel", 112)
    path = sys.argv[1] if len(sys.argv) > 1 else f"cdna_kernels/{NAME}.s"
    open(path, "w").write(out)

main()
```

```python
import struct, sys, math

NAME = "concat_heads__sliding_local_dilated__grouped_kv_mqa__prompt"

WS_QKVA = 0x000000
WS_QB   = 0x700000
WS_KV   = 0xA00000
WS_FLAG = 0xA80000
WS_OA   = 0xB00000
WS_OB   = 0xE00000
TILE_B  = 2432
KVIMG_B = 64 * TILE_B

def f32bits(x):
    return struct.unpack("<I", struct.pack("<f", x))[0]

CSCALE = (18 ** -0.5) * math.log2(math.e)

INSTR = False
EXP = set()
PFD = 5
PLOOK = 2
HB2_IT = 4
PARK = 106496
HB1_TT = 6
KVLEAD = 11
WARM_AT = 9
TPUB_ = 46
TPOLL_ = 50
TB11_ = 52
WS_DBG = 0x1200000
class E:
    def __init__(self):
        self.l = []
        self.nts = 0
        self.mute = False
    def ts_reset(self):
        if self.mute: return
        self.nts = 0
        if INSTR: self("s_memrealtime s[100:101]")
    def ts(self):
        if not INSTR or self.mute: return
        k = self.nts; self.nts += 1
        self(f"s_memtime s[{64+2*k}:{65+2*k}]")
    def ts_dump(self, wsreg, waves_per_wg, kid):
        if not INSTR: return
        n = self.nts
        self(f"s_memrealtime s[96:97]")
        self("s_waitcnt lgkmcnt(0)")
        self("s_mov_b64 exec, -1")
        self(f"s_add_u32 s92, s{wsreg}, {WS_DBG + kid*0x100000}")
        self(f"s_addc_u32 s93, s{wsreg+1}, 0")
        self("s_mov_b32 s94, 0x100000")
        self("s_mov_b32 s95, 0x00020000")
        self(f"s_mul_i32 s98, s2, {waves_per_wg}")
        self("s_add_u32 s98, s98, s32")
        self("s_lshl_b32 s98, s98, 6")
        self("v_mov_b32 v1, 0")
        for k in range(n):
            self(f"v_mov_b32 v2, s{64+2*k}")
            self(f"buffer_store_dword v2, v1, s[92:95], s98 offen offset:{4*k}")
        self("v_mov_b32 v2, s96")
        self(f"buffer_store_dword v2, v1, s[92:95], s98 offen offset:60")
        self("v_mov_b32 v2, s100")
        self(f"buffer_store_dword v2, v1, s[92:95], s98 offen offset:56")
    def __call__(self, s):
        self.l.append("    " + s)
    def label(self, s):
        self.l.append(s + ":")
    def c(self, s):
        self.l.append("    ; " + s)
    def text(self):
        return "\n".join(self.l) + "\n"

def srd(e, d, lo, hi, nbytes):
    e(f"s_mov_b32 s{d}, s{lo}")
    e(f"s_mov_b32 s{d+1}, s{hi}")
    e(f"s_mov_b32 s{d+2}, {nbytes}")
    e(f"s_mov_b32 s{d+3}, 0x00020000")

def srd_off(e, d, lo, hi, off, nbytes):
    e(f"s_add_u32 s{d}, s{lo}, {off}")
    e(f"s_addc_u32 s{d+1}, s{hi}, 0")
    e(f"s_mov_b32 s{d+2}, {nbytes}")
    e(f"s_mov_b32 s{d+3}, 0x00020000")

def gen_gemm(e, pfx, NT, NSLOT, special=False, cont=None):
    P = PLOOK
    XB = 16384
    SLOT = XB + NT * 4096
    NCH = 9
    XS_ = 6; XRS = 24; WRS = 16; WL = 2
    NQ = NT - 2 if special else NT
    TK = NT - 2; TV = NT - 1
    D = 4 + NQ + (8 if special else 0)
    vX = [2, 3, 4, 5]; vW = 6; vKV = 7
    vXr = [8, 9, 10, 11]; vWr = 12
    F = [16, 16 + 4 + 4 * NT]
    ACC = max(64, 16 + 2 * (4 + 4 * NT))
    e.c(f"---- gemm body {pfx} NT={NT} NSLOT={NSLOT} special={special}")
    e.ts_reset()
    e.ts()
    e("v_and_b32 v1, 63, v0")
    e("v_lshrrev_b32 v13, 6, v0")
    e("s_nop 0")
    e("v_readfirstlane_b32 s32, v13")
    e("s_nop 3")
    e("s_cmp_lt_u32 s32, 4")
    e(f"s_cbranch_scc1 {pfx}_compute")
    if cont:
        e("s_cmp_lt_u32 s32, 8")
        e(f"s_cbranch_scc1 {pfx}_loader")
        for _ in range(NCH + 1):
            e("s_barrier")
        e(f"s_branch {cont}")
        e.label(f"{pfx}_loader")
    e("s_sub_u32 s51, s32, 4")
    e("v_lshrrev_b32 v13, 3, v1")
    e("v_lshrrev_b32 v14, 4, v1")
    e("v_and_b32 v15, 7, v1")
    e("s_lshl_b32 s40, s51, 5")
    e("s_add_u32 s40, s40, s36")
    e("s_movk_i32 s41, 1152")
    for j in range(4):
        e(f"v_add_u32 v16, {4*j}, v14")
        e("v_and_b32 v16, 7, v16")
        e("v_xor_b32 v16, v16, v15")
        e("v_lshlrev_b32 v16, 4, v16")
        e(f"v_add_u32 v17, {8*j}, v13")
        e("v_add_u32 v17, s40, v17")
        e("v_mul_lo_u32 v17, v17, s41")
        e(f"v_add_u32 v{vX[j]}, v16, v17")
    e("v_lshrrev_b32 v16, 2, v1")
    e("s_lshl_b32 s40, s51, 4")
    e("v_add_u32 v16, s40, v16")
    e("v_mul_lo_u32 v16, v16, s33")
    e("v_and_b32 v17, 3, v1")
    e("v_lshlrev_b32 v17, 4, v17")
    e("v_add_u32 v16, v16, v17")
    e(f"v_add_u32 v{vW}, s37, v16")
    if special:
        e("v_add_u32 v16, s40, v14")
        e("v_mul_u32_u24 v16, 36, v16")
        e("v_and_b32 v17, 15, v1")
        e("v_min_u32 v17, 8, v17")
        e("v_lshlrev_b32 v17, 2, v17")
        e(f"v_add_u32 v{vKV}, v16, v17")
    e("s_lshl_b32 s48, s33, 6")
    e("s_mov_b32 s46, s50")
    e("s_lshl_b32 s44, s51, 12")
    e("s_lshl_b32 s45, s51, 10")
    e(f"s_add_u32 s45, s45, {XB}")

    def dma_chunk(n):
        sb = (n % NSLOT) * SLOT
        e("s_lshl_b32 s41, s46, 7")
        e("s_mul_i32 s42, s46, s48")
        if special:
            e("s_mul_i32 s43, s46, 2304")
        e("s_add_u32 s46, s46, 1")
        e(f"s_cmp_eq_u32 s46, {NCH}")
        e("s_cselect_b32 s46, 0, s46")
        if "nodma" in EXP: return
        for j in range(4):
            e(f"s_add_u32 m0, s44, {sb + j*1024}")
            e("s_nop 0")
            e(f"buffer_load_dwordx4 v{vX[j]}, s[8:11], s41 offen lds")
        for t in range(NQ):
            e(f"s_add_u32 m0, s45, {sb + t*4096 - 64*t}")
            e("s_nop 0")
            e(f"buffer_load_dwordx4 v{vW}, s[12:15], s42 offen offset:{64*t} lds")
        if special:
            for (t, sr) in ((TK, 20), (TV, 24)):
                for q in range(4):
                    e(f"s_add_u32 m0, s45, {sb + t*4096 + q*256 - 144*q}")
                    e("s_nop 0")
                    e(f"buffer_load_dword v{vKV}, s[{sr}:{sr+3}], s43 offen offset:{144*q} lds")
    for n in range(P):
        dma_chunk(n)
    for c in range(NCH + 1):
        issued = min(c - 1 + P, NCH - 1)
        allowed = max(issued - c, 0)
        e(f"s_waitcnt vmcnt({allowed*D})")
        e("s_barrier")
        if c + P <= NCH - 1:
            dma_chunk(c + P)
        if NT == 2 and c == WARM_AT and "k1warm" in EXP:
            e("s_load_dwordx4 s[40:43], s[0:1], 0")
            e("s_lshr_b32 s46, s2, 3")
            e("s_lshl_b32 s46, s46, 2")
            e("s_add_u32 s46, s46, s51")
            e("v_lshlrev_b32 v13, 7, v1")
            e("s_waitcnt lgkmcnt(0)")
            e("s_mov_b32 s52, s42")
            e("s_mov_b32 s53, s43")
            e(f"s_mov_b32 s54, {576*3456}")
            e("s_mov_b32 s55, 0x00020000")
            e("s_lshl_b32 s47, s46, 13")
            for i in range(4):
                e(f"s_add_u32 s49, s47, {i*80*8192}")
                e("buffer_load_dword v14, v13, s[52:55], s49 offen")
            e("s_mov_b32 s52, s40")
            e("s_mov_b32 s53, s41")
            e(f"s_mov_b32 s54, {2048*1152}")
            e("s_and_b32 s47, s2, 7")
            e("s_mul_i32 s47, s47, 294912")
            e("s_mul_i32 s49, s46, 3712")
            e("s_add_u32 s49, s49, s47")
            e("v_min_u32 v13, 28, v1")
            e("v_lshlrev_b32 v13, 7, v13")
            e("buffer_load_dword v14, v13, s[52:55], s49 offen")
    e(f"s_branch {cont}" if cont else "s_endpgm")
    e.label(f"{pfx}_compute")
    if pfx == "pa" and "nocw" not in EXP:
        e("s_cmp_gt_u32 s2, 7")
        e("s_cbranch_scc1 pg_nocw")
        e("s_cmp_lg_u32 s32, 0")
        e("s_cbranch_scc1 pg_nocw")
        e("s_getpc_b64 s[56:57]")
        e.label("pg_cw_pc")
        e("s_add_u32 s56, s56, p1_done-pg_cw_pc")
        e("s_addc_u32 s57, s57, 0")
        e("v_lshlrev_b32 v13, 7, v1")
        for i in range(3):
            e(f"v_add_u32 v14, {i*8192}, v13")
            e("v_min_u32 v14, code_end-p1_done-4, v14")
            e("global_load_dword v2, v14, s[56:57]")
        e("s_getpc_b64 s[56:57]")
        e("s_add_u32 s56, s56, kd_start@rel32@lo+4")
        e("s_addc_u32 s57, s57, kd_start@rel32@hi+12")
        e("v_and_b32 v14, 3, v1")
        e("v_lshlrev_b32 v14, 6, v14")
        e("v_min_u32 v14, 128, v14")
        e("global_load_dword v2, v14, s[56:57]")
        e.label("pg_nocw")
    PF = PFD
    e("v_bfe_u32 v13, v1, 2, 3")
    e(f"s_mul_i32 s40, s6, {XRS}")
    e("s_add_u32 s40, s40, s36")
    e(f"s_mul_i32 s41, s32, {XRS//4}")
    e("s_add_u32 s40, s40, s41")
    e("v_add_u32 v14, s40, v13")
    e("v_mul_u32_u24 v3, 1152, v14")
    e("v_bfe_u32 v13, v1, 4, 2")
    e(f"v_min_u32 v13, {WRS//4-1}, v13")
    e(f"s_mul_i32 s40, s3, {WRS}")
    e(f"s_mul_i32 s41, s32, {WRS//4}")
    e("s_add_u32 s40, s40, s41")
    e("v_add_u32 v13, s40, v13")
    e("v_mul_lo_u32 v13, v13, s33")
    e("v_bfe_u32 v14, v1, 2, 2")
    e(f"v_min_u32 v14, {WL-1}, v14")
    e("v_lshlrev_b32 v14, 7, v14")
    e("v_add_u32 v13, v13, v14")
    e("v_add_u32 v4, s37, v13")
    e("s_lshl_b32 s48, s33, 6")
    e(f"s_movk_i32 s54, {128*P}")
    e(f"s_mul_i32 s55, s48, {P}")
    def pf():
        if "pf" not in EXP: return
        e("buffer_load_dword v2, v3, s[8:11], s54 offen")
        e("buffer_load_dword v2, v4, s[12:15], s55 offen")
        e("s_add_u32 s54, s54, 128")
        e("s_add_u32 s55, s55, s48")
    for _ in range(P, PF):
        pf()
    e("v_and_b32 v13, 31, v1")
    e("v_lshrrev_b32 v14, 5, v1")
    e("v_lshrrev_b32 v15, 1, v13")
    e("v_and_b32 v15, 7, v15")
    e("v_lshlrev_b32 v16, 7, v13")
    e("s_lshl_b32 s40, s32, 12")
    e("v_add_u32 v16, s40, v16")
    e("v_lshlrev_b32 v17, 2, v14")
    for j in range(4):
        e(f"v_add_u32 v18, {j}, v17")
        e("v_xor_b32 v18, v18, v15")
        e("v_lshlrev_b32 v18, 4, v18")
        e(f"v_add_u32 v{vXr[j]}, v16, v18")
    e("v_lshlrev_b32 v16, 11, v14")
    e("v_bfe_u32 v17, v1, 2, 2")
    e("v_lshlrev_b32 v17, 6, v17")
    e("v_add_u32 v16, v16, v17")
    e("v_bfe_u32 v17, v1, 4, 1")
    e("v_lshlrev_b32 v17, 5, v17")
    e("v_add_u32 v16, v16, v17")
    e("v_and_b32 v17, 3, v1")
    e("v_lshlrev_b32 v17, 3, v17")
    e("v_add_u32 v16, v16, v17")
    e(f"v_add_u32 v{vWr}, {XB}, v16")
    for i in range(NT * 16):
        e(f"v_mov_b32 v{ACC+i}, 0")
    e(f"s_mov_b32 s7, {SLOT}")

    def read_list(j, fb):
        b = F[fb]
        l = [f"ds_read_b128 v[{b}:{b+3}], v{vXr[j]}"]
        for t in range(NT):
            r = b + 4 + 4 * t
            l.append(f"ds_read_b64_tr_b16 v[{r}:{r+1}], v{vWr} offset:{t*4096 + j*512}")
            l.append(f"ds_read_b64_tr_b16 v[{r+2}:{r+3}], v{vWr} offset:{t*4096 + j*512 + 256}")
        if "noread" in EXP: l = []
        return l
    def mfma(fb, t):
        if "nomfma" in EXP: return
        b = F[fb]
        r = b + 4 + 4 * t
        a = ACC + 16 * t
        if special and t == TV:
            e(f"v_mfma_f32_32x32x16_bf16 v[{a}:{a+15}], v[{b}:{b+3}], v[{r}:{r+3}], v[{a}:{a+15}]")
        else:
            e(f"v_mfma_f32_32x32x16_bf16 v[{a}:{a+15}], v[{r}:{r+3}], v[{b}:{b+3}], v[{a}:{a+15}]")
    NR = 1 + 2 * NT
    def step(fb, nxt_reads, first_after=0):
        per = {}
        k = 0
        slots = list(range(first_after, NT - 1)) or [first_after]
        q = list(nxt_reads)
        chunk = -(-len(q) // min(len(slots), 3))
        issued_new = 0
        for t in range(NT):
            if first_after == 0:
                allowed = NR - (2 * t + 3) + issued_new
                e(f"s_waitcnt lgkmcnt({min(allowed, 15)})")
            mfma(fb, t)
            if t == 0 and first_after == 1:
                e("s_barrier")
            if t >= first_after - (1 if first_after == 1 else 0) and q:
                for _ in range(min(chunk, len(q))):
                    e(q.pop(0)); issued_new += 1
        assert not q
    e("s_mov_b32 s40, 0")
    e("s_mov_b32 s49, 0")
    e.ts()
    e("s_barrier")
    e.ts()
    for r in read_list(0, 0): e(r)
    e.label(f"{pfx}_loop")
    pf()
    step(0, read_list(1, 1))
    step(1, read_list(2, 0))
    step(0, read_list(3, 1))
    e("s_add_u32 s49, s49, 1")
    e(f"s_cmp_eq_u32 s49, {NSLOT}")
    e(f"s_cselect_b32 s47, {-(NSLOT-1)*SLOT}, s7")
    e("s_cselect_b32 s49, 0, s49")
    for j in range(4):
        e(f"v_add_u32 v{vXr[j]}, s47, v{vXr[j]}")
    e(f"v_add_u32 v{vWr}, s47, v{vWr}")
    e("s_add_u32 s40, s40, 1")
    e(f"s_cmp_lt_u32 s40, {NCH}")
    e("s_waitcnt lgkmcnt(0)")
    step(1, read_list(0, 0), first_after=1)
    e(f"s_cbranch_scc1 {pfx}_loop")
    e.ts()
    e("s_waitcnt vmcnt(0) lgkmcnt(0)")
    e("s_nop 15")
    e("s_nop 3")
    NTQ = NQ
    RS = 80
    TR = 32 * RS
    if pfx == "pa":
        e("v_and_b32 v13, 31, v1")
        e("v_lshrrev_b32 v14, 5, v1")
        e("v_lshlrev_b32 v15, 6, v13")
        e("v_lshlrev_b32 v16, 3, v14")
        e("v_add_u32 v15, v15, v16")
        e(f"s_mul_i32 s40, s32, {NT*2048}")
        e(f"s_add_u32 s40, s40, {PARK}")
        e("v_add_u32 v15, s40, v15")
        e("v_bfe_u32 v16, v13, 1, 2")
        e("v_lshlrev_b32 v16, 4, v16")
        for g in range(4):
            e(f"v_xor_b32 v{28+g}, {g*16}, v16")
            e(f"v_add_u32 v{28+g}, v{28+g}, v15")
        for t in range(NT):
            a = ACC + 16 * t
            for i in range(8):
                e(f"v_cvt_pk_bf16_f32 v{20+i}, v{a+2*i}, v{a+2*i+1}")
            for g in range(4):
                e(f"ds_write_b64 v{28+g}, v[{20+2*g}:{21+2*g}] offset:{t*2048}")
        e("s_waitcnt lgkmcnt(0)")
        e(f"s_branch {cont}")
        return NSLOT * SLOT

    e("v_and_b32 v13, 31, v1")
    e("v_lshrrev_b32 v14, 5, v1")
    e(f"v_mul_u32_u24 v15, {RS}, v13")
    e("v_lshlrev_b32 v16, 3, v14")
    e("v_add_u32 v15, v15, v16")
    e(f"s_mul_i32 s40, s32, {NT*TR}")
    e("v_add_u32 v15, s40, v15")
    e("v_lshrrev_b32 v16, 2, v1")
    e(f"v_mul_u32_u24 v17, {RS}, v16")
    e("v_and_b32 v18, 3, v1")
    e("v_lshlrev_b32 v18, 4, v18")
    e("v_add_u32 v17, v17, v18")
    e("v_add_u32 v17, s40, v17")
    e("s_lshl_b32 s41, s32, 5")
    e("s_add_u32 s41, s41, s36")
    e("v_add_u32 v16, s41, v16")
    e("v_mul_lo_u32 v16, v16, s34")
    e("v_add_u32 v16, v16, v18")
    e("v_add_u32 v16, s38, v16")
    e("s_lshl_b32 s42, s34, 4")
    for t in range(NTQ):
        a = ACC + 16 * t
        for i in range(8):
            e(f"v_cvt_pk_bf16_f32 v{20+i}, v{a+2*i}, v{a+2*i+1}")
        for g in range(4):
            e(f"ds_write_b64 v15, v[{20+2*g}:{21+2*g}] offset:{t*TR + g*16}")
    e("s_waitcnt lgkmcnt(0)")
    for t in range(NTQ):
        e(f"ds_read_b128 v[{20+8*t}:{23+8*t}], v17 offset:{t*TR}")
        e(f"ds_read_b128 v[{24+8*t}:{27+8*t}], v17 offset:{t*TR + 16*RS}")
    for t in range(NTQ):
        if t == NTQ - 1 and not special:
            e(f"s_cmp_lt_u32 s39, {NTQ}")
            e(f"s_cbranch_scc1 {pfx}_skiplast")
        e(f"s_waitcnt lgkmcnt({2*(NTQ-1-t)})")
        fl = " sc1" if cont else ""
        e(f"buffer_store_dwordx4 v[{20+8*t}:{23+8*t}], v16, s[16:19], 0 offen offset:{64*t}{fl}")
        e(f"buffer_store_dwordx4 v[{24+8*t}:{27+8*t}], v16, s[16:19], s42 offen offset:{64*t}{fl}")
    if not special:
        e.label(f"{pfx}_skiplast")
    if special:
        e("s_lshr_b32 s43, s41, 5")
        e(f"s_mul_i32 s43, s43, {TILE_B}")
        a = ACC + 16 * TK
        for i in range(10):
            e(f"v_mul_f32 v{a+i}, s35, v{a+i}")
        for i in range(5):
            e(f"v_cvt_pk_bf16_f32 v{48+i}, v{a+2*i}, v{a+2*i+1}")
        e("v_lshlrev_b32 v56, 4, v13")
        e("v_lshlrev_b32 v57, 3, v14")
        e("v_add_u32 v56, v56, v57")
        e("buffer_store_dwordx2 v[48:49], v56, s[28:31], s43 offen sc1")
        e("buffer_store_dwordx2 v[50:51], v56, s[28:31], s43 offen offset:512 sc1")
        e("v_lshlrev_b32 v57, 2, v13")
        e("v_cmp_gt_u32 vcc, 32, v1")
        e("s_and_saveexec_b64 s[52:53], vcc")
        e("buffer_store_dword v52, v57, s[28:31], s43 offen offset:1024 sc1")
        e("s_mov_b64 exec, s[52:53]")
        a = ACC + 16 * TV
        for i in range(8):
            e(f"v_cvt_pk_bf16_f32 v{40+i}, v{a+2*i}, v{a+2*i+1}")
        e("v_mov_b32 v58, 0x3f803f80")
        e("v_cmp_eq_u32 vcc, 18, v13")
        e("s_nop 1")
        for i in range(8):
            e(f"v_cndmask_b32 v{40+i}, v{40+i}, v58, vcc")
        e("v_cmp_ne_u32 vcc, 19, v13")
        e("s_nop 1")
        for i in range(8):
            e(f"v_cndmask_b32 v{40+i}, 0, v{40+i}, vcc")
        e("v_lshlrev_b32 v56, 4, v13")
        e("v_mul_u32_u24 v57, 320, v14")
        e("v_add_u32 v56, v56, v57")
        e("v_cmp_gt_u32 vcc, 20, v13")
        e("s_and_saveexec_b64 s[52:53], vcc")
        e("buffer_store_dwordx4 v[40:43], v56, s[28:31], s43 offen offset:1152 sc1")
        e("buffer_store_dwordx4 v[44:47], v56, s[28:31], s43 offen offset:1792 sc1")
        e("s_mov_b64 exec, s[52:53]")
    if cont:
        e(f"s_branch {cont}")
        return NSLOT * SLOT
    e.ts()
    e("s_waitcnt vmcnt(0)") if INSTR else None
    e.ts()
    e.ts_dump(4, 8, 1)
    e("s_endpgm")
    return NSLOT * SLOT

def kd(name, vgpr, sgpr=64):
    if INSTR: sgpr = 102
    acc = (vgpr + 3) // 4 * 4
    return f""".amdhsa_kernel {name}
  .amdhsa_next_free_vgpr {vgpr}
  .amdhsa_next_free_sgpr {sgpr}
  .amdhsa_accum_offset {acc}
  .amdhsa_group_segment_fixed_size 0
  .amdhsa_kernarg_size 88
  .amdhsa_user_sgpr_count 2
  .amdhsa_user_sgpr_kernarg_segment_ptr 1
  .amdhsa_system_sgpr_workgroup_id_x 1
.end_amdhsa_kernel
"""

def header(e, name):
    e.l.append(f".globl {name}")
    e.l.append(".p2align 8")
    e.l.append(f".type {name},@function")
    e.label(name)

def stagger(e, a, b):
    if "nostag" in EXP:
        e("s_mov_b32 s50, 0"); return
    e(f"s_lshl_b32 s50, {b}, 1")
    e(f"s_add_u32 s50, s50, {a}")
    e("s_cmp_ge_u32 s50, 9")
    e("s_cselect_b32 s51, 9, 0")
    e("s_sub_u32 s50, s50, s51")

def gen_proj(e):
    header(e, "main_kernel")
    e("s_cmp_ge_u32 s2, 256")
    e("s_cbranch_scc1 attn_exit")
    e.ts_reset()
    e.ts()
    e.mute = True
    e("v_lshrrev_b32 v13, 6, v0")
    e("s_load_dwordx2 s[52:53], s[0:1], 0")
    e("s_load_dwordx2 s[54:55], s[0:1], 8")
    e("s_load_dwordx2 s[56:57], s[0:1], 24")
    e("s_load_dwordx2 s[58:59], s[0:1], 32")
    e("s_load_dwordx2 s[60:61], s[0:1], 40")
    e("s_load_dwordx2 s[62:63], s[0:1], 48")
    e("s_load_dwordx2 s[4:5], s[0:1], 80")
    e("s_and_b32 s6, s2, 7")
    e("s_lshr_b32 s7, s2, 3")
    e("s_and_b32 s3, s7, 7")
    e("s_lshr_b32 s7, s7, 3")
    e("v_readfirstlane_b32 s32, v13")
    e("s_load_dwordx2 s[50:51], s[0:1], 72")
    e("s_waitcnt lgkmcnt(0)")
    e("s_cmp_gt_u32 s2, 31")
    e("s_cbranch_scc1 p0_noclr")
    e("s_cmp_lg_u32 s32, 9")
    e("s_cbranch_scc1 p0_noclr")
    e(f"s_add_u32 s40, s4, {WS_FLAG + 8192}")
    e("s_addc_u32 s41, s5, 0")
    e("v_and_b32 v1, 63, v0")
    e("v_lshlrev_b32 v1, 3, v1")
    e("s_lshl_b32 s42, s2, 9")
    e("v_add_u32 v1, s42, v1")
    e("v_mov_b32 v2, 0")
    e("v_mov_b32 v3, 0")
    e("global_store_dwordx2 v1, v[2:3], s[40:41] sc1")
    e("s_waitcnt vmcnt(0)")
    e("v_mov_b32 v3, 1")
    e("s_mov_b64 exec, 1")
    e("global_atomic_add v2, v3, s[50:51] sc1")
    e("s_mov_b64 exec, -1")
    e.label("p0_noclr")
    e("s_lshr_b32 s7, s2, 3")
    e("s_and_b32 s3, s7, 3")
    e("s_lshr_b32 s7, s7, 2")
    e("s_lshr_b32 s40, s6, 1")
    e("s_lshl_b32 s40, s40, 2")
    e("s_add_u32 s40, s40, s3")
    e("s_and_b32 s6, s6, 1")
    e("s_sub_u32 s42, 5, s6")
    e("s_lshl_b32 s36, s40, 7")
    e("s_mov_b32 s39, 6")
    e("s_lshl_b32 s50, s3, 1")
    e("s_add_u32 s50, s50, s7")
    e("s_cmp_ge_u32 s50, 9")
    e("s_cselect_b32 s51, 9, 0")
    e("s_sub_u32 s50, s50, s51")
    e("s_cmp_ge_u32 s7, s42")
    e("s_cbranch_scc1 proj_B")
    e("s_mul_i32 s41, s6, 5")
    e("s_add_u32 s41, s41, s7")
    e("s_mov_b32 s60, 1")
    e("s_mov_b32 s61, s40")
    e("s_mov_b32 s62, s41")
    srd(e, 8, 52, 53, 2048 * 1152)
    srd(e, 12, 54, 55, 576 * 3456)
    e("s_movk_i32 s33, 3456")
    e("s_mul_i32 s37, s41, 384")
    lds = gen_gemm(e, "pa", 6, 4, cont="p1_done")
    e.label("proj_B")
    e("s_sub_u32 s41, s7, s42")
    e("s_mul_i32 s43, s6, 3")
    e("s_add_u32 s41, s41, s43")
    srd(e, 8, 56, 57, 2048 * 1152)
    srd(e, 12, 58, 59, 576 * 1152)
    srd_off(e, 16, 4, 5, WS_QB, 2048 * 1152)
    e("s_movk_i32 s33, 1152")
    e("s_movk_i32 s34, 1152")
    e(f"s_mov_b32 s35, {f32bits(CSCALE):#x}")
    e("s_mul_i32 s37, s41, 192")
    e("s_mov_b32 s38, s37")
    e("s_cmp_eq_u32 s41, 6")
    e("s_cbranch_scc1 proj_special")
    e("s_mov_b32 s60, 2")
    e("s_mov_b32 s61, s40")
    e("s_mov_b32 s62, s41")
    gen_gemm(e, "pg", 3, 5, cont="p1_done")
    e.label("proj_special")
    srd(e, 20, 60, 61, 576 * 36)
    srd(e, 24, 62, 63, 576 * 36)
    e("s_mov_b32 s60, 3")
    e("s_mov_b32 s61, s40")
    e("s_cmp_lg_u32 s32, 0")
    e("s_cbranch_scc1 ps_noclr")
    srd_off(e, 28, 4, 5, WS_FLAG, 8192)
    e("v_and_b32 v1, 63, v0")
    e("v_lshlrev_b32 v1, 2, v1")
    e("v_mov_b32 v3, 0")
    e("s_lshl_b32 s41, s40, 8")
    e("buffer_store_dword v3, v1, s[28:31], s41 offen sc1")
    e("s_add_u32 s41, s41, 4096")
    e("buffer_store_dword v3, v1, s[28:31], s41 offen sc1")
    e.label("ps_noclr")
    srd_off(e, 28, 4, 5, WS_KV, KVIMG_B)
    gen_gemm(e, "ps", 2, 6, special=True, cont="p1_done")
    e.mute = False
    return lds

def gen_out(e):
    header(e, "outp_kernel")
    e("s_cmp_ge_u32 s2, 192")
    e("s_cbranch_scc1 outp_exit")
    e("s_load_dwordx2 s[52:53], s[0:1], 16")
    e("s_load_dwordx2 s[54:55], s[0:1], 56")
    e("s_load_dwordx2 s[56:57], s[0:1], 64")
    e("s_load_dwordx2 s[4:5], s[0:1], 80")
    e("s_and_b32 s6, s2, 7")
    e("s_lshr_b32 s7, s2, 3")
    e("s_and_b32 s3, s7, 1")
    e("s_bfe_u32 s41, s7, 0x10001")
    e("s_lshl_b32 s40, s6, 1")
    e("s_add_u32 s40, s40, s41")
    e("s_lshr_b32 s41, s7, 2")
    e("s_waitcnt lgkmcnt(0)")
    e(f"s_mov_b32 s42, {WS_OB}")
    e("s_cmp_eq_u32 s3, 0")
    e(f"s_cselect_b32 s42, {WS_OA}, s42")
    e("s_cselect_b32 s58, s52, s54")
    e("s_cselect_b32 s59, s53, s55")
    e("s_add_u32 s8, s4, s42")
    e("s_addc_u32 s9, s5, 0")
    e(f"s_mov_b32 s10, {2048*1152}")
    e("s_mov_b32 s11, 0x00020000")
    srd(e, 12, 58, 59, 576 * 1152)
    srd(e, 16, 56, 57, 2048 * 2304)
    e("s_movk_i32 s33, 1152")
    e("s_movk_i32 s34, 2304")
    e("s_mov_b32 s35, 1.0")
    e("s_lshl_b32 s36, s40, 7")
    e("s_mul_i32 s37, s41, 192")
    e("s_mul_i32 s38, s3, 1152")
    e("s_add_u32 s38, s38, s37")
    e("s_mov_b32 s39, 3")
    e("s_and_b32 s40, s40, 1")
    stagger(e, "s41", "s40")
    e("s_mov_b32 s6, s41")
    e("s_mov_b32 s3, s40")
    lds = gen_gemm(e, "og", 3, 5)
    e.label("outp_exit")
    e("s_endpgm")
    return lds

def gen_attn(e):
    Q1 = 12; Q2 = 16; C = 20; S = [36, 52]; P = [68, 76]; O = 84
    KF = [100, 104]; K2F = [108, 112]; VF = [116, 124]
    T = 132
    SLOTB = [97280, 130048]
    SYNC = 162816
    vK1 = 4; vK2 = 5; vV = 6
    QST = KVIMG_B
    e.label("p1_done")
    e.ts()
    e("s_load_dwordx2 s[50:51], s[0:1], 72")
    e("s_cmp_lt_u32 s60, 2")
    e("s_cbranch_scc1 p1_nodrain")
    e("s_waitcnt vmcnt(0)")
    e.label("p1_nodrain")
    e("s_waitcnt lgkmcnt(0)")
    e("s_cmp_lg_u32 s32, 8")
    e("s_cbranch_scc1 p1_initok")
    e("v_mov_b32 v4, 0")
    e("s_mov_b32 s43, 0")
    e.label("p1_init")
    e("global_load_dword v7, v4, s[50:51] sc1")
    e("s_waitcnt vmcnt(0)")
    e("v_readfirstlane_b32 s35, v7")
    e("s_add_u32 s43, s43, 1")
    e("s_cmp_ge_u32 s35, 32")
    e("s_cbranch_scc1 p1_initok")
    e("s_sleep 8")
    e("s_cmp_lt_u32 s43, 0x10000")
    e("s_cbranch_scc1 p1_init")
    e.label("p1_initok")
    e("s_barrier")
    e("s_cmp_lg_u32 s32, 8")
    e("s_cbranch_scc1 p1_wait")
    e("v_mov_b32 v5, 1")
    e("v_and_b32 v1, 63, v0")
    e(f"s_add_u32 s52, s4, {WS_FLAG + 8192}")
    e("s_addc_u32 s53, s5, 0")
    e("s_cmp_lt_u32 s60, 2")
    e("s_cbranch_scc1 p1_nosig")
    e("s_mul_i32 s35, s61, 6")
    e("s_add_u32 s35, s35, s62")
    e("s_add_u32 s35, s35, 16")
    e("s_cmp_eq_u32 s60, 3")
    e("s_cselect_b32 s35, s61, s35")
    e("s_lshl_b32 s35, s35, 2")
    e("v_lshlrev_b32 v7, 9, v1")
    e("v_add_u32 v4, s35, v7")
    e("s_mov_b32 exec_hi, 0")
    e("global_store_dword v4, v5, s[52:53] sc1")
    e("s_mov_b64 exec, -1")
    e.label("p1_nosig")
    e("s_and_b32 s35, s2, 7")
    e("s_lshl_b32 s35, s35, 1")
    e("s_lshr_b32 s36, s2, 7")
    e("s_add_u32 s35, s35, s36")
    e("s_mul_i32 s35, s35, 6")
    e("v_min_u32 v4, 21, v1")
    e("v_add_u32 v6, s35, v4")
    e("v_cmp_gt_u32 vcc, 16, v4")
    e("s_lshr_b32 s36, s2, 3")
    e("s_lshl_b32 s36, s36, 9")
    e("v_cndmask_b32 v4, v6, v4, vcc")
    e("v_lshlrev_b32 v4, 2, v4")
    e("v_add_u32 v4, s36, v4")
    e("s_mov_b32 s43, 0")
    e.label("p1_poll")
    e("global_load_dword v7, v4, s[52:53] sc1")
    e("s_waitcnt vmcnt(0)")
    e("v_cmp_ne_u32 vcc, 1, v7")
    e("s_add_u32 s43, s43, 1")
    e("s_cmp_eq_u64 vcc, 0")
    e("s_cbranch_scc1 p1_wait")
    e("s_sleep 4")
    e("s_cmp_lt_u32 s43, 0x10000")
    e("s_cbranch_scc1 p1_poll")
    e.label("p1_wait")
    e("s_barrier")
    e.ts()
    e("s_load_dwordx2 s[4:5], s[0:1], 80")
    e("s_load_dwordx2 s[46:47], s[0:1], 16")
    e("s_load_dwordx2 s[48:49], s[0:1], 56")
    e("s_load_dwordx4 s[28:31], s[0:1], 0")
    e("v_and_b32 v1, 63, v0")
    e("v_lshrrev_b32 v7, 6, v0")
    e("v_and_b32 v2, 31, v1")
    e("v_readfirstlane_b32 s32, v7")
    e("v_lshrrev_b32 v3, 5, v1")
    e("s_and_b32 s3, s2, 7")
    e("s_lshl_b32 s33, s3, 8")
    e("s_lshr_b32 s6, s2, 3")
    e("s_lshl_b32 s35, s6, 3")
    e("s_add_u32 s33, s33, s35")
    e("v_lshlrev_b32 v7, 4, v1")
    e("v_mul_u32_u24 v8, 36, v2")
    e("v_lshlrev_b32 v9, 4, v3")
    e("v_add_u32 v9, v8, v9")
    e("s_waitcnt lgkmcnt(0)")
    srd_off(e, 16, 4, 5, WS_KV, KVIMG_B)
    e("s_cmp_ge_u32 s32, 8")
    e("s_cbranch_scc1 attn_helper")
    e("s_add_u32 s33, s33, s32")
    srd_off(e, 12, 4, 5, WS_QB, 2048 * 1152)
    e("s_mul_i32 s36, s33, 1152")
    e(f"buffer_load_dwordx4 v[{Q1}:{Q1+3}], v9, s[12:15], s36 offen sc1")
    e(f"buffer_load_dword v{Q2}, v8, s[12:15], s36 offen offset:32 sc1")
    srd_off(e, 24, 4, 5, WS_OB, 2048 * 1152)
    e(f"v_lshlrev_b32 v{vK1}, 4, v1")
    e(f"v_lshlrev_b32 v{vK2}, 2, v2")
    e(f"v_add_u32 v{vK2}, 1024, v{vK2}")
    e(f"v_min_u32 v{vV}, 19, v2")
    e("v_cmp_eq_u32 vcc, 22, v2")
    e("v_mov_b32 v11, 18")
    e("s_nop 0")
    e(f"v_cndmask_b32 v{vV}, v{vV}, v11, vcc")
    e(f"v_lshlrev_b32 v{vV}, 4, v{vV}")
    e("v_mul_u32_u24 v11, 320, v3")
    e(f"v_add_u32 v{vV}, v{vV}, v11")
    e(f"v_add_u32 v{vV}, 1152, v{vV}")
    e("v_cmp_gt_u32 vcc, 32, v1")
    e(f"v_mov_b32 v{Q2+1}, 0")
    e(f"v_mov_b32 v{Q2+2}, 0")
    e(f"v_mov_b32 v{Q2+3}, 0")
    e("s_mov_b32 s40, 0")
    e("s_mov_b32 s50, 0x0047ffff")
    e("s_mov_b32 s51, 0x0047ffff")
    e("s_waitcnt vmcnt(0)")
    e("s_barrier")
    e(f"v_cndmask_b32 v{Q2}, 0, v{Q2}, vcc")
    e.ts()
    MB = [36, 52, 68, 84]
    KB = [100, 108, 116, 124]
    def ld128(dst, vlds, vglb, off, src, soff="0"):
        if src == "lds": e(f"ds_read_b128 v[{dst}:{dst+3}], v{vlds} offset:{off}")
        else: e(f"buffer_load_dwordx4 v[{dst}:{dst+3}], v{vglb}, s[16:19], {soff} offen offset:{off} sc1")
    def ld32(dst, vlds, vglb, off, src, soff="0"):
        if src == "lds": e(f"ds_read_b32 v{dst}, v{vlds} offset:{off}")
        else: e(f"buffer_load_dword v{dst}, v{vglb}, s[16:19], {soff} offen offset:{off} sc1")
    def wait(n, src):
        e(f"s_waitcnt {'lgkmcnt' if src == 'lds' else 'vmcnt'}({n})")
    def maxpass(src):
        e("v_mov_b32 v10, 0xff800000")
        if src == "glb":
            e("s_mov_b32 s42, 0")
            e.label("attn_maxloop")
        for i in range(4):
            if src == "glb":
                e(f"s_add_u32 s35, s42, {i*TILE_B}")
                ld128(KB[i], 0, vK1, 0, src, "s35"); ld32(KB[i]+4, 0, vK2, 0, src, "s35")
            else:
                ld128(KB[i], vK1, 0, i*TILE_B, src); ld32(KB[i]+4, vK2, 0, i*TILE_B, src)
        for i in range(4):
            e(f"v_mov_b32 v{KB[i]+5}, 0")
        for i in range(4):
            wait(6-2*i, src)
            e(f"v_mfma_f32_32x32x16_bf16 v[{MB[i]}:{MB[i]+15}], v[{KB[i]}:{KB[i]+3}], v[{Q1}:{Q1+3}], 0")
        e("s_nop 9")
        for i in range(4):
            e(f"v_mfma_f32_32x32x8_bf16 v[{MB[i]}:{MB[i]+15}], v[{KB[i]+4}:{KB[i]+5}], v[{Q2}:{Q2+1}], v[{MB[i]}:{MB[i]+15}]")
        e("s_nop 9")
        for i in range(4):
            if i == 3:
                e("s_nop 3")
            for j in range(8):
                e(f"v_max3_f32 v10, v{MB[i]+2*j}, v{MB[i]+2*j+1}, v10")
        if src == "glb":
            e(f"s_add_u32 s42, s42, {4*TILE_B}")
            e(f"s_cmp_lt_u32 s42, {64*TILE_B}")
            e("s_cbranch_scc1 attn_maxloop")
    def prologue(src):
        e(f"v_mov_b32 v{T}, v{vK1}")
        e(f"v_mov_b32 v{T+1}, v{vK2}")
        e(f"v_mov_b32 v{T+2}, v{vV}")
        ld128(KF[0], T, vK1, 0, src); ld32(K2F[0], T+1, vK2, 0, src)
        ld128(KF[1], T, vK1, TILE_B, src); ld32(K2F[1], T+1, vK2, TILE_B, src)
        e("v_mov_b32 v11, v10")
        e("s_nop 1")
        e("v_permlane32_swap_b32 v10, v11")
        e("v_max_f32 v10, v10, v11")
        e("v_sub_f32 v10, 0, v10")
        e(f"v_cvt_pk_bf16_f32 v{C}, v10, 0")
        e(f"v_lshlrev_b32 v{C}, 16, v{C}")
        e(f"v_sub_f32 v10, v10, v{C}")
        e(f"v_cvt_pk_bf16_f32 v{C+1}, v10, 0")
        e(f"v_lshlrev_b32 v{C+1}, 16, v{C+1}")
        e(f"v_sub_f32 v10, v10, v{C+1}")
        e("v_cmp_gt_u32 vcc, 32, v1")
        e(f"v_cvt_pk_bf16_f32 v{C+2}, v{C}, v{C+1}")
        e(f"v_cvt_pk_bf16_f32 v{C+3}, v10, 0")
        e(f"v_cndmask_b32 v{Q2+1}, v{C+3}, v{C+2}, vcc")
        for b in range(2):
            e(f"v_mov_b32 v{K2F[b]+1}, 0x3f803f80")
        wait(2, src)
        e(f"v_mfma_f32_32x32x16_bf16 v[{S[0]}:{S[0]+15}], v[{KF[0]}:{KF[0]+3}], v[{Q1}:{Q1+3}], 0")
        for i in range(16):
            e(f"v_mov_b32 v{O+i}, 0")

        e(f"v_mfma_f32_32x32x8_bf16 v[{S[0]}:{S[0]+15}], v[{K2F[0]}:{K2F[0]+1}], v[{Q2}:{Q2+1}], v[{S[0]}:{S[0]+15}]")
        for i in range(8):
            e(f"v_mov_b32 v{P[1]+i}, 0")
            e(f"v_mov_b32 v{VF[1]+i}, 0")
    def tile(tt, top=None, src="lds"):
        cur = tt & 1; nxt = cur ^ 1
        wait(0, src)
        if top: top()
        if src == "lds":
            ld128(KF[cur], T, 0, (tt+2)*TILE_B, src); ld32(K2F[cur], T+1, 0, (tt+2)*TILE_B, src)
            ld128(VF[cur], T+2, 0, tt*TILE_B, src); ld128(VF[cur]+4, T+2, 0, tt*TILE_B+640, src)
        else:
            e(f"s_add_u32 s35, s42, {2*TILE_B}")
            ld128(KF[cur], 0, vK1, 0, src, "s35"); ld32(K2F[cur], 0, vK2, 0, src, "s35")
            ld128(VF[cur], 0, vV, 0, src, "s42"); ld128(VF[cur]+4, 0, vV, 640, src, "s42")
            e(f"s_add_u32 s42, s42, {TILE_B}")
        m = [f"v_mfma_f32_32x32x16_bf16 v[{S[nxt]}:{S[nxt]+15}], v[{KF[nxt]}:{KF[nxt]+3}], v[{Q1}:{Q1+3}], 0",
             f"v_mfma_f32_32x32x16_bf16 v[{O}:{O+15}], v[{VF[nxt]}:{VF[nxt]+3}], v[{P[nxt]}:{P[nxt]+3}], v[{O}:{O+15}]",
             f"v_mfma_f32_32x32x8_bf16 v[{S[nxt]}:{S[nxt]+15}], v[{K2F[nxt]}:{K2F[nxt]+1}], v[{Q2}:{Q2+1}], v[{S[nxt]}:{S[nxt]+15}]",
             f"v_mfma_f32_32x32x16_bf16 v[{O}:{O+15}], v[{VF[nxt]+4}:{VF[nxt]+7}], v[{P[nxt]+4}:{P[nxt]+7}], v[{O}:{O+15}]"]
        for g in range(4):
            e(m[g])
            for i in range(4):
                e(f"v_exp_f32 v{S[cur]+4*g+i}, v{S[cur]+4*g+i}")
            for i in range(2):
                j = 2 * g + i
                e(f"v_cvt_pk_bf16_f32 v{P[cur]+j}, v{S[cur]+2*j}, v{S[cur]+2*j+1}")
    maxpass("lds")
    prologue("lds")
    e("s_mov_b32 s42, 0")
    e.ts()
    e.label("attn_loop1")
    def topbar(it, name):
        def f():
            e(f"s_lshr_b32 s35, {1 | (1 << HB2_IT)}, s42")
            e("s_and_b32 s35, s35, 1")
            e(f"s_cbranch_scc0 {name}")
            e("s_barrier")
            e.label(name)
        return f
    for tt in range(8):
        tile(tt, topbar(0, "attn_nobar1") if tt == HB1_TT else None)
    for i in range(3):
        e(f"v_add_u32 v{T+i}, {8*TILE_B}, v{T+i}")
    e("s_add_u32 s42, s42, 1")
    e("s_cmp_lt_u32 s42, 8")
    e("s_cbranch_scc1 attn_loop1")
    e("s_branch attn_done")
    e.label("attn_restart")
    maxpass("glb")
    prologue("glb")
    e("s_mov_b32 s42, 0")
    e.label("attn_loop2")
    for tt in range(2):
        tile(tt, src="glb")
    e(f"s_cmp_lt_u32 s42, {64*TILE_B}")
    e("s_cbranch_scc1 attn_loop2")
    e("s_waitcnt vmcnt(0)")
    e.label("attn_done")
    e.ts()
    e("s_waitcnt lgkmcnt(0)")
    e(f"v_mfma_f32_32x32x16_bf16 v[{O}:{O+15}], v[{VF[1]}:{VF[1]+3}], v[{P[1]}:{P[1]+3}], v[{O}:{O+15}]")
    e(f"v_mfma_f32_32x32x16_bf16 v[{O}:{O+15}], v[{VF[1]+4}:{VF[1]+7}], v[{P[1]+4}:{P[1]+7}], v[{O}:{O+15}]")
    e("s_nop 15")
    e("s_nop 3")
    e("s_cmp_lg_u32 s40, 0")
    e("s_cbranch_scc1 attn_fin")
    e("v_mov_b32 v10, 0x71800000")
    e(f"v_cmp_nlt_f32 vcc, v{O+10}, v10")
    e("s_mov_b64 s[44:45], vcc")
    e("v_mov_b32 v10, 0x207")
    for i in range(10):
        e(f"v_cmp_class_f32 vcc, v{O+i}, v10")
        e("s_or_b64 s[44:45], s[44:45], vcc")
    e("s_cmp_eq_u64 s[44:45], 0")
    e("s_cbranch_scc1 attn_fin")
    e("s_mov_b32 s40, 1")
    e("s_branch attn_restart")
    e.label("attn_fin")
    e(f"v_rcp_f32 v10, v{O+10}")
    e("s_nop 0")
    for i in range(10):
        e(f"v_mul_f32 v{O+i}, v{O+i}, v10")
    for i in range(5):
        e(f"v_cvt_pk_bf16_f32 v{S[0]+i}, v{O+2*i}, v{O+2*i+1}")
    e("v_lshlrev_b32 v10, 3, v3")
    e("v_add_u32 v10, v8, v10")
    e(f"buffer_store_dwordx2 v[{S[0]}:{S[0]+1}], v10, s[24:27], s36 offen")
    e(f"buffer_store_dwordx2 v[{S[0]+2}:{S[0]+3}], v10, s[24:27], s36 offen offset:16")
    e("v_cmp_gt_u32 vcc, 32, v1")
    e("s_and_saveexec_b64 s[44:45], vcc")
    e(f"buffer_store_dword v{S[0]+4}, v8, s[24:27], s36 offen offset:32")
    e.ts()
    e.ts_dump(4, 12, 0)
    e("s_endpgm")
    e.label("attn_helper")
    e.nts = 3
    if "hprio" in EXP: e("s_setprio 1")
    e("s_sub_u32 s41, s32, 8")
    e("s_lshl_b32 s34, s41, 10")
    def kvdma(i4):
        e(f"s_add_u32 m0, s34, {i4*4096}")
        e(f"s_add_u32 s35, s34, {i4*4096}")
        e("buffer_load_dwordx4 v7, s[16:19], s35 offen sc1 lds")
    for i4 in range(6):
        kvdma(i4)
    e("v_mov_b32 v4, 163832")
    e("v_mov_b32 v5, 0")
    e("ds_write_b32 v4, v5")
    e("s_waitcnt vmcnt(0) lgkmcnt(0)")
    e("s_barrier")
    e.ts()
    for i4 in range(6, 26):
        kvdma(i4)
    srd_off(e, 8, 4, 5, WS_QKVA, 2048 * 3456)
    srd_off(e, 20, 4, 5, WS_OA, 2048 * 1152)
    srd(e, 12, 46, 47, 576 * 1152)
    srd(e, 24, 48, 49, 576 * 1152)
    e("s_lshl_b32 s40, s41, 1")
    e("s_add_u32 s40, s40, s33")
    e("s_add_u32 s42, s40, 2")
    e(f"s_mov_b32 s38, {f32bits(CSCALE):#x}")
    e("s_waitcnt vmcnt(0)")
    e("s_barrier")
    e.ts()
    e("v_lshrrev_b32 v10, 2, v1")
    e("v_and_b32 v11, 3, v1")
    e("v_bfe_u32 v12, v10, 1, 2")
    e("v_xor_b32 v12, v12, v11")
    e("v_lshlrev_b32 v12, 4, v12")
    e("v_lshlrev_b32 v13, 6, v10")
    e("v_add_u32 v12, v12, v13")
    e("s_mul_i32 s39, s41, 12288")
    e(f"s_add_u32 s39, s39, {PARK}")
    e("v_add_u32 v12, s39, v12")
    for t in range(6):
        e(f"ds_read_b128 v[{20+8*t}:{23+8*t}], v12 offset:{t*2048}")
        e(f"ds_read_b128 v[{24+8*t}:{27+8*t}], v12 offset:{t*2048 + 1024}")
    e("s_lshl_b32 s35, s61, 7")
    e("s_lshl_b32 s36, s41, 5")
    e("s_add_u32 s35, s35, s36")
    e("v_add_u32 v10, s35, v10")
    e("v_mul_u32_u24 v10, 3456, v10")
    e("v_lshlrev_b32 v11, 4, v11")
    e("v_add_u32 v10, v10, v11")
    e("s_mul_i32 s35, s62, 384")
    e("v_add_u32 v10, s35, v10")
    e("s_waitcnt lgkmcnt(0)")
    for i in range(12):
        e(f"s_add_u32 m0, s39, {i*1024}")
        e(f"s_add_u32 s35, s39, {i*1024}")
        e("buffer_load_dwordx4 v7, s[16:19], s35 offen sc1 lds")
    e("s_mov_b32 s56, s8")
    e("s_mov_b32 s57, s9")
    e("s_mov_b32 s59, 0x00020000")
    e("s_cmp_eq_u32 s60, 1")
    e(f"s_cselect_b32 s58, {2048*3456}, 0")
    e(f"s_mov_b32 s36, {16*3456}")
    for t in range(6):
        e(f"buffer_store_dwordx4 v[{20+8*t}:{23+8*t}], v10, s[56:59], 0 offen offset:{64*t} sc1")
        e(f"buffer_store_dwordx4 v[{24+8*t}:{27+8*t}], v10, s[56:59], s36 offen offset:{64*t} sc1")
    e("s_waitcnt vmcnt(0)")
    e.ts()
    e(f"s_add_u32 s50, s4, {WS_FLAG}")
    e("s_addc_u32 s51, s5, 0")
    e("s_cmp_lg_u32 s60, 1")
    e("s_cbranch_scc1 attn_h_nopub")
    e("s_lshl_b32 s35, s61, 8")
    e("s_lshl_b32 s39, s62, 4")
    e("s_add_u32 s35, s35, s39")
    e("s_lshl_b32 s39, s41, 2")
    e("s_add_u32 s35, s35, s39")
    e("v_mov_b32 v10, s35")
    e("v_mov_b32 v11, 1")
    e("s_mov_b64 exec, 1")
    e("global_store_dword v10, v11, s[50:51] sc1")
    e("s_mov_b64 exec, -1")
    e.label("attn_h_nopub")
    e("s_lshl_b32 s39, s6, 2")
    e("s_add_u32 s39, s39, s41")
    e("s_mul_i32 s39, s39, 5248")
    e("v_min_u32 v24, 40, v1")
    e("v_lshlrev_b32 v24, 7, v24")
    e("buffer_load_dword v155, v24, s[12:15], s39 offen")
    e("buffer_load_dword v155, v24, s[24:27], s39 offen")
    e("s_barrier")
    e("s_setprio 1")
    e("s_sub_u32 s35, s33, 14")
    e("s_max_i32 s35, s35, 0")
    e("s_lshr_b32 s35, s35, 7")
    e("s_lshl_b32 s35, s35, 8")
    e("s_lshr_b32 s39, s33, 7")
    e("s_lshl_b32 s39, s39, 8")
    e("v_min_u32 v12, 35, v1")
    e("v_lshlrev_b32 v12, 2, v12")
    e("v_add_u32 v10, s35, v12")
    e("v_add_u32 v12, s39, v12")
    e("s_mov_b32 s43, 0")
    e.label("attn_poll")
    e("global_load_dword v11, v10, s[50:51] sc1")
    e("global_load_dword v13, v12, s[50:51] sc1")
    e("s_waitcnt vmcnt(0)")
    e("v_and_b32 v11, v11, v13")
    e("v_cmp_ne_u32 vcc, 1, v11")
    e("s_add_u32 s43, s43, 1")
    e("s_cmp_eq_u64 vcc, 0")
    e("s_cbranch_scc1 attn_pollok")
    e("s_sleep 16")
    e("s_cmp_lt_u32 s43, 0x10000")
    e("s_cbranch_scc1 attn_poll")
    e.label("attn_pollok")
    e.ts()
    e("s_sub_u32 s39, s33, 14")
    e("s_max_i32 s39, s39, 0")
    e("s_mul_i32 s43, s39, 3456")
    e("s_add_u32 s43, s43, s34")
    for i4 in range(19):
        e(f"s_add_u32 m0, s34, {i4*4096}")
        e(f"s_add_u32 s35, s43, {i4*4096}")
        e("buffer_load_dwordx4 v7, s[8:11], s35 offen sc1 lds")
    e("s_movk_i32 s53, 1152")
    e("s_waitcnt vmcnt(0)")
    e("v_mov_b32 v5, 1")
    e("s_mov_b64 exec, 1")
    e("ds_add_u32 v4, v5")
    e("s_mov_b64 exec, -1")
    e.label("attn_sb")
    e("ds_read_b32 v6, v4")
    e("s_waitcnt lgkmcnt(0)")
    e("v_readfirstlane_b32 s45, v6")
    e("s_nop 3")
    e("s_cmp_ge_u32 s45, 4")
    e("s_cbranch_scc1 attn_sbx")
    e("s_sleep 2")
    e("s_branch attn_sb")
    e.label("attn_sbx")
    e.ts()
    AQ = 20; AK = 30; AV = 70; AO = 110; OA = 128; W = 134; R = 12
    e.label("attn_a_loop")
    e("v_lshlrev_b32 v10, 3, v3")
    e("v_sub_u32 v10, s40, v10")
    for i in range(4):
        e(f"v_subrev_u32 v{R+i}, {2*i}, v10")
        e(f"v_max_i32 v11, 0, v{R+i}")
        e("v_subrev_u32 v11, s39, v11")
        e("v_mul_u32_u24 v11, 3456, v11")
        e(f"v_add3_u32 v{R+4+i}, v11, v8, s53")
    e("s_sub_u32 s35, s40, s39")
    e("s_mul_i32 s35, s35, 3456")
    e("v_add_u32 v11, s35, v8")
    def rd9(dst, va):
        for j in range(4):
            e(f"ds_read2_b32 v[{dst+2*j}:{dst+2*j+1}], v{va} offset0:{2*j} offset1:{2*j+1}")
        e(f"ds_read_b32 v{dst+8}, v{va} offset:32")
    rd9(AQ, 11)
    for i in range(4):
        rd9(AK + 10 * i, R + 4 + i)
    for i in range(4):
        e(f"v_add_u32 v{R+4+i}, 1152, v{R+4+i}")
        rd9(AV + 10 * i, R + 4 + i)
    e("s_waitcnt lgkmcnt(0)")
    L = W
    for i in range(4):
        k = AK + 10 * i
        e(f"v_dot2_f32_bf16 v{L+i}, v{AQ}, v{k}, 0")
    for j in range(1, 9):
        for i in range(4):
            k = AK + 10 * i
            e(f"v_dot2_f32_bf16 v{L+i}, v{AQ+j}, v{k+j}, v{L+i}")
    e(f"v_mov_b32 v{W+4}, 0xff800000")
    e("s_nop 2")
    for i in range(4):
        e(f"v_mul_f32 v{L+i}, s38, v{L+i}")
        e(f"v_cmp_gt_i32 vcc, 0, v{R+i}")
        e("s_nop 1")
        e(f"v_cndmask_b32 v{L+i}, v{L+i}, v{W+4}, vcc")
    M = W + 5
    e(f"v_max_f32 v{M}, v{L}, v{L+1}")
    e(f"v_max3_f32 v{M}, v{L+2}, v{L+3}, v{M}")
    e(f"v_mov_b32 v{M+1}, v{M}")
    e("s_nop 1")
    e(f"v_permlane32_swap_b32 v{M}, v{M+1}")
    e(f"v_max_f32 v{M}, v{M}, v{M+1}")
    for i in range(4):
        e(f"v_sub_f32 v{L+i}, v{L+i}, v{M}")
    for i in range(4):
        e(f"v_exp_f32 v{L+i}, v{L+i}")
    e("s_nop 0")
    e(f"v_add_f32 v{M+2}, v{L}, v{L+1}")
    e(f"v_add_f32 v{M+3}, v{L+2}, v{L+3}")
    e(f"v_add_f32 v{M+2}, v{M+2}, v{M+3}")
    e(f"v_mov_b32 v{M+3}, v{M+2}")
    e("s_nop 1")
    e(f"v_permlane32_swap_b32 v{M+2}, v{M+3}")
    e(f"v_add_f32 v{M+2}, v{M+2}, v{M+3}")
    e(f"v_rcp_f32 v{M+2}, v{M+2}")
    e("s_nop 0")
    PL = W + 10; PH = W + 14
    for i in range(4):
        e(f"v_mul_f32 v{L+i}, v{L+i}, v{M+2}")
    for i in range(4):
        e(f"v_cvt_pk_bf16_f32 v{PL+i}, v{L+i}, 0")
        e(f"v_cvt_pk_bf16_f32 v{PH+i}, 0, v{L+i}")
    for i in range(4):
        v = AV + 10 * i
        for j in range(9):
            if i == 0:
                e(f"v_dot2_f32_bf16 v{AO+2*j}, v{v+j}, v{PL+i}, 0")
                e(f"v_dot2_f32_bf16 v{AO+2*j+1}, v{v+j}, v{PH+i}, 0")
            else:
                e(f"v_dot2_f32_bf16 v{AO+2*j}, v{v+j}, v{PL+i}, v{AO+2*j}")
                e(f"v_dot2_f32_bf16 v{AO+2*j+1}, v{v+j}, v{PH+i}, v{AO+2*j+1}")
    e("s_nop 2")
    e(f"v_mov_b32 v{W}, v{AO+16}")
    e(f"v_mov_b32 v{W+1}, v{AO+17}")
    e("s_nop 2")
    for d in range(8):
        e(f"v_permlane32_swap_b32 v{AO+d}, v{AO+d+8}")
    e(f"v_permlane32_swap_b32 v{AO+16}, v{W}")
    e(f"v_permlane32_swap_b32 v{AO+17}, v{W+1}")
    for d in range(8):
        e(f"v_add_f32 v{AO+d}, v{AO+d}, v{AO+d+8}")
    e(f"v_add_f32 v{AO+16}, v{AO+16}, v{W}")
    e(f"v_add_f32 v{AO+17}, v{AO+17}, v{W+1}")
    for i in range(4):
        e(f"v_cvt_pk_bf16_f32 v{OA+i}, v{AO+2*i}, v{AO+2*i+1}")
    e(f"v_cvt_pk_bf16_f32 v{OA+4}, v{AO+16}, v{AO+17}")
    e("s_mul_i32 s36, s40, 1152")
    e(f"buffer_store_dwordx4 v[{OA}:{OA+3}], v9, s[20:23], s36 offen")
    e(f"buffer_store_dword v{OA+4}, v8, s[20:23], s36 offen offset:32")
    e("s_add_u32 s40, s40, 1")
    e("s_cmp_lt_u32 s40, s42")
    e("s_cbranch_scc1 attn_a_loop")
    e.ts()
    e.ts_dump(4, 12, 0)
    e.label("attn_exit")
    e("s_endpgm")
    return 163840

def main():
    global INSTR
    INSTR = len(sys.argv) > 2 and sys.argv[2] == "instr"
    EXP.update(sys.argv[3:])
    global PFD, PLOOK
    for x in sys.argv[3:]:
        if x.startswith("pf="): PFD = int(x[3:])
        if x.startswith("pl="): PLOOK = int(x[3:])
        if x.startswith("tp="):
            global TPUB_, TPOLL_, TB11_
            TPUB_, TPOLL_, TB11_ = [int(y) for y in x[3:].split(",")]
    e = E()
    l1 = gen_proj(e)
    l2 = gen_attn(e)
    l3 = gen_out(e)
    ref = open(f"cdna_kernels/{NAME}.s.ref").read().splitlines()
    head = [l for l in ref if l.startswith(";") and "@launch" not in l and "Override" not in l and "grid=ceil" not in l]
    out = "\n".join(head) + "\n"
    out += f"; @launch kernel=main_kernel grid=(256,1,1) block=(768,1,1) lds={l2}\n"
    out += f"; @launch kernel=outp_kernel grid=(192,1,1) block=(512,1,1) lds={l3}\n"
    out += '.amdgcn_target "amdgcn-amd-amdhsa--gfx950"\n.text\n'
    out += e.text()
    out += "code_end:\n"
    out += '.section .rodata,"a"\n.p2align 6\nkd_start:\n'
    out += kd("main_kernel", 168)
    out += ".p2align 6\n" + kd("outp_kernel", 112)
    path = sys.argv[1] if len(sys.argv) > 1 else f"cdna_kernels/{NAME}.s"
    open(path, "w").write(out)

main()
```

```python
import struct, sys, math

NAME = "concat_heads__sliding_local_dilated__grouped_kv_mqa__prompt"

WS_QKVA = 0x000000
WS_QB   = 0x700000
WS_KV   = 0xA00000
WS_FLAG = 0xA80000
WS_OA   = 0xB00000
WS_OB   = 0xE00000
TILE_B  = 2432
KVIMG_B = 64 * TILE_B

def f32bits(x):
    return struct.unpack("<I", struct.pack("<f", x))[0]

CSCALE = (18 ** -0.5) * math.log2(math.e)

INSTR = False
EXP = set()
PFD = 5
PLOOK = 2
HB2_IT = 4
PARK = 106496
HB1_TT = 6
KVLEAD = 11
WARM_AT = 9
TPUB_ = 46
TPOLL_ = 50
TB11_ = 52
WS_DBG = 0x1200000
class E:
    def __init__(self):
        self.l = []
        self.nts = 0
        self.mute = False
    def ts_reset(self):
        if self.mute: return
        self.nts = 0
        if INSTR: self("s_memrealtime s[100:101]")
    def ts(self):
        if not INSTR or self.mute: return
        k = self.nts; self.nts += 1
        self(f"s_memtime s[{64+2*k}:{65+2*k}]")
    def ts_dump(self, wsreg, waves_per_wg, kid):
        if not INSTR: return
        n = self.nts
        self(f"s_memrealtime s[96:97]")
        self("s_waitcnt lgkmcnt(0)")
        self("s_mov_b64 exec, -1")
        self(f"s_add_u32 s92, s{wsreg}, {WS_DBG + kid*0x100000}")
        self(f"s_addc_u32 s93, s{wsreg+1}, 0")
        self("s_mov_b32 s94, 0x100000")
        self("s_mov_b32 s95, 0x00020000")
        self(f"s_mul_i32 s98, s2, {waves_per_wg}")
        self("s_add_u32 s98, s98, s32")
        self("s_lshl_b32 s98, s98, 6")
        self("v_mov_b32 v1, 0")
        for k in range(n):
            self(f"v_mov_b32 v2, s{64+2*k}")
            self(f"buffer_store_dword v2, v1, s[92:95], s98 offen offset:{4*k}")
        self("v_mov_b32 v2, s96")
        self(f"buffer_store_dword v2, v1, s[92:95], s98 offen offset:60")
        self("v_mov_b32 v2, s100")
        self(f"buffer_store_dword v2, v1, s[92:95], s98 offen offset:56")
    def __call__(self, s):
        self.l.append("    " + s)
    def label(self, s):
        self.l.append(s + ":")
    def c(self, s):
        self.l.append("    ; " + s)
    def text(self):
        return "\n".join(self.l) + "\n"

def srd(e, d, lo, hi, nbytes):
    e(f"s_mov_b32 s{d}, s{lo}")
    e(f"s_mov_b32 s{d+1}, s{hi}")
    e(f"s_mov_b32 s{d+2}, {nbytes}")
    e(f"s_mov_b32 s{d+3}, 0x00020000")

def srd_off(e, d, lo, hi, off, nbytes):
    e(f"s_add_u32 s{d}, s{lo}, {off}")
    e(f"s_addc_u32 s{d+1}, s{hi}, 0")
    e(f"s_mov_b32 s{d+2}, {nbytes}")
    e(f"s_mov_b32 s{d+3}, 0x00020000")

def gen_gemm(e, pfx, NT, NSLOT, special=False, cont=None):
    P = PLOOK
    XB = 16384
    SLOT = XB + NT * 4096
    NCH = 9
    XS_ = 6; XRS = 24; WRS = 16; WL = 2
    NQ = NT - 2 if special else NT
    TK = NT - 2; TV = NT - 1
    D = 4 + NQ + (8 if special else 0)
    vX = [2, 3, 4, 5]; vW = 6; vKV = 7
    vXr = [8, 9, 10, 11]; vWr = 12
    F = [16, 16 + 4 + 4 * NT]
    ACC = max(64, 16 + 2 * (4 + 4 * NT))
    e.c(f"---- gemm body {pfx} NT={NT} NSLOT={NSLOT} special={special}")
    e.ts_reset()
    e.ts()
    e("v_and_b32 v1, 63, v0")
    e("v_lshrrev_b32 v13, 6, v0")
    e("s_nop 0")
    e("v_readfirstlane_b32 s32, v13")
    e("s_nop 3")
    e("s_cmp_lt_u32 s32, 4")
    e(f"s_cbranch_scc1 {pfx}_compute")
    if cont:
        e("s_cmp_lt_u32 s32, 8")
        e(f"s_cbranch_scc1 {pfx}_loader")
        for _ in range(NCH + 1):
            e("s_barrier")
        e(f"s_branch {cont}")
        e.label(f"{pfx}_loader")
    e("s_sub_u32 s51, s32, 4")
    e("v_lshrrev_b32 v13, 3, v1")
    e("v_lshrrev_b32 v14, 4, v1")
    e("v_and_b32 v15, 7, v1")
    e("s_lshl_b32 s40, s51, 5")
    e("s_add_u32 s40, s40, s36")
    e("s_movk_i32 s41, 1152")
    for j in range(4):
        e(f"v_add_u32 v16, {4*j}, v14")
        e("v_and_b32 v16, 7, v16")
        e("v_xor_b32 v16, v16, v15")
        e("v_lshlrev_b32 v16, 4, v16")
        e(f"v_add_u32 v17, {8*j}, v13")
        e("v_add_u32 v17, s40, v17")
        e("v_mul_lo_u32 v17, v17, s41")
        e(f"v_add_u32 v{vX[j]}, v16, v17")
    e("v_lshrrev_b32 v16, 2, v1")
    e("s_lshl_b32 s40, s51, 4")
    e("v_add_u32 v16, s40, v16")
    e("v_mul_lo_u32 v16, v16, s33")
    e("v_and_b32 v17, 3, v1")
    e("v_lshlrev_b32 v17, 4, v17")
    e("v_add_u32 v16, v16, v17")
    e(f"v_add_u32 v{vW}, s37, v16")
    if special:
        e("v_add_u32 v16, s40, v14")
        e("v_mul_u32_u24 v16, 36, v16")
        e("v_and_b32 v17, 15, v1")
        e("v_min_u32 v17, 8, v17")
        e("v_lshlrev_b32 v17, 2, v17")
        e(f"v_add_u32 v{vKV}, v16, v17")
    e("s_lshl_b32 s48, s33, 6")
    e("s_mov_b32 s46, s50")
    e("s_lshl_b32 s44, s51, 12")
    e("s_lshl_b32 s45, s51, 10")
    e(f"s_add_u32 s45, s45, {XB}")

    def dma_chunk(n):
        sb = (n % NSLOT) * SLOT
        e("s_lshl_b32 s41, s46, 7")
        e("s_mul_i32 s42, s46, s48")
        if special:
            e("s_mul_i32 s43, s46, 2304")
        e("s_add_u32 s46, s46, 1")
        e(f"s_cmp_eq_u32 s46, {NCH}")
        e("s_cselect_b32 s46, 0, s46")
        if "nodma" in EXP: return
        for j in range(4):
            e(f"s_add_u32 m0, s44, {sb + j*1024}")
            e("s_nop 0")
            e(f"buffer_load_dwordx4 v{vX[j]}, s[8:11], s41 offen{' sc1' if pfx == 'og' else ''} lds")
        for t in range(NQ):
            e(f"s_add_u32 m0, s45, {sb + t*4096 - 64*t}")
            e("s_nop 0")
            e(f"buffer_load_dwordx4 v{vW}, s[12:15], s42 offen offset:{64*t} lds")
        if special:
            for (t, sr) in ((TK, 20), (TV, 24)):
                for q in range(4):
                    e(f"s_add_u32 m0, s45, {sb + t*4096 + q*256 - 144*q}")
                    e("s_nop 0")
                    e(f"buffer_load_dword v{vKV}, s[{sr}:{sr+3}], s43 offen offset:{144*q} lds")
    for n in range(P):
        dma_chunk(n)
    for c in range(NCH + 1):
        issued = min(c - 1 + P, NCH - 1)
        allowed = max(issued - c, 0)
        e(f"s_waitcnt vmcnt({allowed*D})")
        e("s_barrier")
        if c + P <= NCH - 1:
            dma_chunk(c + P)
        if NT == 2 and c == WARM_AT and "k1warm" in EXP:
            e("s_load_dwordx4 s[40:43], s[0:1], 0")
            e("s_lshr_b32 s46, s2, 3")
            e("s_lshl_b32 s46, s46, 2")
            e("s_add_u32 s46, s46, s51")
            e("v_lshlrev_b32 v13, 7, v1")
            e("s_waitcnt lgkmcnt(0)")
            e("s_mov_b32 s52, s42")
            e("s_mov_b32 s53, s43")
            e(f"s_mov_b32 s54, {576*3456}")
            e("s_mov_b32 s55, 0x00020000")
            e("s_lshl_b32 s47, s46, 13")
            for i in range(4):
                e(f"s_add_u32 s49, s47, {i*80*8192}")
                e("buffer_load_dword v14, v13, s[52:55], s49 offen")
            e("s_mov_b32 s52, s40")
            e("s_mov_b32 s53, s41")
            e(f"s_mov_b32 s54, {2048*1152}")
            e("s_and_b32 s47, s2, 7")
            e("s_mul_i32 s47, s47, 294912")
            e("s_mul_i32 s49, s46, 3712")
            e("s_add_u32 s49, s49, s47")
            e("v_min_u32 v13, 28, v1")
            e("v_lshlrev_b32 v13, 7, v13")
            e("buffer_load_dword v14, v13, s[52:55], s49 offen")
    e(f"s_branch {cont}" if cont else "s_endpgm")
    e.label(f"{pfx}_compute")
    if pfx == "pa" and "nocw" not in EXP:
        e("s_cmp_gt_u32 s2, 7")
        e("s_cbranch_scc1 pg_nocw")
        e("s_cmp_lg_u32 s32, 0")
        e("s_cbranch_scc1 pg_nocw")
        e("s_getpc_b64 s[56:57]")
        e.label("pg_cw_pc")
        e("s_add_u32 s56, s56, p1_done-pg_cw_pc")
        e("s_addc_u32 s57, s57, 0")
        e("v_lshlrev_b32 v13, 7, v1")
        for i in range(3):
            e(f"v_add_u32 v14, {i*8192}, v13")
            e("v_min_u32 v14, code_end-p1_done-4, v14")
            e("global_load_dword v2, v14, s[56:57]")
        e("s_getpc_b64 s[56:57]")
        e("s_add_u32 s56, s56, kd_start@rel32@lo+4")
        e("s_addc_u32 s57, s57, kd_start@rel32@hi+12")
        e("v_and_b32 v14, 3, v1")
        e("v_lshlrev_b32 v14, 6, v14")
        e("v_min_u32 v14, 128, v14")
        e("global_load_dword v2, v14, s[56:57]")
        e.label("pg_nocw")
    PF = PFD
    e("v_bfe_u32 v13, v1, 2, 3")
    e(f"s_mul_i32 s40, s6, {XRS}")
    e("s_add_u32 s40, s40, s36")
    e(f"s_mul_i32 s41, s32, {XRS//4}")
    e("s_add_u32 s40, s40, s41")
    e("v_add_u32 v14, s40, v13")
    e("v_mul_u32_u24 v3, 1152, v14")
    e("v_bfe_u32 v13, v1, 4, 2")
    e(f"v_min_u32 v13, {WRS//4-1}, v13")
    e(f"s_mul_i32 s40, s3, {WRS}")
    e(f"s_mul_i32 s41, s32, {WRS//4}")
    e("s_add_u32 s40, s40, s41")
    e("v_add_u32 v13, s40, v13")
    e("v_mul_lo_u32 v13, v13, s33")
    e("v_bfe_u32 v14, v1, 2, 2")
    e(f"v_min_u32 v14, {WL-1}, v14")
    e("v_lshlrev_b32 v14, 7, v14")
    e("v_add_u32 v13, v13, v14")
    e("v_add_u32 v4, s37, v13")
    e("s_lshl_b32 s48, s33, 6")
    e(f"s_movk_i32 s54, {128*P}")
    e(f"s_mul_i32 s55, s48, {P}")
    def pf():
        if "pf" not in EXP: return
        e("buffer_load_dword v2, v3, s[8:11], s54 offen")
        e("buffer_load_dword v2, v4, s[12:15], s55 offen")
        e("s_add_u32 s54, s54, 128")
        e("s_add_u32 s55, s55, s48")
    for _ in range(P, PF):
        pf()
    e("v_and_b32 v13, 31, v1")
    e("v_lshrrev_b32 v14, 5, v1")
    e("v_lshrrev_b32 v15, 1, v13")
    e("v_and_b32 v15, 7, v15")
    e("v_lshlrev_b32 v16, 7, v13")
    e("s_lshl_b32 s40, s32, 12")
    e("v_add_u32 v16, s40, v16")
    e("v_lshlrev_b32 v17, 2, v14")
    for j in range(4):
        e(f"v_add_u32 v18, {j}, v17")
        e("v_xor_b32 v18, v18, v15")
        e("v_lshlrev_b32 v18, 4, v18")
        e(f"v_add_u32 v{vXr[j]}, v16, v18")
    e("v_lshlrev_b32 v16, 11, v14")
    e("v_bfe_u32 v17, v1, 2, 2")
    e("v_lshlrev_b32 v17, 6, v17")
    e("v_add_u32 v16, v16, v17")
    e("v_bfe_u32 v17, v1, 4, 1")
    e("v_lshlrev_b32 v17, 5, v17")
    e("v_add_u32 v16, v16, v17")
    e("v_and_b32 v17, 3, v1")
    e("v_lshlrev_b32 v17, 3, v17")
    e("v_add_u32 v16, v16, v17")
    e(f"v_add_u32 v{vWr}, {XB}, v16")
    for i in range(NT * 16):
        e(f"v_mov_b32 v{ACC+i}, 0")
    e(f"s_mov_b32 s7, {SLOT}")

    def read_list(j, fb):
        b = F[fb]
        l = [f"ds_read_b128 v[{b}:{b+3}], v{vXr[j]}"]
        for t in range(NT):
            r = b + 4 + 4 * t
            l.append(f"ds_read_b64_tr_b16 v[{r}:{r+1}], v{vWr} offset:{t*4096 + j*512}")
            l.append(f"ds_read_b64_tr_b16 v[{r+2}:{r+3}], v{vWr} offset:{t*4096 + j*512 + 256}")
        if "noread" in EXP: l = []
        return l
    def mfma(fb, t):
        if "nomfma" in EXP: return
        b = F[fb]
        r = b + 4 + 4 * t
        a = ACC + 16 * t
        if special and t == TV:
            e(f"v_mfma_f32_32x32x16_bf16 v[{a}:{a+15}], v[{b}:{b+3}], v[{r}:{r+3}], v[{a}:{a+15}]")
        else:
            e(f"v_mfma_f32_32x32x16_bf16 v[{a}:{a+15}], v[{r}:{r+3}], v[{b}:{b+3}], v[{a}:{a+15}]")
    NR = 1 + 2 * NT
    def step(fb, nxt_reads, first_after=0):
        per = {}
        k = 0
        slots = list(range(first_after, NT - 1)) or [first_after]
        q = list(nxt_reads)
        chunk = -(-len(q) // min(len(slots), 3))
        issued_new = 0
        for t in range(NT):
            if first_after == 0:
                allowed = NR - (2 * t + 3) + issued_new
                e(f"s_waitcnt lgkmcnt({min(allowed, 15)})")
            mfma(fb, t)
            if t == 0 and first_after == 1:
                e("s_barrier")
            if t >= first_after - (1 if first_after == 1 else 0) and q:
                for _ in range(min(chunk, len(q))):
                    e(q.pop(0)); issued_new += 1
        assert not q
    e("s_mov_b32 s40, 0")
    e("s_mov_b32 s49, 0")
    e.ts()
    e("s_barrier")
    e.ts()
    for r in read_list(0, 0): e(r)
    e.label(f"{pfx}_loop")
    pf()
    step(0, read_list(1, 1))
    step(1, read_list(2, 0))
    step(0, read_list(3, 1))
    e("s_add_u32 s49, s49, 1")
    e(f"s_cmp_eq_u32 s49, {NSLOT}")
    e(f"s_cselect_b32 s47, {-(NSLOT-1)*SLOT}, s7")
    e("s_cselect_b32 s49, 0, s49")
    for j in range(4):
        e(f"v_add_u32 v{vXr[j]}, s47, v{vXr[j]}")
    e(f"v_add_u32 v{vWr}, s47, v{vWr}")
    e("s_add_u32 s40, s40, 1")
    e(f"s_cmp_lt_u32 s40, {NCH}")
    e("s_waitcnt lgkmcnt(0)")
    step(1, read_list(0, 0), first_after=1)
    e(f"s_cbranch_scc1 {pfx}_loop")
    e.ts()
    e("s_waitcnt vmcnt(0) lgkmcnt(0)")
    e("s_nop 15")
    e("s_nop 3")
    NTQ = NQ
    RS = 80
    TR = 32 * RS
    if pfx == "pa":
        e("v_and_b32 v13, 31, v1")
        e("v_lshrrev_b32 v14, 5, v1")
        e("v_lshlrev_b32 v15, 6, v13")
        e("v_lshlrev_b32 v16, 3, v14")
        e("v_add_u32 v15, v15, v16")
        e(f"s_mul_i32 s40, s32, {NT*2048}")
        e(f"s_add_u32 s40, s40, {PARK}")
        e("v_add_u32 v15, s40, v15")
        e("v_bfe_u32 v16, v13, 1, 2")
        e("v_lshlrev_b32 v16, 4, v16")
        for g in range(4):
            e(f"v_xor_b32 v{28+g}, {g*16}, v16")
            e(f"v_add_u32 v{28+g}, v{28+g}, v15")
        for t in range(NT):
            a = ACC + 16 * t
            for i in range(8):
                e(f"v_cvt_pk_bf16_f32 v{20+i}, v{a+2*i}, v{a+2*i+1}")
            for g in range(4):
                e(f"ds_write_b64 v{28+g}, v[{20+2*g}:{21+2*g}] offset:{t*2048}")
        e("s_waitcnt lgkmcnt(0)")
        e(f"s_branch {cont}")
        return NSLOT * SLOT

    e("v_and_b32 v13, 31, v1")
    e("v_lshrrev_b32 v14, 5, v1")
    e(f"v_mul_u32_u24 v15, {RS}, v13")
    e("v_lshlrev_b32 v16, 3, v14")
    e("v_add_u32 v15, v15, v16")
    e(f"s_mul_i32 s40, s32, {NT*TR}")
    e("v_add_u32 v15, s40, v15")
    e("v_lshrrev_b32 v16, 2, v1")
    e(f"v_mul_u32_u24 v17, {RS}, v16")
    e("v_and_b32 v18, 3, v1")
    e("v_lshlrev_b32 v18, 4, v18")
    e("v_add_u32 v17, v17, v18")
    e("v_add_u32 v17, s40, v17")
    e("s_lshl_b32 s41, s32, 5")
    e("s_add_u32 s41, s41, s36")
    e("v_add_u32 v16, s41, v16")
    e("v_mul_lo_u32 v16, v16, s34")
    e("v_add_u32 v16, v16, v18")
    e("v_add_u32 v16, s38, v16")
    e("s_lshl_b32 s42, s34, 4")
    for t in range(NTQ):
        a = ACC + 16 * t
        for i in range(8):
            e(f"v_cvt_pk_bf16_f32 v{20+i}, v{a+2*i}, v{a+2*i+1}")
        for g in range(4):
            e(f"ds_write_b64 v15, v[{20+2*g}:{21+2*g}] offset:{t*TR + g*16}")
    e("s_waitcnt lgkmcnt(0)")
    for t in range(NTQ):
        e(f"ds_read_b128 v[{20+8*t}:{23+8*t}], v17 offset:{t*TR}")
        e(f"ds_read_b128 v[{24+8*t}:{27+8*t}], v17 offset:{t*TR + 16*RS}")
    for t in range(NTQ):
        if t == NTQ - 1 and not special:
            e(f"s_cmp_lt_u32 s39, {NTQ}")
            e(f"s_cbranch_scc1 {pfx}_skiplast")
        e(f"s_waitcnt lgkmcnt({2*(NTQ-1-t)})")
        fl = " sc1" if (cont and pfx != "og") else ""
        e(f"buffer_store_dwordx4 v[{20+8*t}:{23+8*t}], v16, s[16:19], 0 offen offset:{64*t}{fl}")
        e(f"buffer_store_dwordx4 v[{24+8*t}:{27+8*t}], v16, s[16:19], s42 offen offset:{64*t}{fl}")
    if not special:
        e.label(f"{pfx}_skiplast")
    if special:
        e("s_lshr_b32 s43, s41, 5")
        e(f"s_mul_i32 s43, s43, {TILE_B}")
        a = ACC + 16 * TK
        for i in range(10):
            e(f"v_mul_f32 v{a+i}, s35, v{a+i}")
        for i in range(5):
            e(f"v_cvt_pk_bf16_f32 v{48+i}, v{a+2*i}, v{a+2*i+1}")
        e("v_lshlrev_b32 v56, 4, v13")
        e("v_lshlrev_b32 v57, 3, v14")
        e("v_add_u32 v56, v56, v57")
        e("buffer_store_dwordx2 v[48:49], v56, s[28:31], s43 offen sc1")
        e("buffer_store_dwordx2 v[50:51], v56, s[28:31], s43 offen offset:512 sc1")
        e("v_lshlrev_b32 v57, 2, v13")
        e("v_cmp_gt_u32 vcc, 32, v1")
        e("s_and_saveexec_b64 s[52:53], vcc")
        e("buffer_store_dword v52, v57, s[28:31], s43 offen offset:1024 sc1")
        e("s_mov_b64 exec, s[52:53]")
        a = ACC + 16 * TV
        for i in range(8):
            e(f"v_cvt_pk_bf16_f32 v{40+i}, v{a+2*i}, v{a+2*i+1}")
        e("v_mov_b32 v58, 0x3f803f80")
        e("v_cmp_eq_u32 vcc, 18, v13")
        e("s_nop 1")
        for i in range(8):
            e(f"v_cndmask_b32 v{40+i}, v{40+i}, v58, vcc")
        e("v_cmp_ne_u32 vcc, 19, v13")
        e("s_nop 1")
        for i in range(8):
            e(f"v_cndmask_b32 v{40+i}, 0, v{40+i}, vcc")
        e("v_lshlrev_b32 v56, 4, v13")
        e("v_mul_u32_u24 v57, 320, v14")
        e("v_add_u32 v56, v56, v57")
        e("v_cmp_gt_u32 vcc, 20, v13")
        e("s_and_saveexec_b64 s[52:53], vcc")
        e("buffer_store_dwordx4 v[40:43], v56, s[28:31], s43 offen offset:1152 sc1")
        e("buffer_store_dwordx4 v[44:47], v56, s[28:31], s43 offen offset:1792 sc1")
        e("s_mov_b64 exec, s[52:53]")
    if cont:
        e(f"s_branch {cont}")
        return NSLOT * SLOT
    e.ts()
    e("s_waitcnt vmcnt(0)") if INSTR else None
    e.ts()
    e.ts_dump(4, 8, 1)
    e("s_endpgm")
    return NSLOT * SLOT

def kd(name, vgpr, sgpr=64):
    if INSTR: sgpr = 102
    acc = (vgpr + 3) // 4 * 4
    return f""".amdhsa_kernel {name}
  .amdhsa_next_free_vgpr {vgpr}
  .amdhsa_next_free_sgpr {sgpr}
  .amdhsa_accum_offset {acc}
  .amdhsa_group_segment_fixed_size 0
  .amdhsa_kernarg_size 88
  .amdhsa_user_sgpr_count 2
  .amdhsa_user_sgpr_kernarg_segment_ptr 1
  .amdhsa_system_sgpr_workgroup_id_x 1
.end_amdhsa_kernel
"""

def header(e, name):
    e.l.append(f".globl {name}")
    e.l.append(".p2align 8")
    e.l.append(f".type {name},@function")
    e.label(name)

def stagger(e, a, b):
    if "nostag" in EXP:
        e("s_mov_b32 s50, 0"); return
    e(f"s_lshl_b32 s50, {b}, 1")
    e(f"s_add_u32 s50, s50, {a}")
    e("s_cmp_ge_u32 s50, 9")
    e("s_cselect_b32 s51, 9, 0")
    e("s_sub_u32 s50, s50, s51")

def gen_proj(e):
    header(e, "main_kernel")
    e("s_cmp_ge_u32 s2, 256")
    e("s_cbranch_scc1 attn_exit")
    e.ts_reset()
    e.ts()
    e.mute = True
    e("v_lshrrev_b32 v13, 6, v0")
    e("s_load_dwordx2 s[52:53], s[0:1], 0")
    e("s_load_dwordx2 s[54:55], s[0:1], 8")
    e("s_load_dwordx2 s[56:57], s[0:1], 24")
    e("s_load_dwordx2 s[58:59], s[0:1], 32")
    e("s_load_dwordx2 s[60:61], s[0:1], 40")
    e("s_load_dwordx2 s[62:63], s[0:1], 48")
    e("s_load_dwordx2 s[4:5], s[0:1], 80")
    e("s_and_b32 s6, s2, 7")
    e("s_lshr_b32 s7, s2, 3")
    e("s_and_b32 s3, s7, 7")
    e("s_lshr_b32 s7, s7, 3")
    e("v_readfirstlane_b32 s32, v13")
    e("s_load_dwordx2 s[50:51], s[0:1], 72")
    e("s_waitcnt lgkmcnt(0)")
    e("s_cmp_gt_u32 s2, 31")
    e("s_cbranch_scc1 p0_noclr")
    e("s_cmp_lg_u32 s32, 9")
    e("s_cbranch_scc1 p0_noclr")
    e(f"s_add_u32 s40, s4, {WS_FLAG + 8192}")
    e("s_addc_u32 s41, s5, 0")
    e("v_and_b32 v1, 63, v0")
    e("v_lshlrev_b32 v1, 3, v1")
    e("s_lshl_b32 s42, s2, 9")
    e("v_add_u32 v1, s42, v1")
    e("v_mov_b32 v2, 0")
    e("v_mov_b32 v3, 0")
    e("global_store_dwordx2 v1, v[2:3], s[40:41] sc1")
    e("s_waitcnt vmcnt(0)")
    e("v_mov_b32 v3, 1")
    e("s_mov_b64 exec, 1")
    e("global_atomic_add v2, v3, s[50:51] sc1")
    e("s_mov_b64 exec, -1")
    e.label("p0_noclr")
    e("s_lshr_b32 s7, s2, 3")
    e("s_and_b32 s3, s7, 3")
    e("s_lshr_b32 s7, s7, 2")
    e("s_lshr_b32 s40, s6, 1")
    e("s_lshl_b32 s40, s40, 2")
    e("s_add_u32 s40, s40, s3")
    e("s_and_b32 s6, s6, 1")
    e("s_sub_u32 s42, 5, s6")
    e("s_lshl_b32 s36, s40, 7")
    e("s_mov_b32 s39, 6")
    e("s_lshl_b32 s50, s3, 1")
    e("s_add_u32 s50, s50, s7")
    e("s_cmp_ge_u32 s50, 9")
    e("s_cselect_b32 s51, 9, 0")
    e("s_sub_u32 s50, s50, s51")
    e("s_cmp_ge_u32 s7, s42")
    e("s_cbranch_scc1 proj_B")
    e("s_mul_i32 s41, s6, 5")
    e("s_add_u32 s41, s41, s7")
    e("s_mov_b32 s60, 1")
    e("s_mov_b32 s61, s40")
    e("s_mov_b32 s62, s41")
    srd(e, 8, 52, 53, 2048 * 1152)
    srd(e, 12, 54, 55, 576 * 3456)
    e("s_movk_i32 s33, 3456")
    e("s_mul_i32 s37, s41, 384")
    lds = gen_gemm(e, "pa", 6, 4, cont="p1_done")
    e.label("proj_B")
    e("s_sub_u32 s41, s7, s42")
    e("s_mul_i32 s43, s6, 3")
    e("s_add_u32 s41, s41, s43")
    srd(e, 8, 56, 57, 2048 * 1152)
    srd(e, 12, 58, 59, 576 * 1152)
    srd_off(e, 16, 4, 5, WS_QB, 2048 * 1152)
    e("s_movk_i32 s33, 1152")
    e("s_movk_i32 s34, 1152")
    e(f"s_mov_b32 s35, {f32bits(CSCALE):#x}")
    e("s_mul_i32 s37, s41, 192")
    e("s_mov_b32 s38, s37")
    e("s_cmp_eq_u32 s41, 6")
    e("s_cbranch_scc1 proj_special")
    e("s_mov_b32 s60, 2")
    e("s_mov_b32 s61, s40")
    e("s_mov_b32 s62, s41")
    gen_gemm(e, "pg", 3, 5, cont="p1_done")
    e.label("proj_special")
    srd(e, 20, 60, 61, 576 * 36)
    srd(e, 24, 62, 63, 576 * 36)
    e("s_mov_b32 s60, 3")
    e("s_mov_b32 s61, s40")
    e("s_cmp_lg_u32 s32, 0")
    e("s_cbranch_scc1 ps_noclr")
    srd_off(e, 28, 4, 5, WS_FLAG, 8192)
    e("v_and_b32 v1, 63, v0")
    e("v_lshlrev_b32 v1, 2, v1")
    e("v_mov_b32 v3, 0")
    e("s_lshl_b32 s41, s40, 8")
    e("buffer_store_dword v3, v1, s[28:31], s41 offen sc1")
    e("s_add_u32 s41, s41, 4096")
    e("buffer_store_dword v3, v1, s[28:31], s41 offen sc1")
    e.label("ps_noclr")
    srd_off(e, 28, 4, 5, WS_KV, KVIMG_B)
    gen_gemm(e, "ps", 2, 6, special=True, cont="p1_done")
    e.mute = False
    return lds

def gen_out(e):
    e.label("p2_done")
    e.nts = 10
    e("s_waitcnt vmcnt(0)")
    e("s_barrier")
    e("s_cmp_lg_u32 s32, 8")
    e("s_cbranch_scc1 p2_wait")
    e(f"s_add_u32 s50, s4, {WS_FLAG + 4096}")
    e("s_addc_u32 s51, s5, 0")
    e("s_and_b32 s35, s2, 7")
    e("s_lshl_b32 s35, s35, 1")
    e("s_lshr_b32 s36, s2, 7")
    e("s_add_u32 s36, s36, s35")
    e("s_lshl_b32 s36, s36, 8")
    e("s_bfe_u32 s37, s2, 0x40003")
    e("s_lshl_b32 s37, s37, 2")
    e("s_add_u32 s36, s36, s37")
    e("v_mov_b32 v4, s36")
    e("v_mov_b32 v5, 1")
    e("s_mov_b64 exec, 1")
    e("global_store_dword v4, v5, s[50:51] sc1")
    e("s_mov_b64 exec, -1")
    e("s_cmp_ge_u32 s2, 192")
    e("s_cbranch_scc1 p2_wait")
    e("s_bfe_u32 s36, s2, 0x10004")
    e("s_add_u32 s35, s35, s36")
    e("s_lshl_b32 s35, s35, 8")
    e("v_and_b32 v4, 15, v0")
    e("v_lshlrev_b32 v4, 2, v4")
    e("v_add_u32 v4, s35, v4")
    e("s_mov_b32 s43, 0")
    e.label("p2_poll")
    e("global_load_dword v7, v4, s[50:51] sc1")
    e("s_waitcnt vmcnt(0)")
    e("v_cmp_ne_u32 vcc, 1, v7")
    e("s_add_u32 s43, s43, 1")
    e("s_cmp_eq_u64 vcc, 0")
    e("s_cbranch_scc1 p2_wait")
    e("s_sleep 4")
    e("s_cmp_lt_u32 s43, 0x10000")
    e("s_cbranch_scc1 p2_poll")
    e.label("p2_wait")
    e("s_cmp_ge_u32 s2, 192")
    e("s_cbranch_scc1 p3_done")
    e("s_load_dwordx2 s[52:53], s[0:1], 16")
    e("s_load_dwordx2 s[54:55], s[0:1], 56")
    e("s_load_dwordx2 s[56:57], s[0:1], 64")
    e("s_load_dwordx2 s[4:5], s[0:1], 80")
    e("s_and_b32 s6, s2, 7")
    e("s_lshr_b32 s7, s2, 3")
    e("s_and_b32 s3, s7, 1")
    e("s_bfe_u32 s41, s7, 0x10001")
    e("s_lshl_b32 s40, s6, 1")
    e("s_add_u32 s40, s40, s41")
    e("s_lshr_b32 s41, s7, 2")
    e("s_waitcnt lgkmcnt(0)")
    e(f"s_mov_b32 s42, {WS_OB}")
    e("s_cmp_eq_u32 s3, 0")
    e(f"s_cselect_b32 s42, {WS_OA}, s42")
    e("s_cselect_b32 s58, s52, s54")
    e("s_cselect_b32 s59, s53, s55")
    e("s_add_u32 s8, s4, s42")
    e("s_addc_u32 s9, s5, 0")
    e(f"s_mov_b32 s10, {2048*1152}")
    e("s_mov_b32 s11, 0x00020000")
    srd(e, 12, 58, 59, 576 * 1152)
    srd(e, 16, 56, 57, 2048 * 2304)
    e("s_movk_i32 s33, 1152")
    e("s_movk_i32 s34, 2304")
    e("s_mov_b32 s35, 1.0")
    e("s_lshl_b32 s36, s40, 7")
    e("s_mul_i32 s37, s41, 192")
    e("s_mul_i32 s38, s3, 1152")
    e("s_add_u32 s38, s38, s37")
    e("s_mov_b32 s39, 3")
    e("s_and_b32 s40, s40, 1")
    stagger(e, "s41", "s40")
    e("s_mov_b32 s6, s41")
    e("s_mov_b32 s3, s40")
    e("s_barrier")
    e.ts()
    e.mute = True
    lds = gen_gemm(e, "og", 3, 5, cont="p3_done")
    e.mute = False
    e.label("p3_done")
    e.ts()
    e.ts_dump(4, 12, 0)
    e.label("attn_exit")
    e("s_endpgm")
    return lds

def gen_attn(e):
    Q1 = 12; Q2 = 16; C = 20; S = [36, 52]; P = [68, 76]; O = 84
    KF = [100, 104]; K2F = [108, 112]; VF = [116, 124]
    T = 132
    SLOTB = [97280, 130048]
    SYNC = 162816
    vK1 = 4; vK2 = 5; vV = 6
    QST = KVIMG_B
    e.label("p1_done")
    e.ts()
    e("s_load_dwordx2 s[50:51], s[0:1], 72")
    e("s_cmp_lt_u32 s60, 2")
    e("s_cbranch_scc1 p1_nodrain")
    e("s_waitcnt vmcnt(0)")
    e.label("p1_nodrain")
    e("s_waitcnt lgkmcnt(0)")
    e("s_cmp_lg_u32 s32, 8")
    e("s_cbranch_scc1 p1_initok")
    e("v_mov_b32 v4, 0")
    e("s_mov_b32 s43, 0")
    e.label("p1_init")
    e("global_load_dword v7, v4, s[50:51] sc1")
    e("s_waitcnt vmcnt(0)")
    e("v_readfirstlane_b32 s35, v7")
    e("s_add_u32 s43, s43, 1")
    e("s_cmp_ge_u32 s35, 32")
    e("s_cbranch_scc1 p1_initok")
    e("s_sleep 8")
    e("s_cmp_lt_u32 s43, 0x10000")
    e("s_cbranch_scc1 p1_init")
    e.label("p1_initok")
    e("s_barrier")
    e("s_cmp_lg_u32 s32, 8")
    e("s_cbranch_scc1 p1_wait")
    e("v_mov_b32 v5, 1")
    e("v_and_b32 v1, 63, v0")
    e(f"s_add_u32 s52, s4, {WS_FLAG + 8192}")
    e("s_addc_u32 s53, s5, 0")
    e("s_cmp_lt_u32 s60, 2")
    e("s_cbranch_scc1 p1_nosig")
    e("s_mul_i32 s35, s61, 6")
    e("s_add_u32 s35, s35, s62")
    e("s_add_u32 s35, s35, 16")
    e("s_cmp_eq_u32 s60, 3")
    e("s_cselect_b32 s35, s61, s35")
    e("s_lshl_b32 s35, s35, 2")
    e("v_lshlrev_b32 v7, 9, v1")
    e("v_add_u32 v4, s35, v7")
    e("s_mov_b32 exec_hi, 0")
    e("global_store_dword v4, v5, s[52:53] sc1")
    e("s_mov_b64 exec, -1")
    e.label("p1_nosig")
    e("s_and_b32 s35, s2, 7")
    e("s_lshl_b32 s35, s35, 1")
    e("s_lshr_b32 s36, s2, 7")
    e("s_add_u32 s35, s35, s36")
    e("s_mul_i32 s35, s35, 6")
    e("v_min_u32 v4, 21, v1")
    e("v_add_u32 v6, s35, v4")
    e("v_cmp_gt_u32 vcc, 16, v4")
    e("s_lshr_b32 s36, s2, 3")
    e("s_lshl_b32 s36, s36, 9")
    e("v_cndmask_b32 v4, v6, v4, vcc")
    e("v_lshlrev_b32 v4, 2, v4")
    e("v_add_u32 v4, s36, v4")
    e("s_mov_b32 s43, 0")
    e.label("p1_poll")
    e("global_load_dword v7, v4, s[52:53] sc1")
    e("s_waitcnt vmcnt(0)")
    e("v_cmp_ne_u32 vcc, 1, v7")
    e("s_add_u32 s43, s43, 1")
    e("s_cmp_eq_u64 vcc, 0")
    e("s_cbranch_scc1 p1_wait")
    e("s_sleep 4")
    e("s_cmp_lt_u32 s43, 0x10000")
    e("s_cbranch_scc1 p1_poll")
    e.label("p1_wait")
    e("s_barrier")
    e.ts()
    e("s_load_dwordx2 s[4:5], s[0:1], 80")
    e("s_load_dwordx2 s[46:47], s[0:1], 16")
    e("s_load_dwordx2 s[48:49], s[0:1], 56")
    e("s_load_dwordx4 s[28:31], s[0:1], 0")
    e("v_and_b32 v1, 63, v0")
    e("v_lshrrev_b32 v7, 6, v0")
    e("v_and_b32 v2, 31, v1")
    e("v_readfirstlane_b32 s32, v7")
    e("v_lshrrev_b32 v3, 5, v1")
    e("s_and_b32 s3, s2, 7")
    e("s_lshl_b32 s33, s3, 8")
    e("s_lshr_b32 s6, s2, 3")
    e("s_lshl_b32 s35, s6, 3")
    e("s_add_u32 s33, s33, s35")
    e("v_lshlrev_b32 v7, 4, v1")
    e("v_mul_u32_u24 v8, 36, v2")
    e("v_lshlrev_b32 v9, 4, v3")
    e("v_add_u32 v9, v8, v9")
    e("s_waitcnt lgkmcnt(0)")
    srd_off(e, 16, 4, 5, WS_KV, KVIMG_B)
    e("s_cmp_ge_u32 s32, 8")
    e("s_cbranch_scc1 attn_helper")
    e("s_add_u32 s33, s33, s32")
    srd_off(e, 12, 4, 5, WS_QB, 2048 * 1152)
    e("s_mul_i32 s36, s33, 1152")
    e(f"buffer_load_dwordx4 v[{Q1}:{Q1+3}], v9, s[12:15], s36 offen sc1")
    e(f"buffer_load_dword v{Q2}, v8, s[12:15], s36 offen offset:32 sc1")
    srd_off(e, 24, 4, 5, WS_OB, 2048 * 1152)
    e(f"v_lshlrev_b32 v{vK1}, 4, v1")
    e(f"v_lshlrev_b32 v{vK2}, 2, v2")
    e(f"v_add_u32 v{vK2}, 1024, v{vK2}")
    e(f"v_min_u32 v{vV}, 19, v2")
    e("v_cmp_eq_u32 vcc, 22, v2")
    e("v_mov_b32 v11, 18")
    e("s_nop 0")
    e(f"v_cndmask_b32 v{vV}, v{vV}, v11, vcc")
    e(f"v_lshlrev_b32 v{vV}, 4, v{vV}")
    e("v_mul_u32_u24 v11, 320, v3")
    e(f"v_add_u32 v{vV}, v{vV}, v11")
    e(f"v_add_u32 v{vV}, 1152, v{vV}")
    e("v_cmp_gt_u32 vcc, 32, v1")
    e(f"v_mov_b32 v{Q2+1}, 0")
    e(f"v_mov_b32 v{Q2+2}, 0")
    e(f"v_mov_b32 v{Q2+3}, 0")
    e("s_mov_b32 s40, 0")
    e("s_mov_b32 s50, 0x0047ffff")
    e("s_mov_b32 s51, 0x0047ffff")
    e("s_waitcnt vmcnt(0)")
    e("s_barrier")
    e(f"v_cndmask_b32 v{Q2}, 0, v{Q2}, vcc")
    e.ts()
    MB = [36, 52, 68, 84]
    KB = [100, 108, 116, 124]
    def ld128(dst, vlds, vglb, off, src, soff="0"):
        if src == "lds": e(f"ds_read_b128 v[{dst}:{dst+3}], v{vlds} offset:{off}")
        else: e(f"buffer_load_dwordx4 v[{dst}:{dst+3}], v{vglb}, s[16:19], {soff} offen offset:{off} sc1")
    def ld32(dst, vlds, vglb, off, src, soff="0"):
        if src == "lds": e(f"ds_read_b32 v{dst}, v{vlds} offset:{off}")
        else: e(f"buffer_load_dword v{dst}, v{vglb}, s[16:19], {soff} offen offset:{off} sc1")
    def wait(n, src):
        e(f"s_waitcnt {'lgkmcnt' if src == 'lds' else 'vmcnt'}({n})")
    def maxpass(src):
        e("v_mov_b32 v10, 0xff800000")
        if src == "glb":
            e("s_mov_b32 s42, 0")
            e.label("attn_maxloop")
        for i in range(4):
            if src == "glb":
                e(f"s_add_u32 s35, s42, {i*TILE_B}")
                ld128(KB[i], 0, vK1, 0, src, "s35"); ld32(KB[i]+4, 0, vK2, 0, src, "s35")
            else:
                ld128(KB[i], vK1, 0, i*TILE_B, src); ld32(KB[i]+4, vK2, 0, i*TILE_B, src)
        for i in range(4):
            e(f"v_mov_b32 v{KB[i]+5}, 0")
        for i in range(4):
            wait(6-2*i, src)
            e(f"v_mfma_f32_32x32x16_bf16 v[{MB[i]}:{MB[i]+15}], v[{KB[i]}:{KB[i]+3}], v[{Q1}:{Q1+3}], 0")
        e("s_nop 9")
        for i in range(4):
            e(f"v_mfma_f32_32x32x8_bf16 v[{MB[i]}:{MB[i]+15}], v[{KB[i]+4}:{KB[i]+5}], v[{Q2}:{Q2+1}], v[{MB[i]}:{MB[i]+15}]")
        e("s_nop 9")
        for i in range(4):
            if i == 3:
                e("s_nop 3")
            for j in range(8):
                e(f"v_max3_f32 v10, v{MB[i]+2*j}, v{MB[i]+2*j+1}, v10")
        if src == "glb":
            e(f"s_add_u32 s42, s42, {4*TILE_B}")
            e(f"s_cmp_lt_u32 s42, {64*TILE_B}")
            e("s_cbranch_scc1 attn_maxloop")
    def prologue(src):
        e(f"v_mov_b32 v{T}, v{vK1}")
        e(f"v_mov_b32 v{T+1}, v{vK2}")
        e(f"v_mov_b32 v{T+2}, v{vV}")
        ld128(KF[0], T, vK1, 0, src); ld32(K2F[0], T+1, vK2, 0, src)
        ld128(KF[1], T, vK1, TILE_B, src); ld32(K2F[1], T+1, vK2, TILE_B, src)
        e("v_mov_b32 v11, v10")
        e("s_nop 1")
        e("v_permlane32_swap_b32 v10, v11")
        e("v_max_f32 v10, v10, v11")
        e("v_sub_f32 v10, 0, v10")
        e(f"v_cvt_pk_bf16_f32 v{C}, v10, 0")
        e(f"v_lshlrev_b32 v{C}, 16, v{C}")
        e(f"v_sub_f32 v10, v10, v{C}")
        e(f"v_cvt_pk_bf16_f32 v{C+1}, v10, 0")
        e(f"v_lshlrev_b32 v{C+1}, 16, v{C+1}")
        e(f"v_sub_f32 v10, v10, v{C+1}")
        e("v_cmp_gt_u32 vcc, 32, v1")
        e(f"v_cvt_pk_bf16_f32 v{C+2}, v{C}, v{C+1}")
        e(f"v_cvt_pk_bf16_f32 v{C+3}, v10, 0")
        e(f"v_cndmask_b32 v{Q2+1}, v{C+3}, v{C+2}, vcc")
        for b in range(2):
            e(f"v_mov_b32 v{K2F[b]+1}, 0x3f803f80")
        wait(2, src)
        e(f"v_mfma_f32_32x32x16_bf16 v[{S[0]}:{S[0]+15}], v[{KF[0]}:{KF[0]+3}], v[{Q1}:{Q1+3}], 0")
        for i in range(16):
            e(f"v_mov_b32 v{O+i}, 0")

        e(f"v_mfma_f32_32x32x8_bf16 v[{S[0]}:{S[0]+15}], v[{K2F[0]}:{K2F[0]+1}], v[{Q2}:{Q2+1}], v[{S[0]}:{S[0]+15}]")
        for i in range(8):
            e(f"v_mov_b32 v{P[1]+i}, 0")
            e(f"v_mov_b32 v{VF[1]+i}, 0")
    def tile(tt, top=None, src="lds"):
        cur = tt & 1; nxt = cur ^ 1
        wait(0, src)
        if top: top()
        if src == "lds":
            ld128(KF[cur], T, 0, (tt+2)*TILE_B, src); ld32(K2F[cur], T+1, 0, (tt+2)*TILE_B, src)
            ld128(VF[cur], T+2, 0, tt*TILE_B, src); ld128(VF[cur]+4, T+2, 0, tt*TILE_B+640, src)
        else:
            e(f"s_add_u32 s35, s42, {2*TILE_B}")
            ld128(KF[cur], 0, vK1, 0, src, "s35"); ld32(K2F[cur], 0, vK2, 0, src, "s35")
            ld128(VF[cur], 0, vV, 0, src, "s42"); ld128(VF[cur]+4, 0, vV, 640, src, "s42")
            e(f"s_add_u32 s42, s42, {TILE_B}")
        m = [f"v_mfma_f32_32x32x16_bf16 v[{S[nxt]}:{S[nxt]+15}], v[{KF[nxt]}:{KF[nxt]+3}], v[{Q1}:{Q1+3}], 0",
             f"v_mfma_f32_32x32x16_bf16 v[{O}:{O+15}], v[{VF[nxt]}:{VF[nxt]+3}], v[{P[nxt]}:{P[nxt]+3}], v[{O}:{O+15}]",
             f"v_mfma_f32_32x32x8_bf16 v[{S[nxt]}:{S[nxt]+15}], v[{K2F[nxt]}:{K2F[nxt]+1}], v[{Q2}:{Q2+1}], v[{S[nxt]}:{S[nxt]+15}]",
             f"v_mfma_f32_32x32x16_bf16 v[{O}:{O+15}], v[{VF[nxt]+4}:{VF[nxt]+7}], v[{P[nxt]+4}:{P[nxt]+7}], v[{O}:{O+15}]"]
        for g in range(4):
            e(m[g])
            for i in range(4):
                e(f"v_exp_f32 v{S[cur]+4*g+i}, v{S[cur]+4*g+i}")
            for i in range(2):
                j = 2 * g + i
                e(f"v_cvt_pk_bf16_f32 v{P[cur]+j}, v{S[cur]+2*j}, v{S[cur]+2*j+1}")
    maxpass("lds")
    prologue("lds")
    e("s_mov_b32 s42, 0")
    e.ts()
    e.label("attn_loop1")
    def topbar(it, name):
        def f():
            e(f"s_lshr_b32 s35, {1 | (1 << HB2_IT)}, s42")
            e("s_and_b32 s35, s35, 1")
            e(f"s_cbranch_scc0 {name}")
            e("s_barrier")
            e.label(name)
        return f
    for tt in range(8):
        tile(tt, topbar(0, "attn_nobar1") if tt == HB1_TT else None)
    for i in range(3):
        e(f"v_add_u32 v{T+i}, {8*TILE_B}, v{T+i}")
    e("s_add_u32 s42, s42, 1")
    e("s_cmp_lt_u32 s42, 8")
    e("s_cbranch_scc1 attn_loop1")
    e("s_branch attn_done")
    e.label("attn_restart")
    maxpass("glb")
    prologue("glb")
    e("s_mov_b32 s42, 0")
    e.label("attn_loop2")
    for tt in range(2):
        tile(tt, src="glb")
    e(f"s_cmp_lt_u32 s42, {64*TILE_B}")
    e("s_cbranch_scc1 attn_loop2")
    e("s_waitcnt vmcnt(0)")
    e.label("attn_done")
    e.ts()
    e("s_waitcnt lgkmcnt(0)")
    e(f"v_mfma_f32_32x32x16_bf16 v[{O}:{O+15}], v[{VF[1]}:{VF[1]+3}], v[{P[1]}:{P[1]+3}], v[{O}:{O+15}]")
    e(f"v_mfma_f32_32x32x16_bf16 v[{O}:{O+15}], v[{VF[1]+4}:{VF[1]+7}], v[{P[1]+4}:{P[1]+7}], v[{O}:{O+15}]")
    e("s_nop 15")
    e("s_nop 3")
    e("s_cmp_lg_u32 s40, 0")
    e("s_cbranch_scc1 attn_fin")
    e("v_mov_b32 v10, 0x71800000")
    e(f"v_cmp_nlt_f32 vcc, v{O+10}, v10")
    e("s_mov_b64 s[44:45], vcc")
    e("v_mov_b32 v10, 0x207")
    for i in range(10):
        e(f"v_cmp_class_f32 vcc, v{O+i}, v10")
        e("s_or_b64 s[44:45], s[44:45], vcc")
    e("s_cmp_eq_u64 s[44:45], 0")
    e("s_cbranch_scc1 attn_fin")
    e("s_mov_b32 s40, 1")
    e("s_branch attn_restart")
    e.label("attn_fin")
    e(f"v_rcp_f32 v10, v{O+10}")
    e("s_nop 0")
    for i in range(10):
        e(f"v_mul_f32 v{O+i}, v{O+i}, v10")
    for i in range(5):
        e(f"v_cvt_pk_bf16_f32 v{S[0]+i}, v{O+2*i}, v{O+2*i+1}")
    e("v_lshlrev_b32 v10, 3, v3")
    e("v_add_u32 v10, v8, v10")
    e(f"buffer_store_dwordx2 v[{S[0]}:{S[0]+1}], v10, s[24:27], s36 offen sc1")
    e(f"buffer_store_dwordx2 v[{S[0]+2}:{S[0]+3}], v10, s[24:27], s36 offen offset:16 sc1")
    e("v_cmp_gt_u32 vcc, 32, v1")
    e("s_and_saveexec_b64 s[44:45], vcc")
    e(f"buffer_store_dword v{S[0]+4}, v8, s[24:27], s36 offen offset:32 sc1")
    e("s_mov_b64 exec, -1")
    e.ts()
    e("s_branch p2_done")
    e.label("attn_helper")
    e.nts = 3
    if "hprio" in EXP: e("s_setprio 1")
    e("s_sub_u32 s41, s32, 8")
    e("s_lshl_b32 s34, s41, 10")
    def kvdma(i4):
        e(f"s_add_u32 m0, s34, {i4*4096}")
        e(f"s_add_u32 s35, s34, {i4*4096}")
        e("buffer_load_dwordx4 v7, s[16:19], s35 offen sc1 lds")
    for i4 in range(6):
        kvdma(i4)
    e("v_mov_b32 v4, 163832")
    e("v_mov_b32 v5, 0")
    e("ds_write_b32 v4, v5")
    e("s_waitcnt vmcnt(0) lgkmcnt(0)")
    e("s_barrier")
    e.ts()
    for i4 in range(6, 26):
        kvdma(i4)
    srd_off(e, 8, 4, 5, WS_QKVA, 2048 * 3456)
    srd_off(e, 20, 4, 5, WS_OA, 2048 * 1152)
    srd(e, 12, 46, 47, 576 * 1152)
    srd(e, 24, 48, 49, 576 * 1152)
    e("s_lshl_b32 s40, s41, 1")
    e("s_add_u32 s40, s40, s33")
    e("s_add_u32 s42, s40, 2")
    e(f"s_mov_b32 s38, {f32bits(CSCALE):#x}")
    e("s_waitcnt vmcnt(0)")
    e("s_barrier")
    e.ts()
    e("v_lshrrev_b32 v10, 2, v1")
    e("v_and_b32 v11, 3, v1")
    e("v_bfe_u32 v12, v10, 1, 2")
    e("v_xor_b32 v12, v12, v11")
    e("v_lshlrev_b32 v12, 4, v12")
    e("v_lshlrev_b32 v13, 6, v10")
    e("v_add_u32 v12, v12, v13")
    e("s_mul_i32 s39, s41, 12288")
    e(f"s_add_u32 s39, s39, {PARK}")
    e("v_add_u32 v12, s39, v12")
    for t in range(6):
        e(f"ds_read_b128 v[{20+8*t}:{23+8*t}], v12 offset:{t*2048}")
        e(f"ds_read_b128 v[{24+8*t}:{27+8*t}], v12 offset:{t*2048 + 1024}")
    e("s_lshl_b32 s35, s61, 7")
    e("s_lshl_b32 s36, s41, 5")
    e("s_add_u32 s35, s35, s36")
    e("v_add_u32 v10, s35, v10")
    e("v_mul_u32_u24 v10, 3456, v10")
    e("v_lshlrev_b32 v11, 4, v11")
    e("v_add_u32 v10, v10, v11")
    e("s_mul_i32 s35, s62, 384")
    e("v_add_u32 v10, s35, v10")
    e("s_waitcnt lgkmcnt(0)")
    for i in range(12):
        e(f"s_add_u32 m0, s39, {i*1024}")
        e(f"s_add_u32 s35, s39, {i*1024}")
        e("buffer_load_dwordx4 v7, s[16:19], s35 offen sc1 lds")
    e("s_mov_b32 s56, s8")
    e("s_mov_b32 s57, s9")
    e("s_mov_b32 s59, 0x00020000")
    e("s_cmp_eq_u32 s60, 1")
    e(f"s_cselect_b32 s58, {2048*3456}, 0")
    e(f"s_mov_b32 s36, {16*3456}")
    for t in range(6):
        e(f"buffer_store_dwordx4 v[{20+8*t}:{23+8*t}], v10, s[56:59], 0 offen offset:{64*t} sc1")
        e(f"buffer_store_dwordx4 v[{24+8*t}:{27+8*t}], v10, s[56:59], s36 offen offset:{64*t} sc1")
    e("s_waitcnt vmcnt(0)")
    e.ts()
    e(f"s_add_u32 s50, s4, {WS_FLAG}")
    e("s_addc_u32 s51, s5, 0")
    e("s_cmp_lg_u32 s60, 1")
    e("s_cbranch_scc1 attn_h_nopub")
    e("s_lshl_b32 s35, s61, 8")
    e("s_lshl_b32 s39, s62, 4")
    e("s_add_u32 s35, s35, s39")
    e("s_lshl_b32 s39, s41, 2")
    e("s_add_u32 s35, s35, s39")
    e("v_mov_b32 v10, s35")
    e("v_mov_b32 v11, 1")
    e("s_mov_b64 exec, 1")
    e("global_store_dword v10, v11, s[50:51] sc1")
    e("s_mov_b64 exec, -1")
    e.label("attn_h_nopub")
    e("s_lshl_b32 s39, s6, 2")
    e("s_add_u32 s39, s39, s41")
    e("s_mul_i32 s39, s39, 5248")
    e("v_min_u32 v24, 40, v1")
    e("v_lshlrev_b32 v24, 7, v24")
    e("buffer_load_dword v155, v24, s[12:15], s39 offen")
    e("buffer_load_dword v155, v24, s[24:27], s39 offen")
    e("s_barrier")
    e("s_setprio 1")
    e("s_sub_u32 s35, s33, 14")
    e("s_max_i32 s35, s35, 0")
    e("s_lshr_b32 s35, s35, 7")
    e("s_lshl_b32 s35, s35, 8")
    e("s_lshr_b32 s39, s33, 7")
    e("s_lshl_b32 s39, s39, 8")
    e("v_min_u32 v12, 35, v1")
    e("v_lshlrev_b32 v12, 2, v12")
    e("v_add_u32 v10, s35, v12")
    e("v_add_u32 v12, s39, v12")
    e("s_mov_b32 s43, 0")
    e.label("attn_poll")
    e("global_load_dword v11, v10, s[50:51] sc1")
    e("global_load_dword v13, v12, s[50:51] sc1")
    e("s_waitcnt vmcnt(0)")
    e("v_and_b32 v11, v11, v13")
    e("v_cmp_ne_u32 vcc, 1, v11")
    e("s_add_u32 s43, s43, 1")
    e("s_cmp_eq_u64 vcc, 0")
    e("s_cbranch_scc1 attn_pollok")
    e("s_sleep 16")
    e("s_cmp_lt_u32 s43, 0x10000")
    e("s_cbranch_scc1 attn_poll")
    e.label("attn_pollok")
    e.ts()
    e("s_sub_u32 s39, s33, 14")
    e("s_max_i32 s39, s39, 0")
    e("s_mul_i32 s43, s39, 3456")
    e("s_add_u32 s43, s43, s34")
    for i4 in range(19):
        e(f"s_add_u32 m0, s34, {i4*4096}")
        e(f"s_add_u32 s35, s43, {i4*4096}")
        e("buffer_load_dwordx4 v7, s[8:11], s35 offen sc1 lds")
    e("s_movk_i32 s53, 1152")
    e("s_waitcnt vmcnt(0)")
    e("v_mov_b32 v5, 1")
    e("s_mov_b64 exec, 1")
    e("ds_add_u32 v4, v5")
    e("s_mov_b64 exec, -1")
    e.label("attn_sb")
    e("ds_read_b32 v6, v4")
    e("s_waitcnt lgkmcnt(0)")
    e("v_readfirstlane_b32 s45, v6")
    e("s_nop 3")
    e("s_cmp_ge_u32 s45, 4")
    e("s_cbranch_scc1 attn_sbx")
    e("s_sleep 2")
    e("s_branch attn_sb")
    e.label("attn_sbx")
    e.ts()
    AQ = 20; AK = 30; AV = 70; AO = 110; OA = 128; W = 134; R = 12
    e.label("attn_a_loop")
    e("v_lshlrev_b32 v10, 3, v3")
    e("v_sub_u32 v10, s40, v10")
    for i in range(4):
        e(f"v_subrev_u32 v{R+i}, {2*i}, v10")
        e(f"v_max_i32 v11, 0, v{R+i}")
        e("v_subrev_u32 v11, s39, v11")
        e("v_mul_u32_u24 v11, 3456, v11")
        e(f"v_add3_u32 v{R+4+i}, v11, v8, s53")
    e("s_sub_u32 s35, s40, s39")
    e("s_mul_i32 s35, s35, 3456")
    e("v_add_u32 v11, s35, v8")
    def rd9(dst, va):
        for j in range(4):
            e(f"ds_read2_b32 v[{dst+2*j}:{dst+2*j+1}], v{va} offset0:{2*j} offset1:{2*j+1}")
        e(f"ds_read_b32 v{dst+8}, v{va} offset:32")
    rd9(AQ, 11)
    for i in range(4):
        rd9(AK + 10 * i, R + 4 + i)
    for i in range(4):
        e(f"v_add_u32 v{R+4+i}, 1152, v{R+4+i}")
        rd9(AV + 10 * i, R + 4 + i)
    e("s_waitcnt lgkmcnt(0)")
    L = W
    for i in range(4):
        k = AK + 10 * i
        e(f"v_dot2_f32_bf16 v{L+i}, v{AQ}, v{k}, 0")
    for j in range(1, 9):
        for i in range(4):
            k = AK + 10 * i
            e(f"v_dot2_f32_bf16 v{L+i}, v{AQ+j}, v{k+j}, v{L+i}")
    e(f"v_mov_b32 v{W+4}, 0xff800000")
    e("s_nop 2")
    for i in range(4):
        e(f"v_mul_f32 v{L+i}, s38, v{L+i}")
        e(f"v_cmp_gt_i32 vcc, 0, v{R+i}")
        e("s_nop 1")
        e(f"v_cndmask_b32 v{L+i}, v{L+i}, v{W+4}, vcc")
    M = W + 5
    e(f"v_max_f32 v{M}, v{L}, v{L+1}")
    e(f"v_max3_f32 v{M}, v{L+2}, v{L+3}, v{M}")
    e(f"v_mov_b32 v{M+1}, v{M}")
    e("s_nop 1")
    e(f"v_permlane32_swap_b32 v{M}, v{M+1}")
    e(f"v_max_f32 v{M}, v{M}, v{M+1}")
    for i in range(4):
        e(f"v_sub_f32 v{L+i}, v{L+i}, v{M}")
    for i in range(4):
        e(f"v_exp_f32 v{L+i}, v{L+i}")
    e("s_nop 0")
    e(f"v_add_f32 v{M+2}, v{L}, v{L+1}")
    e(f"v_add_f32 v{M+3}, v{L+2}, v{L+3}")
    e(f"v_add_f32 v{M+2}, v{M+2}, v{M+3}")
    e(f"v_mov_b32 v{M+3}, v{M+2}")
    e("s_nop 1")
    e(f"v_permlane32_swap_b32 v{M+2}, v{M+3}")
    e(f"v_add_f32 v{M+2}, v{M+2}, v{M+3}")
    e(f"v_rcp_f32 v{M+2}, v{M+2}")
    e("s_nop 0")
    PL = W + 10; PH = W + 14
    for i in range(4):
        e(f"v_mul_f32 v{L+i}, v{L+i}, v{M+2}")
    for i in range(4):
        e(f"v_cvt_pk_bf16_f32 v{PL+i}, v{L+i}, 0")
        e(f"v_cvt_pk_bf16_f32 v{PH+i}, 0, v{L+i}")
    for i in range(4):
        v = AV + 10 * i
        for j in range(9):
            if i == 0:
                e(f"v_dot2_f32_bf16 v{AO+2*j}, v{v+j}, v{PL+i}, 0")
                e(f"v_dot2_f32_bf16 v{AO+2*j+1}, v{v+j}, v{PH+i}, 0")
            else:
                e(f"v_dot2_f32_bf16 v{AO+2*j}, v{v+j}, v{PL+i}, v{AO+2*j}")
                e(f"v_dot2_f32_bf16 v{AO+2*j+1}, v{v+j}, v{PH+i}, v{AO+2*j+1}")
    e("s_nop 2")
    e(f"v_mov_b32 v{W}, v{AO+16}")
    e(f"v_mov_b32 v{W+1}, v{AO+17}")
    e("s_nop 2")
    for d in range(8):
        e(f"v_permlane32_swap_b32 v{AO+d}, v{AO+d+8}")
    e(f"v_permlane32_swap_b32 v{AO+16}, v{W}")
    e(f"v_permlane32_swap_b32 v{AO+17}, v{W+1}")
    for d in range(8):
        e(f"v_add_f32 v{AO+d}, v{AO+d}, v{AO+d+8}")
    e(f"v_add_f32 v{AO+16}, v{AO+16}, v{W}")
    e(f"v_add_f32 v{AO+17}, v{AO+17}, v{W+1}")
    for i in range(4):
        e(f"v_cvt_pk_bf16_f32 v{OA+i}, v{AO+2*i}, v{AO+2*i+1}")
    e(f"v_cvt_pk_bf16_f32 v{OA+4}, v{AO+16}, v{AO+17}")
    e("s_mul_i32 s36, s40, 1152")
    e(f"buffer_store_dwordx4 v[{OA}:{OA+3}], v9, s[20:23], s36 offen sc1")
    e(f"buffer_store_dword v{OA+4}, v8, s[20:23], s36 offen offset:32 sc1")
    e("s_add_u32 s40, s40, 1")
    e("s_cmp_lt_u32 s40, s42")
    e("s_cbranch_scc1 attn_a_loop")
    e.ts()
    e("s_setprio 0")
    return 163840

def main():
    global INSTR
    INSTR = len(sys.argv) > 2 and sys.argv[2] == "instr"
    EXP.update(sys.argv[3:])
    global PFD, PLOOK
    for x in sys.argv[3:]:
        if x.startswith("pf="): PFD = int(x[3:])
        if x.startswith("pl="): PLOOK = int(x[3:])
        if x.startswith("tp="):
            global TPUB_, TPOLL_, TB11_
            TPUB_, TPOLL_, TB11_ = [int(y) for y in x[3:].split(",")]
    e = E()
    l1 = gen_proj(e)
    l2 = gen_attn(e)
    l3 = gen_out(e)
    ref = open(f"cdna_kernels/{NAME}.s.ref").read().splitlines()
    head = [l for l in ref if l.startswith(";") and "@launch" not in l and "Override" not in l and "grid=ceil" not in l]
    out = "\n".join(head) + "\n"
    out += f"; @launch kernel=main_kernel grid=(256,1,1) block=(768,1,1) lds={l2}\n"
    out += '.amdgcn_target "amdgcn-amd-amdhsa--gfx950"\n.text\n'
    out += e.text()
    out += "code_end:\n"
    out += '.section .rodata,"a"\n.p2align 6\nkd_start:\n'
    out += kd("main_kernel", 168)
    path = sys.argv[1] if len(sys.argv) > 1 else f"cdna_kernels/{NAME}.s"
    open(path, "w").write(out)

main()
```

```python
import struct, sys, math

NAME = "concat_heads__sliding_local_dilated__grouped_kv_mqa__prompt"

WS_QKVA = 0x000000
WS_QB   = 0x700000
WS_KV   = 0xA00000
WS_FLAG = 0xA80000
WS_OA   = 0xB00000
WS_OB   = 0xE00000
TILE_B  = 2432
KVIMG_B = 64 * TILE_B

def f32bits(x):
    return struct.unpack("<I", struct.pack("<f", x))[0]

CSCALE = (18 ** -0.5) * math.log2(math.e)

INSTR = False
EXP = set()
PFD = 5
PLOOK = 2
PMAP = {}
HB2_IT = 4
PARK = 106496
HB1_TT = 6
KVLEAD = 11
WARM_AT = 9
TPUB_ = 46
TPOLL_ = 50
TB11_ = 52
WS_DBG = 0x1200000
class E:
    def __init__(self):
        self.l = []
        self.nts = 0
        self.mute = False
    def ts_reset(self):
        if self.mute: return
        self.nts = 0
        if INSTR: self("s_memrealtime s[100:101]")
    def ts(self):
        if not INSTR or self.mute: return
        k = self.nts; self.nts += 1
        self(f"s_memtime s[{64+2*k}:{65+2*k}]")
    def ts_dump(self, wsreg, waves_per_wg, kid):
        if not INSTR: return
        n = self.nts
        self(f"s_memrealtime s[96:97]")
        self("s_waitcnt lgkmcnt(0)")
        self("s_mov_b64 exec, -1")
        self(f"s_add_u32 s92, s{wsreg}, {WS_DBG + kid*0x100000}")
        self(f"s_addc_u32 s93, s{wsreg+1}, 0")
        self("s_mov_b32 s94, 0x100000")
        self("s_mov_b32 s95, 0x00020000")
        self(f"s_mul_i32 s98, s2, {waves_per_wg}")
        self("s_add_u32 s98, s98, s32")
        self("s_lshl_b32 s98, s98, 6")
        self("v_mov_b32 v1, 0")
        for k in range(n):
            self(f"v_mov_b32 v2, s{64+2*k}")
            self(f"buffer_store_dword v2, v1, s[92:95], s98 offen offset:{4*k}")
        self("v_mov_b32 v2, s96")
        self(f"buffer_store_dword v2, v1, s[92:95], s98 offen offset:60")
        self("v_mov_b32 v2, s100")
        self(f"buffer_store_dword v2, v1, s[92:95], s98 offen offset:56")
    def __call__(self, s):
        self.l.append("    " + s)
    def label(self, s):
        self.l.append(s + ":")
    def c(self, s):
        self.l.append("    ; " + s)
    def text(self):
        return "\n".join(self.l) + "\n"

def srd(e, d, lo, hi, nbytes):
    e(f"s_mov_b32 s{d}, s{lo}")
    e(f"s_mov_b32 s{d+1}, s{hi}")
    e(f"s_mov_b32 s{d+2}, {nbytes}")
    e(f"s_mov_b32 s{d+3}, 0x00020000")

def srd_off(e, d, lo, hi, off, nbytes):
    e(f"s_add_u32 s{d}, s{lo}, {off}")
    e(f"s_addc_u32 s{d+1}, s{hi}, 0")
    e(f"s_mov_b32 s{d+2}, {nbytes}")
    e(f"s_mov_b32 s{d+3}, 0x00020000")

def gen_gemm(e, pfx, NT, NSLOT, special=False, cont=None):
    P = PMAP.get(pfx, PLOOK)
    XB = 16384
    SLOT = XB + NT * 4096
    NCH = 9
    XS_ = 6; XRS = 24; WRS = 16; WL = 2
    NQ = NT - 2 if special else NT
    TK = NT - 2; TV = NT - 1
    D = 4 + NQ + (8 if special else 0)
    vX = [2, 3, 4, 5]; vW = 6; vKV = 7
    vXr = [8, 9, 10, 11]; vWr = 12
    F = [16, 16 + 4 + 4 * NT]
    ACC = max(64, 16 + 2 * (4 + 4 * NT))
    e.c(f"---- gemm body {pfx} NT={NT} NSLOT={NSLOT} special={special}")
    e.ts_reset()
    e.ts()
    e("v_and_b32 v1, 63, v0")
    e("v_lshrrev_b32 v13, 6, v0")
    e("s_nop 0")
    e("v_readfirstlane_b32 s32, v13")
    e("s_nop 3")
    e("s_cmp_lt_u32 s32, 4")
    e(f"s_cbranch_scc1 {pfx}_compute")
    if cont:
        e("s_cmp_lt_u32 s32, 8")
        e(f"s_cbranch_scc1 {pfx}_loader")
        for _ in range(NCH + 1):
            e("s_barrier")
        e(f"s_branch {cont}")
        e.label(f"{pfx}_loader")
    e("s_sub_u32 s51, s32, 4")
    e("v_lshrrev_b32 v13, 3, v1")
    e("v_lshrrev_b32 v14, 4, v1")
    e("v_and_b32 v15, 7, v1")
    e("s_lshl_b32 s40, s51, 5")
    e("s_add_u32 s40, s40, s36")
    e("s_movk_i32 s41, 1152")
    for j in range(4):
        e(f"v_add_u32 v16, {4*j}, v14")
        e("v_and_b32 v16, 7, v16")
        e("v_xor_b32 v16, v16, v15")
        e("v_lshlrev_b32 v16, 4, v16")
        e(f"v_add_u32 v17, {8*j}, v13")
        e("v_add_u32 v17, s40, v17")
        e("v_mul_lo_u32 v17, v17, s41")
        e(f"v_add_u32 v{vX[j]}, v16, v17")
    e("v_lshrrev_b32 v16, 2, v1")
    e("s_lshl_b32 s40, s51, 4")
    e("v_add_u32 v16, s40, v16")
    e("v_mul_lo_u32 v16, v16, s33")
    e("v_and_b32 v17, 3, v1")
    e("v_lshlrev_b32 v17, 4, v17")
    e("v_add_u32 v16, v16, v17")
    e(f"v_add_u32 v{vW}, s37, v16")
    if special:
        e("v_add_u32 v16, s40, v14")
        e("v_mul_u32_u24 v16, 36, v16")
        e("v_and_b32 v17, 15, v1")
        e("v_min_u32 v17, 8, v17")
        e("v_lshlrev_b32 v17, 2, v17")
        e(f"v_add_u32 v{vKV}, v16, v17")
    e("s_lshl_b32 s48, s33, 6")
    e("s_mov_b32 s46, s50")
    e("s_lshl_b32 s44, s51, 12")
    e("s_lshl_b32 s45, s51, 10")
    e(f"s_add_u32 s45, s45, {XB}")

    def dma_chunk(n):
        sb = (n % NSLOT) * SLOT
        e("s_lshl_b32 s41, s46, 7")
        e("s_mul_i32 s42, s46, s48")
        if special:
            e("s_mul_i32 s43, s46, 2304")
        e("s_add_u32 s46, s46, 1")
        e(f"s_cmp_eq_u32 s46, {NCH}")
        e("s_cselect_b32 s46, 0, s46")
        if "nodma" in EXP: return
        for j in range(4):
            e(f"s_add_u32 m0, s44, {sb + j*1024}")
            e("s_nop 0")
            e(f"buffer_load_dwordx4 v{vX[j]}, s[8:11], s41 offen{' sc1' if pfx == 'og' else ''} lds")
        for t in range(NQ):
            e(f"s_add_u32 m0, s45, {sb + t*4096 - 64*t}")
            e("s_nop 0")
            e(f"buffer_load_dwordx4 v{vW}, s[12:15], s42 offen offset:{64*t} lds")
        if special:
            for (t, sr) in ((TK, 20), (TV, 24)):
                for q in range(4):
                    e(f"s_add_u32 m0, s45, {sb + t*4096 + q*256 - 144*q}")
                    e("s_nop 0")
                    e(f"buffer_load_dword v{vKV}, s[{sr}:{sr+3}], s43 offen offset:{144*q} lds")
    for n in range(P):
        dma_chunk(n)
    for c in range(NCH + 1):
        issued = min(c - 1 + P, NCH - 1)
        allowed = max(issued - c, 0)
        e(f"s_waitcnt vmcnt({allowed*D})")
        e("s_barrier")
        if c + P <= NCH - 1:
            dma_chunk(c + P)
        if NT == 2 and c == WARM_AT and "k1warm" in EXP:
            e("s_load_dwordx4 s[40:43], s[0:1], 0")
            e("s_lshr_b32 s46, s2, 3")
            e("s_lshl_b32 s46, s46, 2")
            e("s_add_u32 s46, s46, s51")
            e("v_lshlrev_b32 v13, 7, v1")
            e("s_waitcnt lgkmcnt(0)")
            e("s_mov_b32 s52, s42")
            e("s_mov_b32 s53, s43")
            e(f"s_mov_b32 s54, {576*3456}")
            e("s_mov_b32 s55, 0x00020000")
            e("s_lshl_b32 s47, s46, 13")
            for i in range(4):
                e(f"s_add_u32 s49, s47, {i*80*8192}")
                e("buffer_load_dword v14, v13, s[52:55], s49 offen")
            e("s_mov_b32 s52, s40")
            e("s_mov_b32 s53, s41")
            e(f"s_mov_b32 s54, {2048*1152}")
            e("s_and_b32 s47, s2, 7")
            e("s_mul_i32 s47, s47, 294912")
            e("s_mul_i32 s49, s46, 3712")
            e("s_add_u32 s49, s49, s47")
            e("v_min_u32 v13, 28, v1")
            e("v_lshlrev_b32 v13, 7, v13")
            e("buffer_load_dword v14, v13, s[52:55], s49 offen")
    e(f"s_branch {cont}" if cont else "s_endpgm")
    e.label(f"{pfx}_compute")
    if pfx == "pa" and "nocw" not in EXP:
        e("s_cmp_gt_u32 s2, 7")
        e("s_cbranch_scc1 pg_nocw")
        e("s_cmp_lg_u32 s32, 0")
        e("s_cbranch_scc1 pg_nocw")
        e("s_getpc_b64 s[56:57]")
        e.label("pg_cw_pc")
        e("s_add_u32 s56, s56, p1_done-pg_cw_pc")
        e("s_addc_u32 s57, s57, 0")
        e("v_lshlrev_b32 v13, 7, v1")
        for i in range(3):
            e(f"v_add_u32 v14, {i*8192}, v13")
            e("v_min_u32 v14, code_end-p1_done-4, v14")
            e("global_load_dword v2, v14, s[56:57]")
        e("s_getpc_b64 s[56:57]")
        e("s_add_u32 s56, s56, kd_start@rel32@lo+4")
        e("s_addc_u32 s57, s57, kd_start@rel32@hi+12")
        e("v_and_b32 v14, 3, v1")
        e("v_lshlrev_b32 v14, 6, v14")
        e("v_min_u32 v14, 128, v14")
        e("global_load_dword v2, v14, s[56:57]")
        e.label("pg_nocw")
    PF = PFD
    e("v_bfe_u32 v13, v1, 2, 3")
    e(f"s_mul_i32 s40, s6, {XRS}")
    e("s_add_u32 s40, s40, s36")
    e(f"s_mul_i32 s41, s32, {XRS//4}")
    e("s_add_u32 s40, s40, s41")
    e("v_add_u32 v14, s40, v13")
    e("v_mul_u32_u24 v3, 1152, v14")
    e("v_bfe_u32 v13, v1, 4, 2")
    e(f"v_min_u32 v13, {WRS//4-1}, v13")
    e(f"s_mul_i32 s40, s3, {WRS}")
    e(f"s_mul_i32 s41, s32, {WRS//4}")
    e("s_add_u32 s40, s40, s41")
    e("v_add_u32 v13, s40, v13")
    e("v_mul_lo_u32 v13, v13, s33")
    e("v_bfe_u32 v14, v1, 2, 2")
    e(f"v_min_u32 v14, {WL-1}, v14")
    e("v_lshlrev_b32 v14, 7, v14")
    e("v_add_u32 v13, v13, v14")
    e("v_add_u32 v4, s37, v13")
    e("s_lshl_b32 s48, s33, 6")
    e(f"s_movk_i32 s54, {128*P}")
    e(f"s_mul_i32 s55, s48, {P}")
    def pf():
        if "pf" not in EXP: return
        e("buffer_load_dword v2, v3, s[8:11], s54 offen")
        e("buffer_load_dword v2, v4, s[12:15], s55 offen")
        e("s_add_u32 s54, s54, 128")
        e("s_add_u32 s55, s55, s48")
    for _ in range(P, PF):
        pf()
    e("v_and_b32 v13, 31, v1")
    e("v_lshrrev_b32 v14, 5, v1")
    e("v_lshrrev_b32 v15, 1, v13")
    e("v_and_b32 v15, 7, v15")
    e("v_lshlrev_b32 v16, 7, v13")
    e("s_lshl_b32 s40, s32, 12")
    e("v_add_u32 v16, s40, v16")
    e("v_lshlrev_b32 v17, 2, v14")
    for j in range(4):
        e(f"v_add_u32 v18, {j}, v17")
        e("v_xor_b32 v18, v18, v15")
        e("v_lshlrev_b32 v18, 4, v18")
        e(f"v_add_u32 v{vXr[j]}, v16, v18")
    e("v_lshlrev_b32 v16, 11, v14")
    e("v_bfe_u32 v17, v1, 2, 2")
    e("v_lshlrev_b32 v17, 6, v17")
    e("v_add_u32 v16, v16, v17")
    e("v_bfe_u32 v17, v1, 4, 1")
    e("v_lshlrev_b32 v17, 5, v17")
    e("v_add_u32 v16, v16, v17")
    e("v_and_b32 v17, 3, v1")
    e("v_lshlrev_b32 v17, 3, v17")
    e("v_add_u32 v16, v16, v17")
    e(f"v_add_u32 v{vWr}, {XB}, v16")
    for i in range(NT * 16):
        e(f"v_mov_b32 v{ACC+i}, 0")
    e(f"s_mov_b32 s7, {SLOT}")

    def read_list(j, fb):
        b = F[fb]
        l = [f"ds_read_b128 v[{b}:{b+3}], v{vXr[j]}"]
        for t in range(NT):
            r = b + 4 + 4 * t
            l.append(f"ds_read_b64_tr_b16 v[{r}:{r+1}], v{vWr} offset:{t*4096 + j*512}")
            l.append(f"ds_read_b64_tr_b16 v[{r+2}:{r+3}], v{vWr} offset:{t*4096 + j*512 + 256}")
        if "noread" in EXP: l = []
        return l
    def mfma(fb, t):
        if "nomfma" in EXP: return
        b = F[fb]
        r = b + 4 + 4 * t
        a = ACC + 16 * t
        if special and t == TV:
            e(f"v_mfma_f32_32x32x16_bf16 v[{a}:{a+15}], v[{b}:{b+3}], v[{r}:{r+3}], v[{a}:{a+15}]")
        else:
            e(f"v_mfma_f32_32x32x16_bf16 v[{a}:{a+15}], v[{r}:{r+3}], v[{b}:{b+3}], v[{a}:{a+15}]")
    NR = 1 + 2 * NT
    def step(fb, nxt_reads, first_after=0):
        per = {}
        k = 0
        slots = list(range(first_after, NT - 1)) or [first_after]
        q = list(nxt_reads)
        chunk = -(-len(q) // min(len(slots), 3))
        issued_new = 0
        for t in range(NT):
            if first_after == 0:
                allowed = NR - (2 * t + 3) + issued_new
                e(f"s_waitcnt lgkmcnt({min(allowed, 15)})")
            mfma(fb, t)
            if t == 0 and first_after == 1:
                e("s_barrier")
            if t >= first_after - (1 if first_after == 1 else 0) and q:
                for _ in range(min(chunk, len(q))):
                    e(q.pop(0)); issued_new += 1
        assert not q
    e("s_mov_b32 s40, 0")
    e("s_mov_b32 s49, 0")
    e.ts()
    e("s_barrier")
    e.ts()
    for r in read_list(0, 0): e(r)
    e.label(f"{pfx}_loop")
    pf()
    step(0, read_list(1, 1))
    step(1, read_list(2, 0))
    step(0, read_list(3, 1))
    e("s_add_u32 s49, s49, 1")
    e(f"s_cmp_eq_u32 s49, {NSLOT}")
    e(f"s_cselect_b32 s47, {-(NSLOT-1)*SLOT}, s7")
    e("s_cselect_b32 s49, 0, s49")
    for j in range(4):
        e(f"v_add_u32 v{vXr[j]}, s47, v{vXr[j]}")
    e(f"v_add_u32 v{vWr}, s47, v{vWr}")
    e("s_add_u32 s40, s40, 1")
    e(f"s_cmp_lt_u32 s40, {NCH}")
    e("s_waitcnt lgkmcnt(0)")
    step(1, read_list(0, 0), first_after=1)
    e(f"s_cbranch_scc1 {pfx}_loop")
    e.ts()
    e("s_waitcnt vmcnt(0) lgkmcnt(0)")
    e("s_nop 15")
    e("s_nop 3")
    NTQ = NQ
    RS = 80
    TR = 32 * RS
    if pfx == "pa":
        e("v_and_b32 v13, 31, v1")
        e("v_lshrrev_b32 v14, 5, v1")
        e("v_lshlrev_b32 v15, 6, v13")
        e("v_lshlrev_b32 v16, 3, v14")
        e("v_add_u32 v15, v15, v16")
        e(f"s_mul_i32 s40, s32, {NT*2048}")
        e(f"s_add_u32 s40, s40, {PARK}")
        e("v_add_u32 v15, s40, v15")
        e("v_bfe_u32 v16, v13, 1, 2")
        e("v_lshlrev_b32 v16, 4, v16")
        for g in range(4):
            e(f"v_xor_b32 v{28+g}, {g*16}, v16")
            e(f"v_add_u32 v{28+g}, v{28+g}, v15")
        for t in range(NT):
            a = ACC + 16 * t
            for i in range(8):
                e(f"v_cvt_pk_bf16_f32 v{20+i}, v{a+2*i}, v{a+2*i+1}")
            for g in range(4):
                e(f"ds_write_b64 v{28+g}, v[{20+2*g}:{21+2*g}] offset:{t*2048}")
        e("s_waitcnt lgkmcnt(0)")
        e(f"s_branch {cont}")
        return NSLOT * SLOT

    e("v_and_b32 v13, 31, v1")
    e("v_lshrrev_b32 v14, 5, v1")
    e(f"v_mul_u32_u24 v15, {RS}, v13")
    e("v_lshlrev_b32 v16, 3, v14")
    e("v_add_u32 v15, v15, v16")
    e(f"s_mul_i32 s40, s32, {NT*TR}")
    e("v_add_u32 v15, s40, v15")
    e("v_lshrrev_b32 v16, 2, v1")
    e(f"v_mul_u32_u24 v17, {RS}, v16")
    e("v_and_b32 v18, 3, v1")
    e("v_lshlrev_b32 v18, 4, v18")
    e("v_add_u32 v17, v17, v18")
    e("v_add_u32 v17, s40, v17")
    e("s_lshl_b32 s41, s32, 5")
    e("s_add_u32 s41, s41, s36")
    e("v_add_u32 v16, s41, v16")
    e("v_mul_lo_u32 v16, v16, s34")
    e("v_add_u32 v16, v16, v18")
    e("v_add_u32 v16, s38, v16")
    e("s_lshl_b32 s42, s34, 4")
    for t in range(NTQ):
        a = ACC + 16 * t
        for i in range(8):
            e(f"v_cvt_pk_bf16_f32 v{20+i}, v{a+2*i}, v{a+2*i+1}")
        for g in range(4):
            e(f"ds_write_b64 v15, v[{20+2*g}:{21+2*g}] offset:{t*TR + g*16}")
    e("s_waitcnt lgkmcnt(0)")
    for t in range(NTQ):
        e(f"ds_read_b128 v[{20+8*t}:{23+8*t}], v17 offset:{t*TR}")
        e(f"ds_read_b128 v[{24+8*t}:{27+8*t}], v17 offset:{t*TR + 16*RS}")
    for t in range(NTQ):
        if t == NTQ - 1 and not special:
            e(f"s_cmp_lt_u32 s39, {NTQ}")
            e(f"s_cbranch_scc1 {pfx}_skiplast")
        e(f"s_waitcnt lgkmcnt({2*(NTQ-1-t)})")
        fl = " sc1" if (cont and pfx != "og") else ""
        e(f"buffer_store_dwordx4 v[{20+8*t}:{23+8*t}], v16, s[16:19], 0 offen offset:{64*t}{fl}")
        e(f"buffer_store_dwordx4 v[{24+8*t}:{27+8*t}], v16, s[16:19], s42 offen offset:{64*t}{fl}")
    if not special:
        e.label(f"{pfx}_skiplast")
    if special:
        e("s_lshr_b32 s43, s41, 5")
        e(f"s_mul_i32 s43, s43, {TILE_B}")
        a = ACC + 16 * TK
        for i in range(10):
            e(f"v_mul_f32 v{a+i}, s35, v{a+i}")
        for i in range(5):
            e(f"v_cvt_pk_bf16_f32 v{48+i}, v{a+2*i}, v{a+2*i+1}")
        e("v_lshlrev_b32 v56, 4, v13")
        e("v_lshlrev_b32 v57, 3, v14")
        e("v_add_u32 v56, v56, v57")
        e("buffer_store_dwordx2 v[48:49], v56, s[28:31], s43 offen sc1")
        e("buffer_store_dwordx2 v[50:51], v56, s[28:31], s43 offen offset:512 sc1")
        e("v_lshlrev_b32 v57, 2, v13")
        e("v_cmp_gt_u32 vcc, 32, v1")
        e("s_and_saveexec_b64 s[52:53], vcc")
        e("buffer_store_dword v52, v57, s[28:31], s43 offen offset:1024 sc1")
        e("s_mov_b64 exec, s[52:53]")
        a = ACC + 16 * TV
        for i in range(8):
            e(f"v_cvt_pk_bf16_f32 v{40+i}, v{a+2*i}, v{a+2*i+1}")
        e("v_mov_b32 v58, 0x3f803f80")
        e("v_cmp_eq_u32 vcc, 18, v13")
        e("s_nop 1")
        for i in range(8):
            e(f"v_cndmask_b32 v{40+i}, v{40+i}, v58, vcc")
        e("v_cmp_ne_u32 vcc, 19, v13")
        e("s_nop 1")
        for i in range(8):
            e(f"v_cndmask_b32 v{40+i}, 0, v{40+i}, vcc")
        e("v_lshlrev_b32 v56, 4, v13")
        e("v_mul_u32_u24 v57, 320, v14")
        e("v_add_u32 v56, v56, v57")
        e("v_cmp_gt_u32 vcc, 20, v13")
        e("s_and_saveexec_b64 s[52:53], vcc")
        e("buffer_store_dwordx4 v[40:43], v56, s[28:31], s43 offen offset:1152 sc1")
        e("buffer_store_dwordx4 v[44:47], v56, s[28:31], s43 offen offset:1792 sc1")
        e("s_mov_b64 exec, s[52:53]")
    if cont:
        e(f"s_branch {cont}")
        return NSLOT * SLOT
    e.ts()
    e("s_waitcnt vmcnt(0)") if INSTR else None
    e.ts()
    e.ts_dump(4, 8, 1)
    e("s_endpgm")
    return NSLOT * SLOT

def kd(name, vgpr, sgpr=64):
    if INSTR: sgpr = 102
    acc = (vgpr + 3) // 4 * 4
    return f""".amdhsa_kernel {name}
  .amdhsa_next_free_vgpr {vgpr}
  .amdhsa_next_free_sgpr {sgpr}
  .amdhsa_accum_offset {acc}
  .amdhsa_group_segment_fixed_size 0
  .amdhsa_kernarg_size 88
  .amdhsa_user_sgpr_count 2
  .amdhsa_user_sgpr_kernarg_segment_ptr 1
  .amdhsa_system_sgpr_workgroup_id_x 1
.end_amdhsa_kernel
"""

def header(e, name):
    e.l.append(f".globl {name}")
    e.l.append(".p2align 8")
    e.l.append(f".type {name},@function")
    e.label(name)

def stagger(e, a, b):
    if "nostag" in EXP:
        e("s_mov_b32 s50, 0"); return
    e(f"s_lshl_b32 s50, {b}, 1")
    e(f"s_add_u32 s50, s50, {a}")
    e("s_cmp_ge_u32 s50, 9")
    e("s_cselect_b32 s51, 9, 0")
    e("s_sub_u32 s50, s50, s51")

def gen_proj(e):
    header(e, "main_kernel")
    e("s_cmp_ge_u32 s2, 256")
    e("s_cbranch_scc1 attn_exit")
    e.ts_reset()
    e.ts()
    e.mute = True
    e("v_lshrrev_b32 v13, 6, v0")
    e("s_load_dwordx2 s[52:53], s[0:1], 0")
    e("s_load_dwordx2 s[54:55], s[0:1], 8")
    e("s_load_dwordx2 s[56:57], s[0:1], 24")
    e("s_load_dwordx2 s[58:59], s[0:1], 32")
    e("s_load_dwordx2 s[60:61], s[0:1], 40")
    e("s_load_dwordx2 s[62:63], s[0:1], 48")
    e("s_load_dwordx2 s[4:5], s[0:1], 80")
    e("s_and_b32 s6, s2, 7")
    e("s_lshr_b32 s7, s2, 3")
    e("s_and_b32 s3, s7, 7")
    e("s_lshr_b32 s7, s7, 3")
    e("v_readfirstlane_b32 s32, v13")
    e("s_load_dwordx2 s[50:51], s[0:1], 72")
    e("s_waitcnt lgkmcnt(0)")
    e("s_cmp_gt_u32 s2, 31")
    e("s_cbranch_scc1 p0_noclr")
    e("s_cmp_lg_u32 s32, 9")
    e("s_cbranch_scc1 p0_noclr")
    e(f"s_add_u32 s40, s4, {WS_FLAG + 8192}")
    e("s_addc_u32 s41, s5, 0")
    e("v_and_b32 v1, 63, v0")
    e("v_lshlrev_b32 v1, 3, v1")
    e("s_lshl_b32 s42, s2, 9")
    e("v_add_u32 v1, s42, v1")
    e("v_mov_b32 v2, 0")
    e("v_mov_b32 v3, 0")
    e("global_store_dwordx2 v1, v[2:3], s[40:41] sc1")
    e("s_waitcnt vmcnt(0)")
    e("v_mov_b32 v3, 1")
    e("s_mov_b64 exec, 1")
    e("global_atomic_add v2, v3, s[50:51] sc1")
    e("s_mov_b64 exec, -1")
    e.label("p0_noclr")
    if "tlb" in EXP:
        e("s_cmp_lg_u32 s32, 10")
        e("s_cbranch_scc1 p0_notlb")
        e("s_load_dwordx2 s[40:41], s[0:1], 64")
        e("s_load_dwordx2 s[42:43], s[0:1], 16")
        e("s_load_dwordx2 s[44:45], s[0:1], 56")
        e("v_and_b32 v1, 63, v0")
        e("v_lshlrev_b32 v1, 18, v1")
        e("global_load_dword v2, v1, s[4:5] sc1")
        e("v_add_u32 v3, 0x1000000, v1")
        e("v_min_u32 v3, 0x1040000, v3")
        e("global_load_dword v2, v3, s[4:5] sc1")
        e(f"v_min_u32 v3, {2048*2304-4}, v1")
        e("s_waitcnt lgkmcnt(0)")
        e("global_load_dword v2, v3, s[40:41] sc1")
        e(f"v_min_u32 v3, {576*1152-4}, v1")
        e("global_load_dword v2, v3, s[42:43]")
        e("global_load_dword v2, v3, s[44:45]")
        e("s_waitcnt vmcnt(0)")
        e.label("p0_notlb")
    e("s_lshr_b32 s7, s2, 3")
    e("s_and_b32 s3, s7, 3")
    e("s_lshr_b32 s7, s7, 2")
    e("s_lshr_b32 s40, s6, 1")
    e("s_lshl_b32 s40, s40, 2")
    e("s_add_u32 s40, s40, s3")
    e("s_and_b32 s6, s6, 1")
    e("s_sub_u32 s42, 5, s6")
    e("s_lshl_b32 s36, s40, 7")
    e("s_mov_b32 s39, 6")
    e("s_lshl_b32 s50, s3, 1")
    e("s_add_u32 s50, s50, s7")
    e("s_cmp_ge_u32 s50, 9")
    e("s_cselect_b32 s51, 9, 0")
    e("s_sub_u32 s50, s50, s51")
    e("s_cmp_ge_u32 s7, s42")
    e("s_cbranch_scc1 proj_B")
    e("s_mul_i32 s41, s6, 5")
    e("s_add_u32 s41, s41, s7")
    e("s_mov_b32 s60, 1")
    e("s_mov_b32 s61, s40")
    e("s_mov_b32 s62, s41")
    srd(e, 8, 52, 53, 2048 * 1152)
    srd(e, 12, 54, 55, 576 * 3456)
    e("s_movk_i32 s33, 3456")
    e("s_mul_i32 s37, s41, 384")
    lds = gen_gemm(e, "pa", 6, 4, cont="p1_done")
    e.label("proj_B")
    e("s_sub_u32 s41, s7, s42")
    e("s_mul_i32 s43, s6, 3")
    e("s_add_u32 s41, s41, s43")
    srd(e, 8, 56, 57, 2048 * 1152)
    srd(e, 12, 58, 59, 576 * 1152)
    srd_off(e, 16, 4, 5, WS_QB, 2048 * 1152)
    e("s_movk_i32 s33, 1152")
    e("s_movk_i32 s34, 1152")
    e(f"s_mov_b32 s35, {f32bits(CSCALE):#x}")
    e("s_mul_i32 s37, s41, 192")
    e("s_mov_b32 s38, s37")
    e("s_cmp_eq_u32 s41, 6")
    e("s_cbranch_scc1 proj_special")
    e("s_mov_b32 s60, 2")
    e("s_mov_b32 s61, s40")
    e("s_mov_b32 s62, s41")
    gen_gemm(e, "pg", 3, 5, cont="p1_done")
    e.label("proj_special")
    srd(e, 20, 60, 61, 576 * 36)
    srd(e, 24, 62, 63, 576 * 36)
    e("s_mov_b32 s60, 3")
    e("s_mov_b32 s61, s40")
    e("s_cmp_lg_u32 s32, 0")
    e("s_cbranch_scc1 ps_noclr")
    srd_off(e, 28, 4, 5, WS_FLAG, 8192)
    e("v_and_b32 v1, 63, v0")
    e("v_lshlrev_b32 v1, 2, v1")
    e("v_mov_b32 v3, 0")
    e("s_lshl_b32 s41, s40, 8")
    e("buffer_store_dword v3, v1, s[28:31], s41 offen sc1")
    e("s_add_u32 s41, s41, 4096")
    e("buffer_store_dword v3, v1, s[28:31], s41 offen sc1")
    e.label("ps_noclr")
    srd_off(e, 28, 4, 5, WS_KV, KVIMG_B)
    gen_gemm(e, "ps", 2, 6, special=True, cont="p1_done")
    e.mute = False
    return lds

def gen_out(e):
    e.label("p2_done")
    e.nts = 10
    e("s_waitcnt vmcnt(0)")
    e("s_barrier")
    e("s_cmp_lg_u32 s32, 8")
    e("s_cbranch_scc1 p2_wait")
    e(f"s_add_u32 s50, s4, {WS_FLAG + 4096}")
    e("s_addc_u32 s51, s5, 0")
    e("s_and_b32 s35, s2, 7")
    e("s_lshl_b32 s35, s35, 1")
    e("s_lshr_b32 s36, s2, 7")
    e("s_add_u32 s36, s36, s35")
    e("s_lshl_b32 s36, s36, 8")
    e("s_bfe_u32 s37, s2, 0x40003")
    e("s_lshl_b32 s37, s37, 2")
    e("s_add_u32 s36, s36, s37")
    e("v_mov_b32 v4, s36")
    e("v_mov_b32 v5, 1")
    e("s_mov_b64 exec, 1")
    e("global_store_dword v4, v5, s[50:51] sc1")
    e("s_mov_b64 exec, -1")
    e("s_cmp_ge_u32 s2, 192")
    e("s_cbranch_scc1 p2_wait")
    e("s_bfe_u32 s36, s2, 0x10004")
    e("s_add_u32 s35, s35, s36")
    e("s_lshl_b32 s35, s35, 8")
    e("v_and_b32 v4, 15, v0")
    e("v_lshlrev_b32 v4, 2, v4")
    e("v_add_u32 v4, s35, v4")
    e("s_mov_b32 s43, 0")
    e.label("p2_poll")
    e("global_load_dword v7, v4, s[50:51] sc1")
    e("s_waitcnt vmcnt(0)")
    e("v_cmp_ne_u32 vcc, 1, v7")
    e("s_add_u32 s43, s43, 1")
    e("s_cmp_eq_u64 vcc, 0")
    e("s_cbranch_scc1 p2_wait")
    e("s_sleep 4")
    e("s_cmp_lt_u32 s43, 0x10000")
    e("s_cbranch_scc1 p2_poll")
    e.label("p2_wait")
    e("s_cmp_ge_u32 s2, 192")
    e("s_cbranch_scc1 p3_done")
    e("s_load_dwordx2 s[52:53], s[0:1], 16")
    e("s_load_dwordx2 s[54:55], s[0:1], 56")
    e("s_load_dwordx2 s[56:57], s[0:1], 64")
    e("s_load_dwordx2 s[4:5], s[0:1], 80")
    e("s_and_b32 s6, s2, 7")
    e("s_lshr_b32 s7, s2, 3")
    e("s_and_b32 s3, s7, 1")
    e("s_bfe_u32 s41, s7, 0x10001")
    e("s_lshl_b32 s40, s6, 1")
    e("s_add_u32 s40, s40, s41")
    e("s_lshr_b32 s41, s7, 2")
    e("s_waitcnt lgkmcnt(0)")
    e(f"s_mov_b32 s42, {WS_OB}")
    e("s_cmp_eq_u32 s3, 0")
    e(f"s_cselect_b32 s42, {WS_OA}, s42")
    e("s_cselect_b32 s58, s52, s54")
    e("s_cselect_b32 s59, s53, s55")
    e("s_add_u32 s8, s4, s42")
    e("s_addc_u32 s9, s5, 0")
    e(f"s_mov_b32 s10, {2048*1152}")
    e("s_mov_b32 s11, 0x00020000")
    srd(e, 12, 58, 59, 576 * 1152)
    srd(e, 16, 56, 57, 2048 * 2304)
    e("s_movk_i32 s33, 1152")
    e("s_movk_i32 s34, 2304")
    e("s_mov_b32 s35, 1.0")
    e("s_lshl_b32 s36, s40, 7")
    e("s_mul_i32 s37, s41, 192")
    e("s_mul_i32 s38, s3, 1152")
    e("s_add_u32 s38, s38, s37")
    e("s_mov_b32 s39, 3")
    e("s_and_b32 s40, s40, 1")
    stagger(e, "s41", "s40")
    e("s_mov_b32 s6, s41")
    e("s_mov_b32 s3, s40")
    e("s_barrier")
    e.ts()
    e.mute = True
    lds = gen_gemm(e, "og", 3, 5, cont="p3_done")
    e.mute = False
    e.label("p3_done")
    e.ts()
    e.ts_dump(4, 12, 0)
    e.label("attn_exit")
    e("s_endpgm")
    return lds

def gen_attn(e):
    Q1 = 12; Q2 = 16; C = 20; S = [36, 52]; P = [68, 76]; O = 84
    KF = [100, 104]; K2F = [108, 112]; VF = [116, 124]
    T = 132
    SLOTB = [97280, 130048]
    SYNC = 162816
    vK1 = 4; vK2 = 5; vV = 6
    QST = KVIMG_B
    e.label("p1_done")
    e.ts()
    e("s_load_dwordx2 s[50:51], s[0:1], 72")
    e("s_cmp_lt_u32 s60, 2")
    e("s_cbranch_scc1 p1_nodrain")
    e("s_waitcnt vmcnt(0)")
    e.label("p1_nodrain")
    e("s_waitcnt lgkmcnt(0)")
    e("s_cmp_lg_u32 s32, 8")
    e("s_cbranch_scc1 p1_initok")
    e("v_mov_b32 v4, 0")
    e("s_mov_b32 s43, 0")
    e.label("p1_init")
    e("global_load_dword v7, v4, s[50:51] sc1")
    e("s_waitcnt vmcnt(0)")
    e("v_readfirstlane_b32 s35, v7")
    e("s_add_u32 s43, s43, 1")
    e("s_cmp_ge_u32 s35, 32")
    e("s_cbranch_scc1 p1_initok")
    e("s_sleep 8")
    e("s_cmp_lt_u32 s43, 0x10000")
    e("s_cbranch_scc1 p1_init")
    e.label("p1_initok")
    e("s_barrier")
    e("s_cmp_lg_u32 s32, 8")
    e("s_cbranch_scc1 p1_wait")
    e("v_mov_b32 v5, 1")
    e("v_and_b32 v1, 63, v0")
    e(f"s_add_u32 s52, s4, {WS_FLAG + 8192}")
    e("s_addc_u32 s53, s5, 0")
    e("s_cmp_lt_u32 s60, 2")
    e("s_cbranch_scc1 p1_nosig")
    e("s_mul_i32 s35, s61, 6")
    e("s_add_u32 s35, s35, s62")
    e("s_add_u32 s35, s35, 16")
    e("s_cmp_eq_u32 s60, 3")
    e("s_cselect_b32 s35, s61, s35")
    e("s_lshl_b32 s35, s35, 2")
    e("v_lshlrev_b32 v7, 9, v1")
    e("v_add_u32 v4, s35, v7")
    e("s_mov_b32 exec_hi, 0")
    e("global_store_dword v4, v5, s[52:53] sc1")
    e("s_mov_b64 exec, -1")
    e.label("p1_nosig")
    e("s_and_b32 s35, s2, 7")
    e("s_lshl_b32 s35, s35, 1")
    e("s_lshr_b32 s36, s2, 7")
    e("s_add_u32 s35, s35, s36")
    e("s_mul_i32 s35, s35, 6")
    e("v_min_u32 v4, 21, v1")
    e("v_add_u32 v6, s35, v4")
    e("v_cmp_gt_u32 vcc, 16, v4")
    e("s_lshr_b32 s36, s2, 3")
    e("s_lshl_b32 s36, s36, 9")
    e("v_cndmask_b32 v4, v6, v4, vcc")
    e("v_lshlrev_b32 v4, 2, v4")
    e("v_add_u32 v4, s36, v4")
    e("s_mov_b32 s43, 0")
    e.label("p1_poll")
    e("global_load_dword v7, v4, s[52:53] sc1")
    e("s_waitcnt vmcnt(0)")
    e("v_cmp_ne_u32 vcc, 1, v7")
    e("s_add_u32 s43, s43, 1")
    e("s_cmp_eq_u64 vcc, 0")
    e("s_cbranch_scc1 p1_wait")
    e("s_sleep 4")
    e("s_cmp_lt_u32 s43, 0x10000")
    e("s_cbranch_scc1 p1_poll")
    e.label("p1_wait")
    e("s_barrier")
    e.ts()
    e("s_load_dwordx2 s[4:5], s[0:1], 80")
    e("s_load_dwordx2 s[46:47], s[0:1], 16")
    e("s_load_dwordx2 s[48:49], s[0:1], 56")
    e("s_load_dwordx4 s[28:31], s[0:1], 0")
    e("v_and_b32 v1, 63, v0")
    e("v_lshrrev_b32 v7, 6, v0")
    e("v_and_b32 v2, 31, v1")
    e("v_readfirstlane_b32 s32, v7")
    e("v_lshrrev_b32 v3, 5, v1")
    e("s_and_b32 s3, s2, 7")
    e("s_lshl_b32 s33, s3, 8")
    e("s_lshr_b32 s6, s2, 3")
    e("s_lshl_b32 s35, s6, 3")
    e("s_add_u32 s33, s33, s35")
    e("v_lshlrev_b32 v7, 4, v1")
    e("v_mul_u32_u24 v8, 36, v2")
    e("v_lshlrev_b32 v9, 4, v3")
    e("v_add_u32 v9, v8, v9")
    e("s_waitcnt lgkmcnt(0)")
    srd_off(e, 16, 4, 5, WS_KV, KVIMG_B)
    e("s_cmp_ge_u32 s32, 8")
    e("s_cbranch_scc1 attn_helper")
    e("s_add_u32 s33, s33, s32")
    srd_off(e, 12, 4, 5, WS_QB, 2048 * 1152)
    e("s_mul_i32 s36, s33, 1152")
    e(f"buffer_load_dwordx4 v[{Q1}:{Q1+3}], v9, s[12:15], s36 offen sc1")
    e(f"buffer_load_dword v{Q2}, v8, s[12:15], s36 offen offset:32 sc1")
    srd_off(e, 24, 4, 5, WS_OB, 2048 * 1152)
    e(f"v_lshlrev_b32 v{vK1}, 4, v1")
    e(f"v_lshlrev_b32 v{vK2}, 2, v2")
    e(f"v_add_u32 v{vK2}, 1024, v{vK2}")
    e(f"v_min_u32 v{vV}, 19, v2")
    e("v_cmp_eq_u32 vcc, 22, v2")
    e("v_mov_b32 v11, 18")
    e("s_nop 0")
    e(f"v_cndmask_b32 v{vV}, v{vV}, v11, vcc")
    e(f"v_lshlrev_b32 v{vV}, 4, v{vV}")
    e("v_mul_u32_u24 v11, 320, v3")
    e(f"v_add_u32 v{vV}, v{vV}, v11")
    e(f"v_add_u32 v{vV}, 1152, v{vV}")
    e("v_cmp_gt_u32 vcc, 32, v1")
    e(f"v_mov_b32 v{Q2+1}, 0")
    e(f"v_mov_b32 v{Q2+2}, 0")
    e(f"v_mov_b32 v{Q2+3}, 0")
    e("s_mov_b32 s40, 0")
    e("s_mov_b32 s50, 0x0047ffff")
    e("s_mov_b32 s51, 0x0047ffff")
    e("s_waitcnt vmcnt(0)")
    e("s_barrier")
    e(f"v_cndmask_b32 v{Q2}, 0, v{Q2}, vcc")
    e.ts()
    MB = [36, 52, 68, 84]
    KB = [100, 108, 116, 124]
    def ld128(dst, vlds, vglb, off, src, soff="0"):
        if src == "lds": e(f"ds_read_b128 v[{dst}:{dst+3}], v{vlds} offset:{off}")
        else: e(f"buffer_load_dwordx4 v[{dst}:{dst+3}], v{vglb}, s[16:19], {soff} offen offset:{off} sc1")
    def ld32(dst, vlds, vglb, off, src, soff="0"):
        if src == "lds": e(f"ds_read_b32 v{dst}, v{vlds} offset:{off}")
        else: e(f"buffer_load_dword v{dst}, v{vglb}, s[16:19], {soff} offen offset:{off} sc1")
    def wait(n, src):
        e(f"s_waitcnt {'lgkmcnt' if src == 'lds' else 'vmcnt'}({n})")
    def maxpass(src):
        e("v_mov_b32 v10, 0xff800000")
        if src == "glb":
            e("s_mov_b32 s42, 0")
            e.label("attn_maxloop")
        for i in range(4):
            if src == "glb":
                e(f"s_add_u32 s35, s42, {i*TILE_B}")
                ld128(KB[i], 0, vK1, 0, src, "s35"); ld32(KB[i]+4, 0, vK2, 0, src, "s35")
            else:
                ld128(KB[i], vK1, 0, i*TILE_B, src); ld32(KB[i]+4, vK2, 0, i*TILE_B, src)
        for i in range(4):
            e(f"v_mov_b32 v{KB[i]+5}, 0")
        for i in range(4):
            wait(6-2*i, src)
            e(f"v_mfma_f32_32x32x16_bf16 v[{MB[i]}:{MB[i]+15}], v[{KB[i]}:{KB[i]+3}], v[{Q1}:{Q1+3}], 0")
        e("s_nop 9")
        for i in range(4):
            e(f"v_mfma_f32_32x32x8_bf16 v[{MB[i]}:{MB[i]+15}], v[{KB[i]+4}:{KB[i]+5}], v[{Q2}:{Q2+1}], v[{MB[i]}:{MB[i]+15}]")
        e("s_nop 9")
        for i in range(4):
            if i == 3:
                e("s_nop 3")
            for j in range(8):
                e(f"v_max3_f32 v10, v{MB[i]+2*j}, v{MB[i]+2*j+1}, v10")
        if src == "glb":
            e(f"s_add_u32 s42, s42, {4*TILE_B}")
            e(f"s_cmp_lt_u32 s42, {64*TILE_B}")
            e("s_cbranch_scc1 attn_maxloop")
    def prologue(src):
        e(f"v_mov_b32 v{T}, v{vK1}")
        e(f"v_mov_b32 v{T+1}, v{vK2}")
        e(f"v_mov_b32 v{T+2}, v{vV}")
        ld128(KF[0], T, vK1, 0, src); ld32(K2F[0], T+1, vK2, 0, src)
        ld128(KF[1], T, vK1, TILE_B, src); ld32(K2F[1], T+1, vK2, TILE_B, src)
        e("v_mov_b32 v11, v10")
        e("s_nop 1")
        e("v_permlane32_swap_b32 v10, v11")
        e("v_max_f32 v10, v10, v11")
        e("v_sub_f32 v10, 0, v10")
        e(f"v_cvt_pk_bf16_f32 v{C}, v10, 0")
        e(f"v_lshlrev_b32 v{C}, 16, v{C}")
        e(f"v_sub_f32 v10, v10, v{C}")
        e(f"v_cvt_pk_bf16_f32 v{C+1}, v10, 0")
        e(f"v_lshlrev_b32 v{C+1}, 16, v{C+1}")
        e(f"v_sub_f32 v10, v10, v{C+1}")
        e("v_cmp_gt_u32 vcc, 32, v1")
        e(f"v_cvt_pk_bf16_f32 v{C+2}, v{C}, v{C+1}")
        e(f"v_cvt_pk_bf16_f32 v{C+3}, v10, 0")
        e(f"v_cndmask_b32 v{Q2+1}, v{C+3}, v{C+2}, vcc")
        for b in range(2):
            e(f"v_mov_b32 v{K2F[b]+1}, 0x3f803f80")
        wait(2, src)
        e(f"v_mfma_f32_32x32x16_bf16 v[{S[0]}:{S[0]+15}], v[{KF[0]}:{KF[0]+3}], v[{Q1}:{Q1+3}], 0")
        for i in range(16):
            e(f"v_mov_b32 v{O+i}, 0")

        e(f"v_mfma_f32_32x32x8_bf16 v[{S[0]}:{S[0]+15}], v[{K2F[0]}:{K2F[0]+1}], v[{Q2}:{Q2+1}], v[{S[0]}:{S[0]+15}]")
        for i in range(8):
            e(f"v_mov_b32 v{P[1]+i}, 0")
            e(f"v_mov_b32 v{VF[1]+i}, 0")
    def tile(tt, top=None, src="lds"):
        cur = tt & 1; nxt = cur ^ 1
        wait(0, src)
        if top: top()
        if src == "lds":
            ld128(KF[cur], T, 0, (tt+2)*TILE_B, src); ld32(K2F[cur], T+1, 0, (tt+2)*TILE_B, src)
            ld128(VF[cur], T+2, 0, tt*TILE_B, src); ld128(VF[cur]+4, T+2, 0, tt*TILE_B+640, src)
        else:
            e(f"s_add_u32 s35, s42, {2*TILE_B}")
            ld128(KF[cur], 0, vK1, 0, src, "s35"); ld32(K2F[cur], 0, vK2, 0, src, "s35")
            ld128(VF[cur], 0, vV, 0, src, "s42"); ld128(VF[cur]+4, 0, vV, 640, src, "s42")
            e(f"s_add_u32 s42, s42, {TILE_B}")
        m = [f"v_mfma_f32_32x32x16_bf16 v[{S[nxt]}:{S[nxt]+15}], v[{KF[nxt]}:{KF[nxt]+3}], v[{Q1}:{Q1+3}], 0",
             f"v_mfma_f32_32x32x16_bf16 v[{O}:{O+15}], v[{VF[nxt]}:{VF[nxt]+3}], v[{P[nxt]}:{P[nxt]+3}], v[{O}:{O+15}]",
             f"v_mfma_f32_32x32x8_bf16 v[{S[nxt]}:{S[nxt]+15}], v[{K2F[nxt]}:{K2F[nxt]+1}], v[{Q2}:{Q2+1}], v[{S[nxt]}:{S[nxt]+15}]",
             f"v_mfma_f32_32x32x16_bf16 v[{O}:{O+15}], v[{VF[nxt]+4}:{VF[nxt]+7}], v[{P[nxt]+4}:{P[nxt]+7}], v[{O}:{O+15}]"]
        for g in range(4):
            e(m[g])
            for i in range(4):
                e(f"v_exp_f32 v{S[cur]+4*g+i}, v{S[cur]+4*g+i}")
            for i in range(2):
                j = 2 * g + i
                e(f"v_cvt_pk_bf16_f32 v{P[cur]+j}, v{S[cur]+2*j}, v{S[cur]+2*j+1}")
    maxpass("lds")
    prologue("lds")
    e("s_mov_b32 s42, 0")
    e.ts()
    e.label("attn_loop1")
    def topbar(it, name):
        def f():
            e(f"s_lshr_b32 s35, {1 | (1 << HB2_IT)}, s42")
            e("s_and_b32 s35, s35, 1")
            e(f"s_cbranch_scc0 {name}")
            e("s_barrier")
            e.label(name)
        return f
    for tt in range(8):
        tile(tt, topbar(0, "attn_nobar1") if tt == HB1_TT else None)
    for i in range(3):
        e(f"v_add_u32 v{T+i}, {8*TILE_B}, v{T+i}")
    e("s_add_u32 s42, s42, 1")
    e("s_cmp_lt_u32 s42, 8")
    e("s_cbranch_scc1 attn_loop1")
    e("s_branch attn_done")
    e.label("attn_restart")
    maxpass("glb")
    prologue("glb")
    e("s_mov_b32 s42, 0")
    e.label("attn_loop2")
    for tt in range(2):
        tile(tt, src="glb")
    e(f"s_cmp_lt_u32 s42, {64*TILE_B}")
    e("s_cbranch_scc1 attn_loop2")
    e("s_waitcnt vmcnt(0)")
    e.label("attn_done")
    e.ts()
    e("s_waitcnt lgkmcnt(0)")
    e(f"v_mfma_f32_32x32x16_bf16 v[{O}:{O+15}], v[{VF[1]}:{VF[1]+3}], v[{P[1]}:{P[1]+3}], v[{O}:{O+15}]")
    e(f"v_mfma_f32_32x32x16_bf16 v[{O}:{O+15}], v[{VF[1]+4}:{VF[1]+7}], v[{P[1]+4}:{P[1]+7}], v[{O}:{O+15}]")
    e("s_nop 15")
    e("s_nop 3")
    e("s_cmp_lg_u32 s40, 0")
    e("s_cbranch_scc1 attn_fin")
    e("v_mov_b32 v10, 0x71800000")
    e(f"v_cmp_nlt_f32 vcc, v{O+10}, v10")
    e("s_mov_b64 s[44:45], vcc")
    e("v_mov_b32 v10, 0x207")
    for i in range(10):
        e(f"v_cmp_class_f32 vcc, v{O+i}, v10")
        e("s_or_b64 s[44:45], s[44:45], vcc")
    e("s_cmp_eq_u64 s[44:45], 0")
    e("s_cbranch_scc1 attn_fin")
    e("s_mov_b32 s40, 1")
    e("s_branch attn_restart")
    e.label("attn_fin")
    e(f"v_rcp_f32 v10, v{O+10}")
    e("s_nop 0")
    for i in range(10):
        e(f"v_mul_f32 v{O+i}, v{O+i}, v10")
    for i in range(5):
        e(f"v_cvt_pk_bf16_f32 v{S[0]+i}, v{O+2*i}, v{O+2*i+1}")
    e("s_nop 1")
    e(f"v_permlane32_swap_b32 v{S[0]}, v{S[0]+2}")
    e(f"v_permlane32_swap_b32 v{S[0]+1}, v{S[0]+3}")
    e(f"buffer_store_dwordx4 v[{S[0]}:{S[0]+3}], v9, s[24:27], s36 offen sc1")
    e("v_cmp_gt_u32 vcc, 32, v1")
    e("s_and_saveexec_b64 s[44:45], vcc")
    e(f"buffer_store_dword v{S[0]+4}, v8, s[24:27], s36 offen offset:32 sc1")
    e("s_mov_b64 exec, -1")
    e.ts()
    e("s_branch p2_done")
    e.label("attn_helper")
    e.nts = 3
    if "hprio" in EXP: e("s_setprio 1")
    e("s_sub_u32 s41, s32, 8")
    e("s_lshl_b32 s34, s41, 10")
    def kvdma(i4):
        e(f"s_add_u32 m0, s34, {i4*4096}")
        e(f"s_add_u32 s35, s34, {i4*4096}")
        e("buffer_load_dwordx4 v7, s[16:19], s35 offen sc1 lds")
    for i4 in range(6):
        kvdma(i4)
    e("v_mov_b32 v4, 163832")
    e("v_mov_b32 v5, 0")
    e("ds_write_b32 v4, v5")
    e("s_waitcnt vmcnt(0) lgkmcnt(0)")
    e("s_barrier")
    e.ts()
    for i4 in range(6, 26):
        kvdma(i4)
    srd_off(e, 8, 4, 5, WS_QKVA, 2048 * 3456)
    srd_off(e, 20, 4, 5, WS_OA, 2048 * 1152)
    srd(e, 12, 46, 47, 576 * 1152)
    srd(e, 24, 48, 49, 576 * 1152)
    e("s_lshl_b32 s40, s41, 1")
    e("s_add_u32 s40, s40, s33")
    e("s_add_u32 s42, s40, 2")
    e(f"s_mov_b32 s38, {f32bits(CSCALE):#x}")
    e("s_waitcnt vmcnt(0)")
    e("s_barrier")
    e.ts()
    e("v_lshrrev_b32 v10, 2, v1")
    e("v_and_b32 v11, 3, v1")
    e("v_bfe_u32 v12, v10, 1, 2")
    e("v_xor_b32 v12, v12, v11")
    e("v_lshlrev_b32 v12, 4, v12")
    e("v_lshlrev_b32 v13, 6, v10")
    e("v_add_u32 v12, v12, v13")
    e("s_mul_i32 s39, s41, 12288")
    e(f"s_add_u32 s39, s39, {PARK}")
    e("v_add_u32 v12, s39, v12")
    for t in range(6):
        e(f"ds_read_b128 v[{20+8*t}:{23+8*t}], v12 offset:{t*2048}")
        e(f"ds_read_b128 v[{24+8*t}:{27+8*t}], v12 offset:{t*2048 + 1024}")
    e("s_lshl_b32 s35, s61, 7")
    e("s_lshl_b32 s36, s41, 5")
    e("s_add_u32 s35, s35, s36")
    e("v_add_u32 v10, s35, v10")
    e("v_mul_u32_u24 v10, 3456, v10")
    e("v_lshlrev_b32 v11, 4, v11")
    e("v_add_u32 v10, v10, v11")
    e("s_mul_i32 s35, s62, 384")
    e("v_add_u32 v10, s35, v10")
    e("s_waitcnt lgkmcnt(0)")
    for i in range(12):
        e(f"s_add_u32 m0, s39, {i*1024}")
        e(f"s_add_u32 s35, s39, {i*1024}")
        e("buffer_load_dwordx4 v7, s[16:19], s35 offen sc1 lds")
    e("s_mov_b32 s56, s8")
    e("s_mov_b32 s57, s9")
    e("s_mov_b32 s59, 0x00020000")
    e("s_cmp_eq_u32 s60, 1")
    e(f"s_cselect_b32 s58, {2048*3456}, 0")
    e(f"s_mov_b32 s36, {16*3456}")
    for t in range(6):
        e(f"buffer_store_dwordx4 v[{20+8*t}:{23+8*t}], v10, s[56:59], 0 offen offset:{64*t} sc1")
        e(f"buffer_store_dwordx4 v[{24+8*t}:{27+8*t}], v10, s[56:59], s36 offen offset:{64*t} sc1")
    e("s_waitcnt vmcnt(0)")
    e.ts()
    e(f"s_add_u32 s50, s4, {WS_FLAG}")
    e("s_addc_u32 s51, s5, 0")
    e("s_cmp_lg_u32 s60, 1")
    e("s_cbranch_scc1 attn_h_nopub")
    e("s_lshl_b32 s35, s61, 8")
    e("s_lshl_b32 s39, s62, 4")
    e("s_add_u32 s35, s35, s39")
    e("s_lshl_b32 s39, s41, 2")
    e("s_add_u32 s35, s35, s39")
    e("v_mov_b32 v10, s35")
    e("v_mov_b32 v11, 1")
    e("s_mov_b64 exec, 1")
    e("global_store_dword v10, v11, s[50:51] sc1")
    e("s_mov_b64 exec, -1")
    e.label("attn_h_nopub")
    e("s_lshl_b32 s39, s6, 2")
    e("s_add_u32 s39, s39, s41")
    e("s_mul_i32 s39, s39, 5248")
    e("v_min_u32 v24, 40, v1")
    e("v_lshlrev_b32 v24, 7, v24")
    e("buffer_load_dword v155, v24, s[12:15], s39 offen")
    e("buffer_load_dword v155, v24, s[24:27], s39 offen")
    e("s_barrier")
    if "nohp" not in EXP: e("s_setprio 1")
    e("s_sub_u32 s35, s33, 14")
    e("s_max_i32 s35, s35, 0")
    e("s_lshr_b32 s35, s35, 7")
    e("s_lshl_b32 s35, s35, 8")
    e("s_lshr_b32 s39, s33, 7")
    e("s_lshl_b32 s39, s39, 8")
    e("v_min_u32 v12, 35, v1")
    e("v_lshlrev_b32 v12, 2, v12")
    e("v_add_u32 v10, s35, v12")
    e("v_add_u32 v12, s39, v12")
    e("s_mov_b32 s43, 0")
    e.label("attn_poll")
    e("global_load_dword v11, v10, s[50:51] sc1")
    e("global_load_dword v13, v12, s[50:51] sc1")
    e("s_waitcnt vmcnt(0)")
    e("v_and_b32 v11, v11, v13")
    e("v_cmp_ne_u32 vcc, 1, v11")
    e("s_add_u32 s43, s43, 1")
    e("s_cmp_eq_u64 vcc, 0")
    e("s_cbranch_scc1 attn_pollok")
    e("s_sleep 16")
    e("s_cmp_lt_u32 s43, 0x10000")
    e("s_cbranch_scc1 attn_poll")
    e.label("attn_pollok")
    e.ts()
    e("s_sub_u32 s39, s33, 14")
    e("s_max_i32 s39, s39, 0")
    e("s_mul_i32 s43, s39, 3456")
    e("s_add_u32 s43, s43, s34")
    for i4 in range(19):
        e(f"s_add_u32 m0, s34, {i4*4096}")
        e(f"s_add_u32 s35, s43, {i4*4096}")
        e("buffer_load_dwordx4 v7, s[8:11], s35 offen sc1 lds")
    e("s_movk_i32 s53, 1152")
    e("s_waitcnt vmcnt(0)")
    e("v_mov_b32 v5, 1")
    e("s_mov_b64 exec, 1")
    e("ds_add_u32 v4, v5")
    e("s_mov_b64 exec, -1")
    e.label("attn_sb")
    e("ds_read_b32 v6, v4")
    e("s_waitcnt lgkmcnt(0)")
    e("v_readfirstlane_b32 s45, v6")
    e("s_nop 3")
    e("s_cmp_ge_u32 s45, 4")
    e("s_cbranch_scc1 attn_sbx")
    e("s_sleep 2")
    e("s_branch attn_sb")
    e.label("attn_sbx")
    e.ts()
    AQ = 20; AK = 30; AV = 70; AO = 110; OA = 128; W = 134; R = 12
    e.label("attn_a_loop")
    e("v_lshlrev_b32 v10, 3, v3")
    e("v_sub_u32 v10, s40, v10")
    for i in range(4):
        e(f"v_subrev_u32 v{R+i}, {2*i}, v10")
        e(f"v_max_i32 v11, 0, v{R+i}")
        e("v_subrev_u32 v11, s39, v11")
        e("v_mul_u32_u24 v11, 3456, v11")
        e(f"v_add3_u32 v{R+4+i}, v11, v8, s53")
    e("s_sub_u32 s35, s40, s39")
    e("s_mul_i32 s35, s35, 3456")
    e("v_add_u32 v11, s35, v8")
    def rd9(dst, va):
        for j in range(4):
            e(f"ds_read2_b32 v[{dst+2*j}:{dst+2*j+1}], v{va} offset0:{2*j} offset1:{2*j+1}")
        e(f"ds_read_b32 v{dst+8}, v{va} offset:32")
    rd9(AQ, 11)
    for i in range(4):
        rd9(AK + 10 * i, R + 4 + i)
    for i in range(4):
        e(f"v_add_u32 v{R+4+i}, 1152, v{R+4+i}")
        rd9(AV + 10 * i, R + 4 + i)
    e("s_waitcnt lgkmcnt(0)")
    L = W
    for i in range(4):
        k = AK + 10 * i
        e(f"v_dot2_f32_bf16 v{L+i}, v{AQ}, v{k}, 0")
    for j in range(1, 9):
        for i in range(4):
            k = AK + 10 * i
            e(f"v_dot2_f32_bf16 v{L+i}, v{AQ+j}, v{k+j}, v{L+i}")
    e(f"v_mov_b32 v{W+4}, 0xff800000")
    e("s_nop 2")
    for i in range(4):
        e(f"v_mul_f32 v{L+i}, s38, v{L+i}")
        e(f"v_cmp_gt_i32 vcc, 0, v{R+i}")
        e("s_nop 1")
        e(f"v_cndmask_b32 v{L+i}, v{L+i}, v{W+4}, vcc")
    M = W + 5
    e(f"v_max_f32 v{M}, v{L}, v{L+1}")
    e(f"v_max3_f32 v{M}, v{L+2}, v{L+3}, v{M}")
    e(f"v_mov_b32 v{M+1}, v{M}")
    e("s_nop 1")
    e(f"v_permlane32_swap_b32 v{M}, v{M+1}")
    e(f"v_max_f32 v{M}, v{M}, v{M+1}")
    for i in range(4):
        e(f"v_sub_f32 v{L+i}, v{L+i}, v{M}")
    for i in range(4):
        e(f"v_exp_f32 v{L+i}, v{L+i}")
    e("s_nop 0")
    e(f"v_add_f32 v{M+2}, v{L}, v{L+1}")
    e(f"v_add_f32 v{M+3}, v{L+2}, v{L+3}")
    e(f"v_add_f32 v{M+2}, v{M+2}, v{M+3}")
    e(f"v_mov_b32 v{M+3}, v{M+2}")
    e("s_nop 1")
    e(f"v_permlane32_swap_b32 v{M+2}, v{M+3}")
    e(f"v_add_f32 v{M+2}, v{M+2}, v{M+3}")
    e(f"v_rcp_f32 v{M+2}, v{M+2}")
    e("s_nop 0")
    PL = W + 10; PH = W + 14
    for i in range(4):
        e(f"v_mul_f32 v{L+i}, v{L+i}, v{M+2}")
    for i in range(4):
        e(f"v_cvt_pk_bf16_f32 v{PL+i}, v{L+i}, 0")
        e(f"v_cvt_pk_bf16_f32 v{PH+i}, 0, v{L+i}")
    for i in range(4):
        v = AV + 10 * i
        for j in range(9):
            if i == 0:
                e(f"v_dot2_f32_bf16 v{AO+2*j}, v{v+j}, v{PL+i}, 0")
                e(f"v_dot2_f32_bf16 v{AO+2*j+1}, v{v+j}, v{PH+i}, 0")
            else:
                e(f"v_dot2_f32_bf16 v{AO+2*j}, v{v+j}, v{PL+i}, v{AO+2*j}")
                e(f"v_dot2_f32_bf16 v{AO+2*j+1}, v{v+j}, v{PH+i}, v{AO+2*j+1}")
    e("s_nop 2")
    e(f"v_mov_b32 v{W}, v{AO+16}")
    e(f"v_mov_b32 v{W+1}, v{AO+17}")
    e("s_nop 2")
    for d in range(8):
        e(f"v_permlane32_swap_b32 v{AO+d}, v{AO+d+8}")
    e(f"v_permlane32_swap_b32 v{AO+16}, v{W}")
    e(f"v_permlane32_swap_b32 v{AO+17}, v{W+1}")
    for d in range(8):
        e(f"v_add_f32 v{AO+d}, v{AO+d}, v{AO+d+8}")
    e(f"v_add_f32 v{AO+16}, v{AO+16}, v{W}")
    e(f"v_add_f32 v{AO+17}, v{AO+17}, v{W+1}")
    for i in range(4):
        e(f"v_cvt_pk_bf16_f32 v{OA+i}, v{AO+2*i}, v{AO+2*i+1}")
    e(f"v_cvt_pk_bf16_f32 v{OA+4}, v{AO+16}, v{AO+17}")
    e("s_mul_i32 s36, s40, 1152")
    e(f"buffer_store_dwordx4 v[{OA}:{OA+3}], v9, s[20:23], s36 offen sc1")
    e(f"buffer_store_dword v{OA+4}, v8, s[20:23], s36 offen offset:32 sc1")
    e("s_add_u32 s40, s40, 1")
    e("s_cmp_lt_u32 s40, s42")
    e("s_cbranch_scc1 attn_a_loop")
    e.ts()
    e("s_setprio 0")
    return 163840

def main():
    global INSTR
    INSTR = len(sys.argv) > 2 and sys.argv[2] == "instr"
    EXP.update(sys.argv[3:])
    global PFD, PLOOK
    for x in sys.argv[3:]:
        if x.startswith("pf="): PFD = int(x[3:])
        if x.startswith("pl="): PLOOK = int(x[3:])
        if x.startswith("pm="): PMAP[x[3:5]] = int(x[5:])
        if x.startswith("tp="):
            global TPUB_, TPOLL_, TB11_
            TPUB_, TPOLL_, TB11_ = [int(y) for y in x[3:].split(",")]
    e = E()
    l1 = gen_proj(e)
    l2 = gen_attn(e)
    l3 = gen_out(e)
    ref = open(f"cdna_kernels/{NAME}.s.ref").read().splitlines()
    head = [l for l in ref if l.startswith(";") and "@launch" not in l and "Override" not in l and "grid=ceil" not in l]
    out = "\n".join(head) + "\n"
    out += f"; @launch kernel=main_kernel grid=(256,1,1) block=(768,1,1) lds={l2}\n"
    out += '.amdgcn_target "amdgcn-amd-amdhsa--gfx950"\n.text\n'
    out += e.text()
    out += "code_end:\n"
    out += '.section .rodata,"a"\n.p2align 6\nkd_start:\n'
    out += kd("main_kernel", 168)
    path = sys.argv[1] if len(sys.argv) > 1 else f"cdna_kernels/{NAME}.s"
    open(path, "w").write(out)

main()
```

```python
import struct, sys, math

NAME = "concat_heads__sliding_local_dilated__grouped_kv_mqa__prompt"

WS_QKVA = 0x000000
WS_QB   = 0x700000
WS_KV   = 0xA00000
WS_FLAG = 0xA80000
WS_OA   = 0xB00000
WS_OB   = 0xE00000
TILE_B  = 2432
KVIMG_B = 64 * TILE_B

def f32bits(x):
    return struct.unpack("<I", struct.pack("<f", x))[0]

CSCALE = (18 ** -0.5) * math.log2(math.e)

INSTR = False
EXP = set()
PFD = 5
PLOOK = 2
PMAP = {}
HB2_IT = 4
PARK = 106496
HB1_TT = 6
KVLEAD = 11
WARM_AT = 9
TPUB_ = 46
TPOLL_ = 50
TB11_ = 52
WS_DBG = 0x1200000
class E:
    def __init__(self):
        self.l = []
        self.nts = 0
        self.mute = False
    def ts_reset(self):
        if self.mute: return
        self.nts = 0
        if INSTR: self("s_memrealtime s[100:101]")
    def ts(self):
        if not INSTR or self.mute: return
        k = self.nts; self.nts += 1
        self(f"s_memtime s[{64+2*k}:{65+2*k}]")
    def ts_dump(self, wsreg, waves_per_wg, kid):
        if not INSTR: return
        n = self.nts
        self(f"s_memrealtime s[96:97]")
        self("s_waitcnt lgkmcnt(0)")
        self("s_mov_b64 exec, -1")
        self(f"s_add_u32 s92, s{wsreg}, {WS_DBG + kid*0x100000}")
        self(f"s_addc_u32 s93, s{wsreg+1}, 0")
        self("s_mov_b32 s94, 0x100000")
        self("s_mov_b32 s95, 0x00020000")
        self(f"s_mul_i32 s98, s2, {waves_per_wg}")
        self("s_add_u32 s98, s98, s32")
        self("s_lshl_b32 s98, s98, 6")
        self("v_mov_b32 v1, 0")
        for k in range(n):
            self(f"v_mov_b32 v2, s{64+2*k}")
            self(f"buffer_store_dword v2, v1, s[92:95], s98 offen offset:{4*k}")
        self("v_mov_b32 v2, s96")
        self(f"buffer_store_dword v2, v1, s[92:95], s98 offen offset:60")
        self("v_mov_b32 v2, s100")
        self(f"buffer_store_dword v2, v1, s[92:95], s98 offen offset:56")
    def __call__(self, s):
        self.l.append("    " + s)
    def label(self, s):
        self.l.append(s + ":")
    def c(self, s):
        self.l.append("    ; " + s)
    def text(self):
        return "\n".join(self.l) + "\n"

def srd(e, d, lo, hi, nbytes):
    e(f"s_mov_b32 s{d}, s{lo}")
    e(f"s_mov_b32 s{d+1}, s{hi}")
    e(f"s_mov_b32 s{d+2}, {nbytes}")
    e(f"s_mov_b32 s{d+3}, 0x00020000")

def srd_off(e, d, lo, hi, off, nbytes):
    e(f"s_add_u32 s{d}, s{lo}, {off}")
    e(f"s_addc_u32 s{d+1}, s{hi}, 0")
    e(f"s_mov_b32 s{d+2}, {nbytes}")
    e(f"s_mov_b32 s{d+3}, 0x00020000")

def gen_gemm(e, pfx, NT, NSLOT, special=False, cont=None):
    P = PMAP.get(pfx, PLOOK)
    XB = 16384
    SLOT = XB + NT * 4096
    NCH = 9
    XS_ = 6; XRS = 24; WRS = 16; WL = 2
    NQ = NT - 2 if special else NT
    TK = NT - 2; TV = NT - 1
    D = 4 + NQ + (8 if special else 0)
    vX = [2, 3, 4, 5]; vW = 6; vKV = 7
    vXr = [8, 9, 10, 11]; vWr = 12
    F = [16, 16 + 4 + 4 * NT]
    ACC = max(64, 16 + 2 * (4 + 4 * NT))
    e.c(f"---- gemm body {pfx} NT={NT} NSLOT={NSLOT} special={special}")
    e.ts_reset()
    e.ts()
    e("v_and_b32 v1, 63, v0")
    e("v_lshrrev_b32 v13, 6, v0")
    e("s_nop 0")
    e("v_readfirstlane_b32 s32, v13")
    e("s_nop 3")
    e("s_cmp_lt_u32 s32, 4")
    e(f"s_cbranch_scc1 {pfx}_compute")
    if cont:
        e("s_cmp_lt_u32 s32, 8")
        e(f"s_cbranch_scc1 {pfx}_loader")
        e("s_waitcnt vmcnt(0)")
        for _ in range(NCH + 1):
            e("s_barrier")
        e(f"s_branch {cont}")
        e.label(f"{pfx}_loader")
    e("s_sub_u32 s51, s32, 4")
    e("v_lshrrev_b32 v13, 3, v1")
    e("v_lshrrev_b32 v14, 4, v1")
    e("v_and_b32 v15, 7, v1")
    e("s_lshl_b32 s40, s51, 5")
    e("s_add_u32 s40, s40, s36")
    e("s_movk_i32 s41, 1152")
    for j in range(4):
        e(f"v_add_u32 v16, {4*j}, v14")
        e("v_and_b32 v16, 7, v16")
        e("v_xor_b32 v16, v16, v15")
        e("v_lshlrev_b32 v16, 4, v16")
        e(f"v_add_u32 v17, {8*j}, v13")
        e("v_add_u32 v17, s40, v17")
        e("v_mul_lo_u32 v17, v17, s41")
        e(f"v_add_u32 v{vX[j]}, v16, v17")
    e("v_lshrrev_b32 v16, 2, v1")
    e("s_lshl_b32 s40, s51, 4")
    e("v_add_u32 v16, s40, v16")
    e("v_mul_lo_u32 v16, v16, s33")
    e("v_and_b32 v17, 3, v1")
    e("v_lshlrev_b32 v17, 4, v17")
    e("v_add_u32 v16, v16, v17")
    e(f"v_add_u32 v{vW}, s37, v16")
    if special:
        e("v_add_u32 v16, s40, v14")
        e("v_mul_u32_u24 v16, 36, v16")
        e("v_and_b32 v17, 15, v1")
        e("v_min_u32 v17, 8, v17")
        e("v_lshlrev_b32 v17, 2, v17")
        e(f"v_add_u32 v{vKV}, v16, v17")
    e("s_lshl_b32 s48, s33, 6")
    e("s_mov_b32 s46, s50")
    e("s_lshl_b32 s44, s51, 12")
    e("s_lshl_b32 s45, s51, 10")
    e(f"s_add_u32 s45, s45, {XB}")

    def dma_chunk(n):
        sb = (n % NSLOT) * SLOT
        e("s_lshl_b32 s41, s46, 7")
        e("s_mul_i32 s42, s46, s48")
        if special:
            e("s_mul_i32 s43, s46, 2304")
        e("s_add_u32 s46, s46, 1")
        e(f"s_cmp_eq_u32 s46, {NCH}")
        e("s_cselect_b32 s46, 0, s46")
        if "nodma" in EXP: return
        for j in range(4):
            e(f"s_add_u32 m0, s44, {sb + j*1024}")
            e("s_nop 0")
            e(f"buffer_load_dwordx4 v{vX[j]}, s[8:11], s41 offen{' sc1' if pfx in ('og', 'ob') else ''} lds")
        for t in range(NQ):
            e(f"s_add_u32 m0, s45, {sb + t*4096 - 64*t}")
            e("s_nop 0")
            e(f"buffer_load_dwordx4 v{vW}, s[12:15], s42 offen offset:{64*t} lds")
        if special:
            for (t, sr) in ((TK, 20), (TV, 24)):
                for q in range(4):
                    e(f"s_add_u32 m0, s45, {sb + t*4096 + q*256 - 144*q}")
                    e("s_nop 0")
                    e(f"buffer_load_dword v{vKV}, s[{sr}:{sr+3}], s43 offen offset:{144*q} lds")
    for n in range(P):
        dma_chunk(n)
    for c in range(NCH + 1):
        issued = min(c - 1 + P, NCH - 1)
        allowed = max(issued - c, 0)
        e(f"s_waitcnt vmcnt({allowed*D})")
        e("s_barrier")
        if c + P <= NCH - 1:
            dma_chunk(c + P)
        if NT == 2 and c == WARM_AT and "k1warm" in EXP:
            e("s_load_dwordx4 s[40:43], s[0:1], 0")
            e("s_lshr_b32 s46, s2, 3")
            e("s_lshl_b32 s46, s46, 2")
            e("s_add_u32 s46, s46, s51")
            e("v_lshlrev_b32 v13, 7, v1")
            e("s_waitcnt lgkmcnt(0)")
            e("s_mov_b32 s52, s42")
            e("s_mov_b32 s53, s43")
            e(f"s_mov_b32 s54, {576*3456}")
            e("s_mov_b32 s55, 0x00020000")
            e("s_lshl_b32 s47, s46, 13")
            for i in range(4):
                e(f"s_add_u32 s49, s47, {i*80*8192}")
                e("buffer_load_dword v14, v13, s[52:55], s49 offen")
            e("s_mov_b32 s52, s40")
            e("s_mov_b32 s53, s41")
            e(f"s_mov_b32 s54, {2048*1152}")
            e("s_and_b32 s47, s2, 7")
            e("s_mul_i32 s47, s47, 294912")
            e("s_mul_i32 s49, s46, 3712")
            e("s_add_u32 s49, s49, s47")
            e("v_min_u32 v13, 28, v1")
            e("v_lshlrev_b32 v13, 7, v13")
            e("buffer_load_dword v14, v13, s[52:55], s49 offen")
    e(f"s_branch {cont}" if cont else "s_endpgm")
    e.label(f"{pfx}_compute")
    if pfx == "pa" and "nocw" not in EXP:
        e("s_cmp_gt_u32 s2, 7")
        e("s_cbranch_scc1 pg_nocw")
        e("s_cmp_lg_u32 s32, 0")
        e("s_cbranch_scc1 pg_nocw")
        e("s_getpc_b64 s[56:57]")
        e.label("pg_cw_pc")
        e("s_add_u32 s56, s56, p1_done-pg_cw_pc")
        e("s_addc_u32 s57, s57, 0")
        e("v_lshlrev_b32 v13, 7, v1")
        for i in range(3):
            e(f"v_add_u32 v14, {i*8192}, v13")
            e("v_min_u32 v14, code_end-p1_done-4, v14")
            e("global_load_dword v2, v14, s[56:57]")
        e("s_getpc_b64 s[56:57]")
        e("s_add_u32 s56, s56, kd_start@rel32@lo+4")
        e("s_addc_u32 s57, s57, kd_start@rel32@hi+12")
        e("v_and_b32 v14, 3, v1")
        e("v_lshlrev_b32 v14, 6, v14")
        e("v_min_u32 v14, 128, v14")
        e("global_load_dword v2, v14, s[56:57]")
        e.label("pg_nocw")
    PF = PFD
    e("v_bfe_u32 v13, v1, 2, 3")
    e(f"s_mul_i32 s40, s6, {XRS}")
    e("s_add_u32 s40, s40, s36")
    e(f"s_mul_i32 s41, s32, {XRS//4}")
    e("s_add_u32 s40, s40, s41")
    e("v_add_u32 v14, s40, v13")
    e("v_mul_u32_u24 v3, 1152, v14")
    e("v_bfe_u32 v13, v1, 4, 2")
    e(f"v_min_u32 v13, {WRS//4-1}, v13")
    e(f"s_mul_i32 s40, s3, {WRS}")
    e(f"s_mul_i32 s41, s32, {WRS//4}")
    e("s_add_u32 s40, s40, s41")
    e("v_add_u32 v13, s40, v13")
    e("v_mul_lo_u32 v13, v13, s33")
    e("v_bfe_u32 v14, v1, 2, 2")
    e(f"v_min_u32 v14, {WL-1}, v14")
    e("v_lshlrev_b32 v14, 7, v14")
    e("v_add_u32 v13, v13, v14")
    e("v_add_u32 v4, s37, v13")
    e("s_lshl_b32 s48, s33, 6")
    e(f"s_movk_i32 s54, {128*P}")
    e(f"s_mul_i32 s55, s48, {P}")
    def pf():
        if "pf" not in EXP: return
        e("buffer_load_dword v2, v3, s[8:11], s54 offen")
        e("buffer_load_dword v2, v4, s[12:15], s55 offen")
        e("s_add_u32 s54, s54, 128")
        e("s_add_u32 s55, s55, s48")
    for _ in range(P, PF):
        pf()
    e("v_and_b32 v13, 31, v1")
    e("v_lshrrev_b32 v14, 5, v1")
    e("v_lshrrev_b32 v15, 1, v13")
    e("v_and_b32 v15, 7, v15")
    e("v_lshlrev_b32 v16, 7, v13")
    e("s_lshl_b32 s40, s32, 12")
    e("v_add_u32 v16, s40, v16")
    e("v_lshlrev_b32 v17, 2, v14")
    for j in range(4):
        e(f"v_add_u32 v18, {j}, v17")
        e("v_xor_b32 v18, v18, v15")
        e("v_lshlrev_b32 v18, 4, v18")
        e(f"v_add_u32 v{vXr[j]}, v16, v18")
    e("v_lshlrev_b32 v16, 11, v14")
    e("v_bfe_u32 v17, v1, 2, 2")
    e("v_lshlrev_b32 v17, 6, v17")
    e("v_add_u32 v16, v16, v17")
    e("v_bfe_u32 v17, v1, 4, 1")
    e("v_lshlrev_b32 v17, 5, v17")
    e("v_add_u32 v16, v16, v17")
    e("v_and_b32 v17, 3, v1")
    e("v_lshlrev_b32 v17, 3, v17")
    e("v_add_u32 v16, v16, v17")
    e(f"v_add_u32 v{vWr}, {XB}, v16")
    for i in range(NT * 16):
        e(f"v_mov_b32 v{ACC+i}, 0")
    e(f"s_mov_b32 s7, {SLOT}")

    def read_list(j, fb):
        b = F[fb]
        l = [f"ds_read_b128 v[{b}:{b+3}], v{vXr[j]}"]
        for t in range(NT):
            r = b + 4 + 4 * t
            l.append(f"ds_read_b64_tr_b16 v[{r}:{r+1}], v{vWr} offset:{t*4096 + j*512}")
            l.append(f"ds_read_b64_tr_b16 v[{r+2}:{r+3}], v{vWr} offset:{t*4096 + j*512 + 256}")
        if "noread" in EXP: l = []
        return l
    def mfma(fb, t):
        if "nomfma" in EXP: return
        b = F[fb]
        r = b + 4 + 4 * t
        a = ACC + 16 * t
        if special and t == TV:
            e(f"v_mfma_f32_32x32x16_bf16 v[{a}:{a+15}], v[{b}:{b+3}], v[{r}:{r+3}], v[{a}:{a+15}]")
        else:
            e(f"v_mfma_f32_32x32x16_bf16 v[{a}:{a+15}], v[{r}:{r+3}], v[{b}:{b+3}], v[{a}:{a+15}]")
    NR = 1 + 2 * NT
    def step(fb, nxt_reads, first_after=0):
        per = {}
        k = 0
        slots = list(range(first_after, NT - 1)) or [first_after]
        q = list(nxt_reads)
        chunk = -(-len(q) // min(len(slots), 3))
        issued_new = 0
        for t in range(NT):
            if first_after == 0:
                allowed = NR - (2 * t + 3) + issued_new
                e(f"s_waitcnt lgkmcnt({min(allowed, 15)})")
            mfma(fb, t)
            if t == 0 and first_after == 1:
                e("s_barrier")
            if t >= first_after - (1 if first_after == 1 else 0) and q:
                for _ in range(min(chunk, len(q))):
                    e(q.pop(0)); issued_new += 1
        assert not q
    e("s_mov_b32 s40, 0")
    e("s_mov_b32 s49, 0")
    e.ts()
    e("s_barrier")
    e.ts()
    for r in read_list(0, 0): e(r)
    e.label(f"{pfx}_loop")
    pf()
    step(0, read_list(1, 1))
    step(1, read_list(2, 0))
    step(0, read_list(3, 1))
    e("s_add_u32 s49, s49, 1")
    e(f"s_cmp_eq_u32 s49, {NSLOT}")
    e(f"s_cselect_b32 s47, {-(NSLOT-1)*SLOT}, s7")
    e("s_cselect_b32 s49, 0, s49")
    for j in range(4):
        e(f"v_add_u32 v{vXr[j]}, s47, v{vXr[j]}")
    e(f"v_add_u32 v{vWr}, s47, v{vWr}")
    e("s_add_u32 s40, s40, 1")
    e(f"s_cmp_lt_u32 s40, {NCH}")
    e("s_waitcnt lgkmcnt(0)")
    step(1, read_list(0, 0), first_after=1)
    e(f"s_cbranch_scc1 {pfx}_loop")
    e.ts()
    e("s_waitcnt vmcnt(0) lgkmcnt(0)")
    e("s_nop 15")
    e("s_nop 3")
    NTQ = NQ
    RS = 80
    TR = 32 * RS
    if pfx == "pa":
        e("v_and_b32 v13, 31, v1")
        e("v_lshrrev_b32 v14, 5, v1")
        e("v_lshlrev_b32 v15, 6, v13")
        e("v_lshlrev_b32 v16, 3, v14")
        e("v_add_u32 v15, v15, v16")
        e(f"s_mul_i32 s40, s32, {NT*2048}")
        e(f"s_add_u32 s40, s40, {PARK}")
        e("v_add_u32 v15, s40, v15")
        e("v_bfe_u32 v16, v13, 1, 2")
        e("v_lshlrev_b32 v16, 4, v16")
        for g in range(4):
            e(f"v_xor_b32 v{28+g}, {g*16}, v16")
            e(f"v_add_u32 v{28+g}, v{28+g}, v15")
        for t in range(NT):
            a = ACC + 16 * t
            for i in range(8):
                e(f"v_cvt_pk_bf16_f32 v{20+i}, v{a+2*i}, v{a+2*i+1}")
            for g in range(4):
                e(f"ds_write_b64 v{28+g}, v[{20+2*g}:{21+2*g}] offset:{t*2048}")
        e("s_waitcnt lgkmcnt(0)")
        e(f"s_branch {cont}")
        return NSLOT * SLOT

    e("v_and_b32 v13, 31, v1")
    e("v_lshrrev_b32 v14, 5, v1")
    e(f"v_mul_u32_u24 v15, {RS}, v13")
    e("v_lshlrev_b32 v16, 3, v14")
    e("v_add_u32 v15, v15, v16")
    e(f"s_mul_i32 s40, s32, {NT*TR}")
    e("v_add_u32 v15, s40, v15")
    e("v_lshrrev_b32 v16, 2, v1")
    e(f"v_mul_u32_u24 v17, {RS}, v16")
    e("v_and_b32 v18, 3, v1")
    e("v_lshlrev_b32 v18, 4, v18")
    e("v_add_u32 v17, v17, v18")
    e("v_add_u32 v17, s40, v17")
    e("s_lshl_b32 s41, s32, 5")
    e("s_add_u32 s41, s41, s36")
    e("v_add_u32 v16, s41, v16")
    e("v_mul_lo_u32 v16, v16, s34")
    e("v_add_u32 v16, v16, v18")
    e("v_add_u32 v16, s38, v16")
    e("s_lshl_b32 s42, s34, 4")
    for t in range(NTQ):
        a = ACC + 16 * t
        for i in range(8):
            e(f"v_cvt_pk_bf16_f32 v{20+i}, v{a+2*i}, v{a+2*i+1}")
        for g in range(4):
            e(f"ds_write_b64 v15, v[{20+2*g}:{21+2*g}] offset:{t*TR + g*16}")
    e("s_waitcnt lgkmcnt(0)")
    for t in range(NTQ):
        e(f"ds_read_b128 v[{20+8*t}:{23+8*t}], v17 offset:{t*TR}")
        e(f"ds_read_b128 v[{24+8*t}:{27+8*t}], v17 offset:{t*TR + 16*RS}")
    for t in range(NTQ):
        if t == NTQ - 1 and not special:
            e(f"s_cmp_lt_u32 s39, {NTQ}")
            e(f"s_cbranch_scc1 {pfx}_skiplast")
        e(f"s_waitcnt lgkmcnt({2*(NTQ-1-t)})")
        fl = " sc1" if (cont and pfx not in ("og", "ob")) else ""
        e(f"buffer_store_dwordx4 v[{20+8*t}:{23+8*t}], v16, s[16:19], 0 offen offset:{64*t}{fl}")
        e(f"buffer_store_dwordx4 v[{24+8*t}:{27+8*t}], v16, s[16:19], s42 offen offset:{64*t}{fl}")
    if not special:
        e.label(f"{pfx}_skiplast")
    if special:
        e("s_lshr_b32 s43, s41, 5")
        e(f"s_mul_i32 s43, s43, {TILE_B}")
        a = ACC + 16 * TK
        for i in range(10):
            e(f"v_mul_f32 v{a+i}, s35, v{a+i}")
        for i in range(5):
            e(f"v_cvt_pk_bf16_f32 v{48+i}, v{a+2*i}, v{a+2*i+1}")
        e("v_lshlrev_b32 v56, 4, v13")
        e("v_lshlrev_b32 v57, 3, v14")
        e("v_add_u32 v56, v56, v57")
        e("buffer_store_dwordx2 v[48:49], v56, s[28:31], s43 offen sc1")
        e("buffer_store_dwordx2 v[50:51], v56, s[28:31], s43 offen offset:512 sc1")
        e("v_lshlrev_b32 v57, 2, v13")
        e("v_cmp_gt_u32 vcc, 32, v1")
        e("s_and_saveexec_b64 s[52:53], vcc")
        e("buffer_store_dword v52, v57, s[28:31], s43 offen offset:1024 sc1")
        e("s_mov_b64 exec, s[52:53]")
        a = ACC + 16 * TV
        for i in range(8):
            e(f"v_cvt_pk_bf16_f32 v{40+i}, v{a+2*i}, v{a+2*i+1}")
        e("v_mov_b32 v58, 0x3f803f80")
        e("v_cmp_eq_u32 vcc, 18, v13")
        e("s_nop 1")
        for i in range(8):
            e(f"v_cndmask_b32 v{40+i}, v{40+i}, v58, vcc")
        e("v_cmp_ne_u32 vcc, 19, v13")
        e("s_nop 1")
        for i in range(8):
            e(f"v_cndmask_b32 v{40+i}, 0, v{40+i}, vcc")
        e("v_lshlrev_b32 v56, 4, v13")
        e("v_mul_u32_u24 v57, 320, v14")
        e("v_add_u32 v56, v56, v57")
        e("v_cmp_gt_u32 vcc, 20, v13")
        e("s_and_saveexec_b64 s[52:53], vcc")
        e("buffer_store_dwordx4 v[40:43], v56, s[28:31], s43 offen offset:1152 sc1")
        e("buffer_store_dwordx4 v[44:47], v56, s[28:31], s43 offen offset:1792 sc1")
        e("s_mov_b64 exec, s[52:53]")
    if cont:
        e(f"s_branch {cont}")
        return NSLOT * SLOT
    e.ts()
    e("s_waitcnt vmcnt(0)") if INSTR else None
    e.ts()
    e.ts_dump(4, 8, 1)
    e("s_endpgm")
    return NSLOT * SLOT

def kd(name, vgpr, sgpr=64):
    if INSTR: sgpr = 102
    acc = (vgpr + 3) // 4 * 4
    return f""".amdhsa_kernel {name}
  .amdhsa_next_free_vgpr {vgpr}
  .amdhsa_next_free_sgpr {sgpr}
  .amdhsa_accum_offset {acc}
  .amdhsa_group_segment_fixed_size 0
  .amdhsa_kernarg_size 88
  .amdhsa_user_sgpr_count 2
  .amdhsa_user_sgpr_kernarg_segment_ptr 1
  .amdhsa_system_sgpr_workgroup_id_x 1
.end_amdhsa_kernel
"""

def header(e, name):
    e.l.append(f".globl {name}")
    e.l.append(".p2align 8")
    e.l.append(f".type {name},@function")
    e.label(name)

def stagger(e, a, b):
    if "nostag" in EXP:
        e("s_mov_b32 s50, 0"); return
    e(f"s_lshl_b32 s50, {b}, 1")
    e(f"s_add_u32 s50, s50, {a}")
    e("s_cmp_ge_u32 s50, 9")
    e("s_cselect_b32 s51, 9, 0")
    e("s_sub_u32 s50, s50, s51")

def gen_proj(e):
    header(e, "main_kernel")
    e("s_cmp_ge_u32 s2, 256")
    e("s_cbranch_scc1 attn_exit")
    e.ts_reset()
    e.ts()
    e.mute = True
    e("v_lshrrev_b32 v13, 6, v0")
    e("s_load_dwordx2 s[52:53], s[0:1], 0")
    e("s_load_dwordx2 s[54:55], s[0:1], 8")
    e("s_load_dwordx2 s[56:57], s[0:1], 24")
    e("s_load_dwordx2 s[58:59], s[0:1], 32")
    e("s_load_dwordx2 s[60:61], s[0:1], 40")
    e("s_load_dwordx2 s[62:63], s[0:1], 48")
    e("s_load_dwordx2 s[4:5], s[0:1], 80")
    e("s_and_b32 s6, s2, 7")
    e("s_lshr_b32 s7, s2, 3")
    e("s_and_b32 s3, s7, 7")
    e("s_lshr_b32 s7, s7, 3")
    e("v_readfirstlane_b32 s32, v13")
    e("s_load_dwordx2 s[50:51], s[0:1], 72")
    e("s_waitcnt lgkmcnt(0)")
    e("s_cmp_gt_u32 s2, 31")
    e("s_cbranch_scc1 p0_noclr")
    e("s_cmp_lg_u32 s32, 9")
    e("s_cbranch_scc1 p0_noclr")
    e(f"s_add_u32 s40, s4, {WS_FLAG + 8192}")
    e("s_addc_u32 s41, s5, 0")
    e("v_and_b32 v1, 63, v0")
    e("v_lshlrev_b32 v1, 3, v1")
    e("s_lshl_b32 s42, s2, 9")
    e("v_add_u32 v1, s42, v1")
    e("v_mov_b32 v2, 0")
    e("v_mov_b32 v3, 0")
    e("global_store_dwordx2 v1, v[2:3], s[40:41] sc1")
    e("s_waitcnt vmcnt(0)")
    e("v_mov_b32 v3, 1")
    e("s_mov_b64 exec, 1")
    e("global_atomic_add v2, v3, s[50:51] sc1")
    e("s_mov_b64 exec, -1")
    e.label("p0_noclr")
    if "tlb" in EXP:
        e("s_cmp_lg_u32 s32, 10")
        e("s_cbranch_scc1 p0_notlb")
        e("s_load_dwordx2 s[40:41], s[0:1], 64")
        e("s_load_dwordx2 s[42:43], s[0:1], 16")
        e("s_load_dwordx2 s[44:45], s[0:1], 56")
        e("v_and_b32 v1, 63, v0")
        e("v_lshlrev_b32 v1, 18, v1")
        e("global_load_dword v2, v1, s[4:5] sc1")
        e("v_add_u32 v3, 0x1000000, v1")
        e("v_min_u32 v3, 0x1040000, v3")
        e("global_load_dword v2, v3, s[4:5] sc1")
        e(f"v_min_u32 v3, {2048*2304-4}, v1")
        e("s_waitcnt lgkmcnt(0)")
        e("global_load_dword v2, v3, s[40:41] sc1")
        e(f"v_min_u32 v3, {576*1152-4}, v1")
        e("global_load_dword v2, v3, s[42:43]")
        e("global_load_dword v2, v3, s[44:45]")
        e("s_waitcnt vmcnt(0)")
        e.label("p0_notlb")
    e("s_lshr_b32 s7, s2, 3")
    e("s_and_b32 s3, s7, 3")
    e("s_lshr_b32 s7, s7, 2")
    e("s_lshr_b32 s40, s6, 1")
    e("s_lshl_b32 s40, s40, 2")
    e("s_add_u32 s40, s40, s3")
    e("s_and_b32 s6, s6, 1")
    e("s_sub_u32 s42, 5, s6")
    e("s_lshl_b32 s36, s40, 7")
    e("s_mov_b32 s39, 6")
    e("s_lshl_b32 s50, s3, 1")
    e("s_add_u32 s50, s50, s7")
    e("s_cmp_ge_u32 s50, 9")
    e("s_cselect_b32 s51, 9, 0")
    e("s_sub_u32 s50, s50, s51")
    e("s_cmp_ge_u32 s7, s42")
    e("s_cbranch_scc1 proj_B")
    e("s_mul_i32 s41, s6, 5")
    e("s_add_u32 s41, s41, s7")
    e("s_mov_b32 s60, 1")
    e("s_mov_b32 s61, s40")
    e("s_mov_b32 s62, s41")
    srd(e, 8, 52, 53, 2048 * 1152)
    srd(e, 12, 54, 55, 576 * 3456)
    e("s_movk_i32 s33, 3456")
    e("s_mul_i32 s37, s41, 384")
    lds = gen_gemm(e, "pa", 6, 4, cont="p1_done")
    e.label("proj_B")
    e("s_sub_u32 s41, s7, s42")
    e("s_mul_i32 s43, s6, 3")
    e("s_add_u32 s41, s41, s43")
    srd(e, 8, 56, 57, 2048 * 1152)
    srd(e, 12, 58, 59, 576 * 1152)
    srd_off(e, 16, 4, 5, WS_QB, 2048 * 1152)
    e("s_movk_i32 s33, 1152")
    e("s_movk_i32 s34, 1152")
    e(f"s_mov_b32 s35, {f32bits(CSCALE):#x}")
    e("s_mul_i32 s37, s41, 192")
    e("s_mov_b32 s38, s37")
    e("s_cmp_eq_u32 s41, 6")
    e("s_cbranch_scc1 proj_special")
    e("s_mov_b32 s60, 2")
    e("s_mov_b32 s61, s40")
    e("s_mov_b32 s62, s41")
    gen_gemm(e, "pg", 3, 5, cont="p1_done")
    e.label("proj_special")
    srd(e, 20, 60, 61, 576 * 36)
    srd(e, 24, 62, 63, 576 * 36)
    e("s_mov_b32 s60, 3")
    e("s_mov_b32 s61, s40")
    e("s_cmp_lg_u32 s32, 0")
    e("s_cbranch_scc1 ps_noclr")
    srd_off(e, 28, 4, 5, WS_FLAG, 32768)
    e("v_and_b32 v1, 63, v0")
    e("v_lshlrev_b32 v1, 2, v1")
    e("v_mov_b32 v3, 0")
    e("s_lshl_b32 s41, s40, 8")
    e("buffer_store_dword v3, v1, s[28:31], s41 offen sc1")
    e("s_add_u32 s41, s41, 4096")
    e("buffer_store_dword v3, v1, s[28:31], s41 offen sc1")
    e("s_add_u32 s41, s41, 20480")
    e("buffer_store_dword v3, v1, s[28:31], s41 offen sc1")
    e.label("ps_noclr")
    srd_off(e, 28, 4, 5, WS_KV, KVIMG_B)
    gen_gemm(e, "ps", 2, 6, special=True, cont="p1_done")
    e.mute = False
    return lds

def gen_out(e):
    e.label("p2_done")
    e.nts = 10
    e("s_waitcnt vmcnt(0)")
    e("s_barrier")
    e("s_cmp_lg_u32 s32, 8")
    e("s_cbranch_scc1 p2_wait")
    e(f"s_add_u32 s50, s4, {WS_FLAG + 4096}")
    e("s_addc_u32 s51, s5, 0")
    e("s_and_b32 s35, s2, 7")
    e("s_lshl_b32 s35, s35, 1")
    e("s_lshr_b32 s36, s2, 7")
    e("s_add_u32 s36, s36, s35")
    e("s_lshl_b32 s36, s36, 8")
    e("s_bfe_u32 s37, s2, 0x40003")
    e("s_lshl_b32 s37, s37, 2")
    e("s_add_u32 s36, s36, s37")
    e("v_mov_b32 v4, s36")
    e("v_mov_b32 v5, 1")
    e("s_mov_b64 exec, 1")
    e("global_store_dword v4, v5, s[50:51] sc1")
    e("s_mov_b64 exec, -1")
    e("s_cmp_ge_u32 s2, 240")
    e("s_cbranch_scc1 p2_wait")
    e("s_bfe_u32 s36, s2, 0x10003")
    e("s_add_u32 s35, s35, s36")
    e("s_lshl_b32 s35, s35, 8")
    e("s_cmp_lt_u32 s2, 144")
    e("s_cselect_b32 s36, 15, 63")
    e("s_cselect_b32 s37, 0, 20480")
    e("s_add_u32 s35, s35, s37")
    e("v_and_b32 v4, s36, v0")
    e("v_lshlrev_b32 v4, 2, v4")
    e("v_add_u32 v4, s35, v4")
    e("s_mov_b32 s43, 0")
    e.label("p2_poll")
    e("global_load_dword v7, v4, s[50:51] sc1")
    e("s_waitcnt vmcnt(0)")
    e("v_cmp_ne_u32 vcc, 1, v7")
    e("s_add_u32 s43, s43, 1")
    e("s_cmp_eq_u64 vcc, 0")
    e("s_cbranch_scc1 p2_ok")
    e("s_sleep 4")
    e("s_cmp_lt_u32 s43, 0x10000")
    e("s_cbranch_scc1 p2_poll")
    e.label("p2_ok")
    e.label("p2_wait")
    e("s_cmp_ge_u32 s2, 240")
    e("s_cbranch_scc1 p3_done")
    e("s_load_dwordx2 s[52:53], s[0:1], 16")
    e("s_load_dwordx2 s[54:55], s[0:1], 56")
    e("s_load_dwordx2 s[56:57], s[0:1], 64")
    e("s_and_b32 s6, s2, 7")
    e("s_lshr_b32 s7, s2, 3")
    e("s_and_b32 s3, s7, 1")
    e("s_lshl_b32 s40, s6, 1")
    e("s_add_u32 s40, s40, s3")
    e("s_lshr_b32 s41, s7, 1")
    e("s_lshl_b32 s36, s40, 7")
    e("s_movk_i32 s33, 1152")
    e("s_movk_i32 s34, 2304")
    e("s_mov_b32 s39, 3")
    e("s_waitcnt lgkmcnt(0)")
    srd(e, 16, 56, 57, 2048 * 2304)
    e("s_barrier")
    e.ts()
    e.mute = True
    e("s_cmp_ge_u32 s41, 9")
    e("s_cbranch_scc1 p3_A")
    srd_off(e, 8, 4, 5, WS_OB, 2048 * 1152)
    srd(e, 12, 54, 55, 576 * 1152)
    e("s_lshl_b32 s37, s41, 7")
    e("s_add_u32 s38, s37, 1152")
    e("s_mov_b32 s50, s41")
    lds = gen_gemm(e, "ob", 2, 6, cont="p3_done")
    e.label("p3_A")
    e("s_sub_u32 s41, s41, 9")
    srd_off(e, 8, 4, 5, WS_OA, 2048 * 1152)
    srd(e, 12, 52, 53, 576 * 1152)
    e("s_mul_i32 s37, s41, 192")
    e("s_mov_b32 s38, s37")
    stagger(e, "s41", "s3")
    gen_gemm(e, "og", 3, 5, cont="p3_done")
    e.mute = False
    e.label("p3_done")
    e.ts()
    e.ts_dump(4, 12, 0)
    e.label("attn_exit")
    e("s_endpgm")
    return lds

def gen_attn(e):
    Q1 = 12; Q2 = 16; C = 20; S = [36, 52]; P = [68, 76]; O = 84
    KF = [100, 104]; K2F = [108, 112]; VF = [116, 124]
    T = 132
    SLOTB = [97280, 130048]
    SYNC = 162816
    vK1 = 4; vK2 = 5; vV = 6
    QST = KVIMG_B
    e.label("p1_done")
    e.ts()
    e("s_load_dwordx2 s[50:51], s[0:1], 72")
    e("s_cmp_lt_u32 s60, 2")
    e("s_cbranch_scc1 p1_nodrain")
    e("s_waitcnt vmcnt(0)")
    e.label("p1_nodrain")
    e("s_waitcnt lgkmcnt(0)")
    e("s_cmp_lg_u32 s32, 8")
    e("s_cbranch_scc1 p1_initok")
    e("v_mov_b32 v4, 0")
    e("s_mov_b32 s43, 0")
    e.label("p1_init")
    e("global_load_dword v7, v4, s[50:51] sc1")
    e("s_waitcnt vmcnt(0)")
    e("v_readfirstlane_b32 s35, v7")
    e("s_add_u32 s43, s43, 1")
    e("s_cmp_ge_u32 s35, 32")
    e("s_cbranch_scc1 p1_initok")
    e("s_sleep 8")
    e("s_cmp_lt_u32 s43, 0x10000")
    e("s_cbranch_scc1 p1_init")
    e.label("p1_initok")
    e("s_barrier")
    e("s_cmp_lg_u32 s32, 8")
    e("s_cbranch_scc1 p1_wait")
    e("v_mov_b32 v5, 1")
    e("v_and_b32 v1, 63, v0")
    e(f"s_add_u32 s52, s4, {WS_FLAG + 8192}")
    e("s_addc_u32 s53, s5, 0")
    e("s_cmp_lt_u32 s60, 2")
    e("s_cbranch_scc1 p1_nosig")
    e("s_mul_i32 s35, s61, 6")
    e("s_add_u32 s35, s35, s62")
    e("s_add_u32 s35, s35, 16")
    e("s_cmp_eq_u32 s60, 3")
    e("s_cselect_b32 s35, s61, s35")
    e("s_lshl_b32 s35, s35, 2")
    e("v_lshlrev_b32 v7, 9, v1")
    e("v_add_u32 v4, s35, v7")
    e("s_mov_b32 exec_hi, 0")
    e("global_store_dword v4, v5, s[52:53] sc1")
    e("s_mov_b64 exec, -1")
    e.label("p1_nosig")
    e("s_and_b32 s35, s2, 7")
    e("s_lshl_b32 s35, s35, 1")
    e("s_lshr_b32 s36, s2, 7")
    e("s_add_u32 s35, s35, s36")
    e("s_mul_i32 s35, s35, 6")
    e("v_min_u32 v4, 21, v1")
    e("v_add_u32 v6, s35, v4")
    e("v_cmp_gt_u32 vcc, 16, v4")
    e("s_lshr_b32 s36, s2, 3")
    e("s_lshl_b32 s36, s36, 9")
    e("v_cndmask_b32 v4, v6, v4, vcc")
    e("v_lshlrev_b32 v4, 2, v4")
    e("v_add_u32 v4, s36, v4")
    e("s_mov_b32 s43, 0")
    e.label("p1_poll")
    e("global_load_dword v7, v4, s[52:53] sc1")
    e("s_waitcnt vmcnt(0)")
    e("v_cmp_ne_u32 vcc, 1, v7")
    e("s_add_u32 s43, s43, 1")
    e("s_cmp_eq_u64 vcc, 0")
    e("s_cbranch_scc1 p1_ok")
    e("s_sleep 4")
    e("s_cmp_lt_u32 s43, 0x10000")
    e("s_cbranch_scc1 p1_poll")
    e.label("p1_ok")
    if "inv1" in EXP: e("buffer_inv sc1")
    e.label("p1_wait")
    e("s_barrier")
    e.ts()
    e("s_load_dwordx2 s[4:5], s[0:1], 80")
    e("s_load_dwordx2 s[46:47], s[0:1], 16")
    e("s_load_dwordx2 s[48:49], s[0:1], 56")
    e("s_load_dwordx4 s[28:31], s[0:1], 0")
    e("v_and_b32 v1, 63, v0")
    e("v_lshrrev_b32 v7, 6, v0")
    e("v_and_b32 v2, 31, v1")
    e("v_readfirstlane_b32 s32, v7")
    e("v_lshrrev_b32 v3, 5, v1")
    e("s_and_b32 s3, s2, 7")
    e("s_lshl_b32 s33, s3, 8")
    e("s_lshr_b32 s6, s2, 3")
    e("s_lshl_b32 s35, s6, 3")
    e("s_add_u32 s33, s33, s35")
    e("v_lshlrev_b32 v7, 4, v1")
    e("v_mul_u32_u24 v8, 36, v2")
    e("v_lshlrev_b32 v9, 4, v3")
    e("v_add_u32 v9, v8, v9")
    e("s_waitcnt lgkmcnt(0)")
    srd_off(e, 16, 4, 5, WS_KV, KVIMG_B)
    e("s_cmp_ge_u32 s32, 8")
    e("s_cbranch_scc1 attn_helper")
    e("s_add_u32 s33, s33, s32")
    srd_off(e, 12, 4, 5, WS_QB, 2048 * 1152)
    e("s_mul_i32 s36, s33, 1152")
    e(f"buffer_load_dwordx4 v[{Q1}:{Q1+3}], v9, s[12:15], s36 offen sc1")
    e(f"buffer_load_dword v{Q2}, v8, s[12:15], s36 offen offset:32 sc1")
    srd_off(e, 24, 4, 5, WS_OB, 2048 * 1152)
    e(f"v_lshlrev_b32 v{vK1}, 4, v1")
    e(f"v_lshlrev_b32 v{vK2}, 2, v2")
    e(f"v_add_u32 v{vK2}, 1024, v{vK2}")
    e(f"v_min_u32 v{vV}, 19, v2")
    e("v_cmp_eq_u32 vcc, 22, v2")
    e("v_mov_b32 v11, 18")
    e("s_nop 0")
    e(f"v_cndmask_b32 v{vV}, v{vV}, v11, vcc")
    e(f"v_lshlrev_b32 v{vV}, 4, v{vV}")
    e("v_mul_u32_u24 v11, 320, v3")
    e(f"v_add_u32 v{vV}, v{vV}, v11")
    e(f"v_add_u32 v{vV}, 1152, v{vV}")
    e("v_cmp_gt_u32 vcc, 32, v1")
    e(f"v_mov_b32 v{Q2+1}, 0")
    e(f"v_mov_b32 v{Q2+2}, 0")
    e(f"v_mov_b32 v{Q2+3}, 0")
    e("s_mov_b32 s40, 0")
    e("s_mov_b32 s50, 0x0047ffff")
    e("s_mov_b32 s51, 0x0047ffff")
    e("s_waitcnt vmcnt(0)")
    e("s_barrier")
    e(f"v_cndmask_b32 v{Q2}, 0, v{Q2}, vcc")
    e.ts()
    MB = [36, 52, 68, 84]
    KB = [100, 108, 116, 124]
    def ld128(dst, vlds, vglb, off, src, soff="0"):
        if src == "lds": e(f"ds_read_b128 v[{dst}:{dst+3}], v{vlds} offset:{off}")
        else: e(f"buffer_load_dwordx4 v[{dst}:{dst+3}], v{vglb}, s[16:19], {soff} offen offset:{off} sc1")
    def ld32(dst, vlds, vglb, off, src, soff="0"):
        if src == "lds": e(f"ds_read_b32 v{dst}, v{vlds} offset:{off}")
        else: e(f"buffer_load_dword v{dst}, v{vglb}, s[16:19], {soff} offen offset:{off} sc1")
    def wait(n, src):
        e(f"s_waitcnt {'lgkmcnt' if src == 'lds' else 'vmcnt'}({n})")
    def maxpass(src):
        e("v_mov_b32 v10, 0xff800000")
        if src == "glb":
            e("s_mov_b32 s42, 0")
            e.label("attn_maxloop")
        for i in range(4):
            if src == "glb":
                e(f"s_add_u32 s35, s42, {i*TILE_B}")
                ld128(KB[i], 0, vK1, 0, src, "s35"); ld32(KB[i]+4, 0, vK2, 0, src, "s35")
            else:
                ld128(KB[i], vK1, 0, i*TILE_B, src); ld32(KB[i]+4, vK2, 0, i*TILE_B, src)
        for i in range(4):
            e(f"v_mov_b32 v{KB[i]+5}, 0")
        for i in range(4):
            wait(6-2*i, src)
            e(f"v_mfma_f32_32x32x16_bf16 v[{MB[i]}:{MB[i]+15}], v[{KB[i]}:{KB[i]+3}], v[{Q1}:{Q1+3}], 0")
        e("s_nop 9")
        for i in range(4):
            e(f"v_mfma_f32_32x32x8_bf16 v[{MB[i]}:{MB[i]+15}], v[{KB[i]+4}:{KB[i]+5}], v[{Q2}:{Q2+1}], v[{MB[i]}:{MB[i]+15}]")
        e("s_nop 9")
        for i in range(4):
            if i == 3:
                e("s_nop 3")
            for j in range(8):
                e(f"v_max3_f32 v10, v{MB[i]+2*j}, v{MB[i]+2*j+1}, v10")
        if src == "glb":
            e(f"s_add_u32 s42, s42, {4*TILE_B}")
            e(f"s_cmp_lt_u32 s42, {64*TILE_B}")
            e("s_cbranch_scc1 attn_maxloop")
    def prologue(src):
        e(f"v_mov_b32 v{T}, v{vK1}")
        e(f"v_mov_b32 v{T+1}, v{vK2}")
        e(f"v_mov_b32 v{T+2}, v{vV}")
        ld128(KF[0], T, vK1, 0, src); ld32(K2F[0], T+1, vK2, 0, src)
        ld128(KF[1], T, vK1, TILE_B, src); ld32(K2F[1], T+1, vK2, TILE_B, src)
        e("v_mov_b32 v11, v10")
        e("s_nop 1")
        e("v_permlane32_swap_b32 v10, v11")
        e("v_max_f32 v10, v10, v11")
        e("v_sub_f32 v10, 0, v10")
        e(f"v_cvt_pk_bf16_f32 v{C}, v10, 0")
        e(f"v_lshlrev_b32 v{C}, 16, v{C}")
        e(f"v_sub_f32 v10, v10, v{C}")
        e(f"v_cvt_pk_bf16_f32 v{C+1}, v10, 0")
        e(f"v_lshlrev_b32 v{C+1}, 16, v{C+1}")
        e(f"v_sub_f32 v10, v10, v{C+1}")
        e("v_cmp_gt_u32 vcc, 32, v1")
        e(f"v_cvt_pk_bf16_f32 v{C+2}, v{C}, v{C+1}")
        e(f"v_cvt_pk_bf16_f32 v{C+3}, v10, 0")
        e(f"v_cndmask_b32 v{Q2+1}, v{C+3}, v{C+2}, vcc")
        for b in range(2):
            e(f"v_mov_b32 v{K2F[b]+1}, 0x3f803f80")
        wait(2, src)
        e(f"v_mfma_f32_32x32x16_bf16 v[{S[0]}:{S[0]+15}], v[{KF[0]}:{KF[0]+3}], v[{Q1}:{Q1+3}], 0")
        for i in range(16):
            e(f"v_mov_b32 v{O+i}, 0")

        e(f"v_mfma_f32_32x32x8_bf16 v[{S[0]}:{S[0]+15}], v[{K2F[0]}:{K2F[0]+1}], v[{Q2}:{Q2+1}], v[{S[0]}:{S[0]+15}]")
        for i in range(8):
            e(f"v_mov_b32 v{P[1]+i}, 0")
            e(f"v_mov_b32 v{VF[1]+i}, 0")
    def tile(tt, top=None, src="lds"):
        cur = tt & 1; nxt = cur ^ 1
        wait(0, src)
        if top: top()
        if src == "lds":
            ld128(KF[cur], T, 0, (tt+2)*TILE_B, src); ld32(K2F[cur], T+1, 0, (tt+2)*TILE_B, src)
            ld128(VF[cur], T+2, 0, tt*TILE_B, src); ld128(VF[cur]+4, T+2, 0, tt*TILE_B+640, src)
        else:
            e(f"s_add_u32 s35, s42, {2*TILE_B}")
            ld128(KF[cur], 0, vK1, 0, src, "s35"); ld32(K2F[cur], 0, vK2, 0, src, "s35")
            ld128(VF[cur], 0, vV, 0, src, "s42"); ld128(VF[cur]+4, 0, vV, 640, src, "s42")
            e(f"s_add_u32 s42, s42, {TILE_B}")
        m = [f"v_mfma_f32_32x32x16_bf16 v[{S[nxt]}:{S[nxt]+15}], v[{KF[nxt]}:{KF[nxt]+3}], v[{Q1}:{Q1+3}], 0",
             f"v_mfma_f32_32x32x16_bf16 v[{O}:{O+15}], v[{VF[nxt]}:{VF[nxt]+3}], v[{P[nxt]}:{P[nxt]+3}], v[{O}:{O+15}]",
             f"v_mfma_f32_32x32x8_bf16 v[{S[nxt]}:{S[nxt]+15}], v[{K2F[nxt]}:{K2F[nxt]+1}], v[{Q2}:{Q2+1}], v[{S[nxt]}:{S[nxt]+15}]",
             f"v_mfma_f32_32x32x16_bf16 v[{O}:{O+15}], v[{VF[nxt]+4}:{VF[nxt]+7}], v[{P[nxt]+4}:{P[nxt]+7}], v[{O}:{O+15}]"]
        for g in range(4):
            e(m[g])
            for i in range(4):
                e(f"v_exp_f32 v{S[cur]+4*g+i}, v{S[cur]+4*g+i}")
            for i in range(2):
                j = 2 * g + i
                e(f"v_cvt_pk_bf16_f32 v{P[cur]+j}, v{S[cur]+2*j}, v{S[cur]+2*j+1}")
    maxpass("lds")
    prologue("lds")
    e("s_mov_b32 s42, 0")
    e.ts()
    e.label("attn_loop1")
    def topbar(it, name):
        def f():
            e(f"s_lshr_b32 s35, {1 | (1 << HB2_IT)}, s42")
            e("s_and_b32 s35, s35, 1")
            e(f"s_cbranch_scc0 {name}")
            e("s_barrier")
            e.label(name)
        return f
    for tt in range(8):
        tile(tt, topbar(0, "attn_nobar1") if tt == HB1_TT else None)
    for i in range(3):
        e(f"v_add_u32 v{T+i}, {8*TILE_B}, v{T+i}")
    e("s_add_u32 s42, s42, 1")
    e("s_cmp_lt_u32 s42, 8")
    e("s_cbranch_scc1 attn_loop1")
    e("s_branch attn_done")
    e.label("attn_restart")
    maxpass("glb")
    prologue("glb")
    e("s_mov_b32 s42, 0")
    e.label("attn_loop2")
    for tt in range(2):
        tile(tt, src="glb")
    e(f"s_cmp_lt_u32 s42, {64*TILE_B}")
    e("s_cbranch_scc1 attn_loop2")
    e("s_waitcnt vmcnt(0)")
    e.label("attn_done")
    e.ts()
    e("s_waitcnt lgkmcnt(0)")
    e(f"v_mfma_f32_32x32x16_bf16 v[{O}:{O+15}], v[{VF[1]}:{VF[1]+3}], v[{P[1]}:{P[1]+3}], v[{O}:{O+15}]")
    e(f"v_mfma_f32_32x32x16_bf16 v[{O}:{O+15}], v[{VF[1]+4}:{VF[1]+7}], v[{P[1]+4}:{P[1]+7}], v[{O}:{O+15}]")
    e("s_nop 15")
    e("s_nop 3")
    e("s_cmp_lg_u32 s40, 0")
    e("s_cbranch_scc1 attn_fin")
    e("v_mov_b32 v10, 0x71800000")
    e(f"v_cmp_nlt_f32 vcc, v{O+10}, v10")
    e("s_mov_b64 s[44:45], vcc")
    e("v_mov_b32 v10, 0x207")
    for i in range(10):
        e(f"v_cmp_class_f32 vcc, v{O+i}, v10")
        e("s_or_b64 s[44:45], s[44:45], vcc")
    e("s_cmp_eq_u64 s[44:45], 0")
    e("s_cbranch_scc1 attn_fin")
    e("s_mov_b32 s40, 1")
    e("s_branch attn_restart")
    e.label("attn_fin")
    e(f"v_rcp_f32 v10, v{O+10}")
    e("s_nop 0")
    for i in range(10):
        e(f"v_mul_f32 v{O+i}, v{O+i}, v10")
    for i in range(5):
        e(f"v_cvt_pk_bf16_f32 v{S[0]+i}, v{O+2*i}, v{O+2*i+1}")
    e("s_nop 1")
    e(f"v_permlane32_swap_b32 v{S[0]}, v{S[0]+2}")
    e(f"v_permlane32_swap_b32 v{S[0]+1}, v{S[0]+3}")
    e(f"buffer_store_dwordx4 v[{S[0]}:{S[0]+3}], v9, s[24:27], s36 offen sc1")
    e("v_cmp_gt_u32 vcc, 32, v1")
    e("s_and_saveexec_b64 s[44:45], vcc")
    e(f"buffer_store_dword v{S[0]+4}, v8, s[24:27], s36 offen offset:32 sc1")
    e("s_mov_b64 exec, -1")
    e.ts()
    e("s_branch p2_done")
    e.label("attn_helper")
    e.nts = 3
    if "hprio" in EXP: e("s_setprio 1")
    e("s_sub_u32 s41, s32, 8")
    e("s_lshl_b32 s34, s41, 10")
    def kvdma(i4):
        e(f"s_add_u32 m0, s34, {i4*4096}")
        e(f"s_add_u32 s35, s34, {i4*4096}")
        e(f"buffer_load_dwordx4 v7, s[16:19], s35 offen{'' if ('inv1' in EXP and i4 >= 6) else ' sc1'} lds")
    for i4 in range(6):
        kvdma(i4)
    e("v_mov_b32 v4, 163832")
    e("v_mov_b32 v5, 0")
    e("ds_write_b32 v4, v5")
    e("s_waitcnt vmcnt(0) lgkmcnt(0)")
    e("s_barrier")
    e.ts()
    for i4 in range(6, 26):
        kvdma(i4)
    srd_off(e, 8, 4, 5, WS_QKVA, 2048 * 3456)
    srd_off(e, 20, 4, 5, WS_OA, 2048 * 1152)
    srd(e, 12, 46, 47, 576 * 1152)
    srd(e, 24, 48, 49, 576 * 1152)
    e("s_lshl_b32 s40, s41, 1")
    e("s_add_u32 s40, s40, s33")
    e("s_add_u32 s42, s40, 2")
    e(f"s_mov_b32 s38, {f32bits(CSCALE):#x}")
    e("s_waitcnt vmcnt(0)")
    e("s_barrier")
    e.ts()
    e("v_lshrrev_b32 v10, 2, v1")
    e("v_and_b32 v11, 3, v1")
    e("v_bfe_u32 v12, v10, 1, 2")
    e("v_xor_b32 v12, v12, v11")
    e("v_lshlrev_b32 v12, 4, v12")
    e("v_lshlrev_b32 v13, 6, v10")
    e("v_add_u32 v12, v12, v13")
    e("s_mul_i32 s39, s41, 12288")
    e(f"s_add_u32 s39, s39, {PARK}")
    e("v_add_u32 v12, s39, v12")
    for t in range(6):
        e(f"ds_read_b128 v[{20+8*t}:{23+8*t}], v12 offset:{t*2048}")
        e(f"ds_read_b128 v[{24+8*t}:{27+8*t}], v12 offset:{t*2048 + 1024}")
    e("s_lshl_b32 s35, s61, 7")
    e("s_lshl_b32 s36, s41, 5")
    e("s_add_u32 s35, s35, s36")
    e("v_add_u32 v10, s35, v10")
    e("v_mul_u32_u24 v10, 3456, v10")
    e("v_lshlrev_b32 v11, 4, v11")
    e("v_add_u32 v10, v10, v11")
    e("s_mul_i32 s35, s62, 384")
    e("v_add_u32 v10, s35, v10")
    e("s_waitcnt lgkmcnt(0)")
    for i in range(12):
        e(f"s_add_u32 m0, s39, {i*1024}")
        e(f"s_add_u32 s35, s39, {i*1024}")
        e(f"buffer_load_dwordx4 v7, s[16:19], s35 offen{'' if 'inv1' in EXP else ' sc1'} lds")
    e("s_mov_b32 s56, s8")
    e("s_mov_b32 s57, s9")
    e("s_mov_b32 s59, 0x00020000")
    e("s_cmp_eq_u32 s60, 1")
    e(f"s_cselect_b32 s58, {2048*3456}, 0")
    e(f"s_mov_b32 s36, {16*3456}")
    for t in range(6):
        e(f"buffer_store_dwordx4 v[{20+8*t}:{23+8*t}], v10, s[56:59], 0 offen offset:{64*t} sc1")
        e(f"buffer_store_dwordx4 v[{24+8*t}:{27+8*t}], v10, s[56:59], s36 offen offset:{64*t} sc1")
    e("s_waitcnt vmcnt(0)")
    e.ts()
    e(f"s_add_u32 s50, s4, {WS_FLAG}")
    e("s_addc_u32 s51, s5, 0")
    e("s_cmp_lg_u32 s60, 1")
    e("s_cbranch_scc1 attn_h_nopub")
    e("s_lshl_b32 s35, s61, 8")
    e("s_lshl_b32 s39, s62, 4")
    e("s_add_u32 s35, s35, s39")
    e("s_lshl_b32 s39, s41, 2")
    e("s_add_u32 s35, s35, s39")
    e("v_mov_b32 v10, s35")
    e("v_mov_b32 v11, 1")
    e("s_mov_b64 exec, 1")
    e("global_store_dword v10, v11, s[50:51] sc1")
    e("s_mov_b64 exec, -1")
    e.label("attn_h_nopub")
    e("s_lshl_b32 s39, s6, 2")
    e("s_add_u32 s39, s39, s41")
    e("s_mul_i32 s39, s39, 5248")
    e("v_min_u32 v24, 40, v1")
    e("v_lshlrev_b32 v24, 7, v24")
    e("buffer_load_dword v155, v24, s[12:15], s39 offen")
    e("buffer_load_dword v155, v24, s[24:27], s39 offen")
    e("s_barrier")
    if "nohp" not in EXP: e("s_setprio 1")
    e("s_sub_u32 s35, s33, 14")
    e("s_max_i32 s35, s35, 0")
    e("s_lshr_b32 s35, s35, 7")
    e("s_lshl_b32 s35, s35, 8")
    e("s_lshr_b32 s39, s33, 7")
    e("s_lshl_b32 s39, s39, 8")
    e("v_min_u32 v12, 35, v1")
    e("v_lshlrev_b32 v12, 2, v12")
    e("v_add_u32 v10, s35, v12")
    e("v_add_u32 v12, s39, v12")
    e("s_mov_b32 s43, 0")
    e.label("attn_poll")
    e("global_load_dword v11, v10, s[50:51] sc1")
    e("global_load_dword v13, v12, s[50:51] sc1")
    e("s_waitcnt vmcnt(0)")
    e("v_and_b32 v11, v11, v13")
    e("v_cmp_ne_u32 vcc, 1, v11")
    e("s_add_u32 s43, s43, 1")
    e("s_cmp_eq_u64 vcc, 0")
    e("s_cbranch_scc1 attn_pollok")
    e("s_sleep 16")
    e("s_cmp_lt_u32 s43, 0x10000")
    e("s_cbranch_scc1 attn_poll")
    e.label("attn_pollok")
    e.ts()
    e("s_sub_u32 s39, s33, 14")
    e("s_max_i32 s39, s39, 0")
    e("s_mul_i32 s43, s39, 3456")
    e("s_add_u32 s43, s43, s34")
    for i4 in range(19):
        e(f"s_add_u32 m0, s34, {i4*4096}")
        e(f"s_add_u32 s35, s43, {i4*4096}")
        e("buffer_load_dwordx4 v7, s[8:11], s35 offen sc1 lds")
    e("s_movk_i32 s53, 1152")
    e("s_waitcnt vmcnt(0)")
    e("v_mov_b32 v5, 1")
    e("s_mov_b64 exec, 1")
    e("ds_add_u32 v4, v5")
    e("s_mov_b64 exec, -1")
    e.label("attn_sb")
    e("ds_read_b32 v6, v4")
    e("s_waitcnt lgkmcnt(0)")
    e("v_readfirstlane_b32 s45, v6")
    e("s_nop 3")
    e("s_cmp_ge_u32 s45, 4")
    e("s_cbranch_scc1 attn_sbx")
    e("s_sleep 2")
    e("s_branch attn_sb")
    e.label("attn_sbx")
    e.ts()
    AQ = 20; AK = 30; AV = 70; AO = 110; OA = 128; W = 134; R = 12
    e.label("attn_a_loop")
    e("v_lshlrev_b32 v10, 3, v3")
    e("v_sub_u32 v10, s40, v10")
    for i in range(4):
        e(f"v_subrev_u32 v{R+i}, {2*i}, v10")
        e(f"v_max_i32 v11, 0, v{R+i}")
        e("v_subrev_u32 v11, s39, v11")
        e("v_mul_u32_u24 v11, 3456, v11")
        e(f"v_add3_u32 v{R+4+i}, v11, v8, s53")
    e("s_sub_u32 s35, s40, s39")
    e("s_mul_i32 s35, s35, 3456")
    e("v_add_u32 v11, s35, v8")
    def rd9(dst, va):
        for j in range(4):
            e(f"ds_read2_b32 v[{dst+2*j}:{dst+2*j+1}], v{va} offset0:{2*j} offset1:{2*j+1}")
        e(f"ds_read_b32 v{dst+8}, v{va} offset:32")
    rd9(AQ, 11)
    for i in range(4):
        rd9(AK + 10 * i, R + 4 + i)
    for i in range(4):
        e(f"v_add_u32 v{R+4+i}, 1152, v{R+4+i}")
        rd9(AV + 10 * i, R + 4 + i)
    e("s_waitcnt lgkmcnt(0)")
    L = W
    for i in range(4):
        k = AK + 10 * i
        e(f"v_dot2_f32_bf16 v{L+i}, v{AQ}, v{k}, 0")
    for j in range(1, 9):
        for i in range(4):
            k = AK + 10 * i
            e(f"v_dot2_f32_bf16 v{L+i}, v{AQ+j}, v{k+j}, v{L+i}")
    e(f"v_mov_b32 v{W+4}, 0xff800000")
    e("s_nop 2")
    for i in range(4):
        e(f"v_mul_f32 v{L+i}, s38, v{L+i}")
        e(f"v_cmp_gt_i32 vcc, 0, v{R+i}")
        e("s_nop 1")
        e(f"v_cndmask_b32 v{L+i}, v{L+i}, v{W+4}, vcc")
    M = W + 5
    e(f"v_max_f32 v{M}, v{L}, v{L+1}")
    e(f"v_max3_f32 v{M}, v{L+2}, v{L+3}, v{M}")
    e(f"v_mov_b32 v{M+1}, v{M}")
    e("s_nop 1")
    e(f"v_permlane32_swap_b32 v{M}, v{M+1}")
    e(f"v_max_f32 v{M}, v{M}, v{M+1}")
    for i in range(4):
        e(f"v_sub_f32 v{L+i}, v{L+i}, v{M}")
    for i in range(4):
        e(f"v_exp_f32 v{L+i}, v{L+i}")
    e("s_nop 0")
    e(f"v_add_f32 v{M+2}, v{L}, v{L+1}")
    e(f"v_add_f32 v{M+3}, v{L+2}, v{L+3}")
    e(f"v_add_f32 v{M+2}, v{M+2}, v{M+3}")
    e(f"v_mov_b32 v{M+3}, v{M+2}")
    e("s_nop 1")
    e(f"v_permlane32_swap_b32 v{M+2}, v{M+3}")
    e(f"v_add_f32 v{M+2}, v{M+2}, v{M+3}")
    e(f"v_rcp_f32 v{M+2}, v{M+2}")
    e("s_nop 0")
    PL = W + 10; PH = W + 14
    for i in range(4):
        e(f"v_mul_f32 v{L+i}, v{L+i}, v{M+2}")
    for i in range(4):
        e(f"v_cvt_pk_bf16_f32 v{PL+i}, v{L+i}, 0")
        e(f"v_cvt_pk_bf16_f32 v{PH+i}, 0, v{L+i}")
    for i in range(4):
        v = AV + 10 * i
        for j in range(9):
            if i == 0:
                e(f"v_dot2_f32_bf16 v{AO+2*j}, v{v+j}, v{PL+i}, 0")
                e(f"v_dot2_f32_bf16 v{AO+2*j+1}, v{v+j}, v{PH+i}, 0")
            else:
                e(f"v_dot2_f32_bf16 v{AO+2*j}, v{v+j}, v{PL+i}, v{AO+2*j}")
                e(f"v_dot2_f32_bf16 v{AO+2*j+1}, v{v+j}, v{PH+i}, v{AO+2*j+1}")
    e("s_nop 2")
    e(f"v_mov_b32 v{W}, v{AO+16}")
    e(f"v_mov_b32 v{W+1}, v{AO+17}")
    e("s_nop 2")
    for d in range(8):
        e(f"v_permlane32_swap_b32 v{AO+d}, v{AO+d+8}")
    e(f"v_permlane32_swap_b32 v{AO+16}, v{W}")
    e(f"v_permlane32_swap_b32 v{AO+17}, v{W+1}")
    for d in range(8):
        e(f"v_add_f32 v{AO+d}, v{AO+d}, v{AO+d+8}")
    e(f"v_add_f32 v{AO+16}, v{AO+16}, v{W}")
    e(f"v_add_f32 v{AO+17}, v{AO+17}, v{W+1}")
    for i in range(4):
        e(f"v_cvt_pk_bf16_f32 v{OA+i}, v{AO+2*i}, v{AO+2*i+1}")
    e(f"v_cvt_pk_bf16_f32 v{OA+4}, v{AO+16}, v{AO+17}")
    e("s_mul_i32 s36, s40, 1152")
    e(f"buffer_store_dwordx4 v[{OA}:{OA+3}], v9, s[20:23], s36 offen sc1")
    e(f"buffer_store_dword v{OA+4}, v8, s[20:23], s36 offen offset:32 sc1")
    e("s_add_u32 s40, s40, 1")
    e("s_cmp_lt_u32 s40, s42")
    e("s_cbranch_scc1 attn_a_loop")
    e("s_waitcnt vmcnt(0)")
    e("s_lshr_b32 s35, s33, 7")
    e("s_lshl_b32 s35, s35, 8")
    e("s_and_b32 s36, s6, 15")
    e("s_lshl_b32 s36, s36, 4")
    e("s_add_u32 s35, s35, s36")
    e("s_lshl_b32 s36, s41, 2")
    e("s_add_u32 s35, s35, s36")
    e("s_add_u32 s35, s35, 24576")
    e("v_mov_b32 v10, s35")
    e("v_mov_b32 v11, 1")
    e("s_mov_b64 exec, 1")
    e("global_store_dword v10, v11, s[50:51] sc1")
    e("s_mov_b64 exec, -1")
    e.ts()
    e("s_setprio 0")
    return 163840

def main():
    global INSTR
    INSTR = len(sys.argv) > 2 and sys.argv[2] == "instr"
    EXP.update(sys.argv[3:])
    global PFD, PLOOK
    for x in sys.argv[3:]:
        if x.startswith("pf="): PFD = int(x[3:])
        if x.startswith("pl="): PLOOK = int(x[3:])
        if x.startswith("pm="): PMAP[x[3:5]] = int(x[5:])
        if x.startswith("tp="):
            global TPUB_, TPOLL_, TB11_
            TPUB_, TPOLL_, TB11_ = [int(y) for y in x[3:].split(",")]
    e = E()
    l1 = gen_proj(e)
    l2 = gen_attn(e)
    l3 = gen_out(e)
    ref = open(f"cdna_kernels/{NAME}.s.ref").read().splitlines()
    head = [l for l in ref if l.startswith(";") and "@launch" not in l and "Override" not in l and "grid=ceil" not in l]
    out = "\n".join(head) + "\n"
    out += f"; @launch kernel=main_kernel grid=(256,1,1) block=(768,1,1) lds={l2}\n"
    out += '.amdgcn_target "amdgcn-amd-amdhsa--gfx950"\n.text\n'
    out += e.text()
    out += "code_end:\n"
    out += '.section .rodata,"a"\n.p2align 6\nkd_start:\n'
    out += kd("main_kernel", 168)
    if "plain" in EXP:
        out = out.replace("; @launch kernel=main_kernel ", "; @launch ").replace("main_kernel", NAME + "_kernel")
    path = sys.argv[1] if len(sys.argv) > 1 else f"cdna_kernels/{NAME}.s"
    open(path, "w").write(out)

main()
```
